```python
import torch

def _softmax(x, axis=-1):
    return torch.softmax(x, dim=axis)

def _gelu(x):
    return torch.nn.functional.gelu(x, approximate='tanh')

def _silu(x):
    return torch.nn.functional.silu(x)

def _sigmoid(x):
    return torch.sigmoid(x)

def _layernorm(x, axis=-1, eps=1e-05):
    m = x.mean(dim=axis, keepdim=True)
    v = x.var(dim=axis, keepdim=True, unbiased=False)
    return (x - m) / torch.sqrt(v + eps)

def _scatter_add(tgt, idx, src, axis=0):
    return tgt.clone().index_add_(axis, idx, src)

def _segment_sum(src, seg, n):
    out = torch.zeros((n,) + src.shape[1:], dtype=src.dtype)
    return out.index_add_(0, seg, src)

def _pad(x, pw):
    flat = tuple((v for pair in reversed(pw) for v in pair))
    return torch.nn.functional.pad(x, flat)
kernel_name = 'concat_heads__memory_aug_recurrent_mem_tr__ssm_conv_s5__prompt'

def setup_inputs():

    _w = lambda a: (lambda t: t.to(torch.bfloat16) if t.is_floating_point() else t)(torch.as_tensor(a))

    def _A_setup():
        B, S, Dm = (1, 2048, 512)
        H, Dh = (32, 128)
        M, seg = (8, 32)
        seg = min(seg, S)
        S = S // seg * seg
        return {'x': _w((lambda *s: torch.randn(*s, dtype=torch.bfloat16) * 0.05)(B, S, Dm)), 'mem0': _w((lambda *s: torch.randn(*s, dtype=torch.bfloat16) * 0.8)(B, M, Dm)), 'Wq': _w((lambda *s: torch.randn(*s, dtype=torch.bfloat16) * 1.6)(Dm, H, Dh) * Dm ** (-0.5)), 'Wk': _w((lambda *s: torch.randn(*s, dtype=torch.bfloat16) * 1.6)(Dm, H, Dh) * Dm ** (-0.5)), 'Wv': _w((lambda *s: torch.randn(*s, dtype=torch.bfloat16) * 0.8)(Dm, H, Dh) * Dm ** (-0.5)), 'Wo': _w((lambda *s: torch.randn(*s, dtype=torch.bfloat16) * 0.8)(H, Dh, Dm) * (H * Dh) ** (-0.5)), 'seg_len': seg}
    _A_in = _A_setup()

    def _B_setup():
        B, S, D = (1, 2048, 512)
        P = D
        Lambda_re = -0.5 * (lambda _x: torch.exp(torch.as_tensor(_x)))((lambda *s: torch.randn(*s, dtype=torch.bfloat16) * 0.8)(P))
        Lambda_im = (lambda *s: torch.randn(*s, dtype=torch.bfloat16) * 0.8)(P) * 1.0
        B_re = (lambda *s: torch.randn(*s, dtype=torch.bfloat16) * 0.8)(P, D) * D ** (-0.5)
        B_im = (lambda *s: torch.randn(*s, dtype=torch.bfloat16) * 0.8)(P, D) * D ** (-0.5)
        C_re = (lambda *s: torch.randn(*s, dtype=torch.bfloat16) * 0.8)(D, P) * P ** (-0.5)
        C_im = (lambda *s: torch.randn(*s, dtype=torch.bfloat16) * 0.8)(D, P) * P ** (-0.5)
        log_dt = (lambda *s: torch.randn(*s, dtype=torch.bfloat16) * 0.8)(P) * 0.3 - 2.0
        Dskip = (lambda *s: torch.randn(*s, dtype=torch.bfloat16) * 0.8)(D)
        return {'x': _w((lambda *s: torch.randn(*s, dtype=torch.bfloat16) * 0.05)(B, S, D)), 'Lambda_re': _w(Lambda_re), 'Lambda_im': _w(Lambda_im), 'B_re': _w(B_re), 'B_im': _w(B_im), 'C_re': _w(C_re), 'C_im': _w(C_im), 'log_dt': _w(log_dt), 'Dskip': _w(Dskip)}
    _B_in = _B_setup()
    return {'A_x': _A_in['x'], 'A_mem0': _A_in['mem0'], 'A_Wq': _A_in['Wq'], 'A_Wk': _A_in['Wk'], 'A_Wv': _A_in['Wv'], 'A_Wo': _A_in['Wo'], 'A_seg_len': _A_in['seg_len'], 'B_x': _B_in['x'], 'B_Lambda_re': _B_in['Lambda_re'], 'B_Lambda_im': _B_in['Lambda_im'], 'B_B_re': _B_in['B_re'], 'B_B_im': _B_in['B_im'], 'B_C_re': _B_in['C_re'], 'B_C_im': _B_in['C_im'], 'B_log_dt': _B_in['log_dt'], 'B_Dskip': _B_in['Dskip']}

def reference(A_x, A_mem0, A_Wq, A_Wk, A_Wv, A_Wo, A_seg_len, B_x, B_Lambda_re, B_Lambda_im, B_B_re, B_B_im, B_C_re, B_C_im, B_log_dt, B_Dskip):

    def _A_ref(x, mem0, Wq, Wk, Wv, Wo, seg_len):
        B, S, Dm = x.shape
        H, Dh = (Wq.shape[1], Wq.shape[2])
        M = mem0.shape[1]
        scale = Dh ** (-0.5)
        n_seg = S // seg_len
        L = M + seg_len
        idx = torch.arange(L)
        mask = (idx[:, None] < M) | (idx[:, None] >= idx[None, :])
        mem = mem0
        outs = []
        for s in range(n_seg):
            xs = x[:, s * seg_len:(s + 1) * seg_len, :].clone()
            h = torch.concatenate([mem, xs], axis=1)
            q = torch.einsum('btd,dhe->bhte', h, Wq)
            k = torch.einsum('btd,dhe->bhte', h, Wk)
            v = torch.einsum('btd,dhe->bhte', h, Wv)
            scores = torch.einsum('bhqe,bhke->bhqk', q, k) * scale
            scores = torch.where(mask[None, None], scores, -1000000000.0)
            p = _softmax(scores, axis=-1)
            o = torch.einsum('bhqk,bhke->bhqe', p, v)
            o = torch.einsum('bhte,hed->btd', o, Wo)
            mem = o[:, :M, :].clone()
            outs.append(o[:, M:, :])
        return torch.concatenate(outs, axis=1)

    def _B_ref(x, Lambda_re, Lambda_im, B_re, B_im, C_re, C_im, log_dt, Dskip):
        Bsz, L, H = x.shape
        Lam = Lambda_re + 1j * Lambda_im
        Bmat = B_re + 1j * B_im
        Cmat = C_re + 1j * C_im
        dt = torch.exp(log_dt)
        Lam_bar = torch.exp(dt * Lam)
        B_bar = ((Lam_bar - 1.0) / Lam)[:, None] * Bmat
        Bu = torch.einsum('bld,pd->blp', x + 0j, B_bar)
        h = torch.zeros_like(Bu[:, 0, :])
        hs = []
        for t in range(L):
            h = Lam_bar[None, :] * h + Bu[:, t, :]
            hs.append(h)
        hseq = torch.stack(hs, 1)
        y = 2.0 * torch.einsum('blp,dp->bld', hseq, Cmat).real + x * Dskip[None, None, :]
        return y
    a = _A_ref(A_x, A_mem0, A_Wq, A_Wk, A_Wv, A_Wo, A_seg_len)
    b = _B_ref(B_x, B_Lambda_re, B_Lambda_im, B_B_re, B_B_im, B_C_re, B_C_im, B_log_dt, B_Dskip)
    return torch.concatenate([a, b], axis=-1)
```

```python
class Asm:
    def __init__(self):
        self.lines = []
        self.uid = 0
        self.lds = Cnt(self, 'lgkmcnt', 15)
        self.vm = Cnt(self, 'vmcnt', 63)
    def __call__(self, s=""):
        for l in s.split("\n"):
            self.lines.append(l)
    def label(self, name):
        self.lines.append(name + ":")
    def text(self):
        return "\n".join(self.lines) + "\n"
    def ds(self, s, tag=None):
        self("    " + s); self.lds.issue(tag)
    def vmem(self, s, tag=None):
        self("    " + s); self.vm.issue(tag)

class Cnt:
    def __init__(self, a, name, mx):
        self.a, self.name, self.mx = a, name, mx
        self.n = 0
        self.done = 0
        self.tags = {}
    def issue(self, tag=None):
        self.n += 1
        if tag is not None: self.tags[tag] = self.n
    def need(self, *tags):
        k = max(self.tags[t] for t in tags)
        if k <= self.done: return
        out = self.n - k
        if out > self.mx: out = self.mx
        self.a(f"    s_waitcnt {self.name}({out})")
        self.done = self.n - out
    def drain(self):
        if self.done < self.n:
            self.a(f"    s_waitcnt {self.name}(0)")
        self.done = self.n
    def reset(self):
        self.n = 0; self.done = 0; self.tags = {}
    def assume_drained(self):
        self.done = self.n

def vr(base, n=1):
    return f"v{base}" if n == 1 else f"v[{base}:{base+n-1}]"
def ar(base, n=1):
    return f"a{base}" if n == 1 else f"a[{base}:{base+n-1}]"
def sr(base, n=1):
    return f"s{base}" if n == 1 else f"s[{base}:{base+n-1}]"

def kdesc(name, vgpr=512, accum=256, sgpr=102, kernarg=152):
    return f""".amdhsa_kernel {name}
  .amdhsa_next_free_vgpr {vgpr}
  .amdhsa_next_free_sgpr {sgpr}
  .amdhsa_accum_offset {accum}
  .amdhsa_group_segment_fixed_size 0
  .amdhsa_kernarg_size {kernarg}
  .amdhsa_user_sgpr_count 2
  .amdhsa_user_sgpr_kernarg_segment_ptr 1
  .amdhsa_system_sgpr_workgroup_id_x 1
.end_amdhsa_kernel
"""
def f32bits(x):
    import struct
    return struct.unpack('<I', struct.pack('<f', x))[0]
def chk(o, lim=4095):
    assert 0 <= o <= lim, o
    return o
```

```python
from asmlib import *
from chain import WS_KF, WS_VF, WS_QF, WS_OF, WS_KM, WS_VM, WS_FLAG, WS_SIZE

WS_U   = 0x6000000
WS_H   = 0x6800000
F_KV   = WS_FLAG + 0x000
F_Q    = WS_FLAG + 0x200
F_CH   = WS_FLAG + 0x300
F_O    = WS_FLAG + 0x400
F_U    = WS_FLAG + 0x500
F_SC   = WS_FLAG + 0x580
FLAG_BYTES = 0x600

B_WS = 8
B_X  = 12
B_W  = 16
B_O  = 20
B_WV = 24
B_T0, B_T1, B_T2, B_T3 = 25, 26, 27, 28
B_SET, B_INST = 29, 30
B_SEG = 31
B_OUT = 32
B_CNT = 33
B_FLG = 34
B_RET = 35

XROW = 1040
XBUF = 32 * XROW

def srd(a, base, ptr_off, nbytes):
    a(f"""    s_load_dwordx2 s[{base}:{base+1}], s[0:1], {ptr_off}
    s_mov_b32 s{base+2}, {nbytes}
    s_mov_b32 s{base+3}, 0x20000
    s_waitcnt lgkmcnt(0)""")

def proj_role(a, name, kind, nsets=4, flags=True):
    ws = f"s[{B_WS}:{B_WS+3}]"
    L = a.lds
    a(f"""    v_and_b32 v1, 63, v0                ; lane
    v_and_b32 v2, 31, v1                ; c = lane&31
    v_lshrrev_b32 v3, 5, v1             ; hi
    v_lshlrev_b32 v4, 4, v1             ; lane*16""")
    if kind in ('KV', 'Q'):
        if kind == 'KV':
            a(f"""    s_cmp_lt_u32 s{B_WV}, 2
    s_cselect_b32 s{B_T0}, 24, 32
    s_load_dwordx2 s[{B_W}:{B_W+1}], s[0:1], s{B_T0}
    s_mov_b32 s{B_W+2}, 0x400000
    s_mov_b32 s{B_W+3}, 0x20000
    s_lshl_b32 s{B_T1}, s{B_INST}, 8
    s_waitcnt lgkmcnt(0)""")
        else:
            a(f"""    s_load_dwordx2 s[{B_W}:{B_W+1}], s[0:1], 16
    s_mov_b32 s{B_W+2}, 0x400000
    s_mov_b32 s{B_W+3}, 0x20000
    s_lshr_b32 s{B_T0}, s{B_WV}, 1
    s_lshl_b32 s{B_T1}, s{B_INST}, 1
    s_add_u32 s{B_T1}, s{B_T1}, s{B_T0}
    s_lshl_b32 s{B_T1}, s{B_T1}, 8
    s_waitcnt lgkmcnt(0)""")
        a(f"""    s_and_b32 s{B_T0}, s{B_WV}, 1
    s_lshl_b32 s{B_T0}, s{B_T0}, 7
    s_add_u32 s{B_T1}, s{B_T1}, s{B_T0}         ; + (w&1)*128 bytes
    v_lshrrev_b32 v5, 3, v1
    v_lshlrev_b32 v5, 13, v5
    v_and_b32 v6, 7, v1
    v_lshlrev_b32 v6, 4, v6
    v_add3_u32 v5, v5, v6, s{B_T1}              ; voffset
    v_and_b32 v6, 15, v1
    v_lshrrev_b32 v7, 2, v6                     ; r
    v_and_b32 v6, 3, v6                         ; c4
    v_lshrrev_b32 v8, 5, v1                     ; gam>>1
    v_lshlrev_b32 v8, 3, v8
    v_add_u32 v7, v7, v8
    v_lshlrev_b32 v7, 7, v7                     ; *128
    v_bfe_u32 v8, v1, 4, 1
    v_lshlrev_b32 v8, 5, v8                     ; colbase*2
    v_lshlrev_b32 v6, 3, v6
    v_add3_u32 v7, v7, v8, v6
    s_lshl_b32 s{B_T2}, s{B_WV}, 15
    v_add_u32 v7, s{B_T2}, v7""")
        def issue(ch):
            for i in range(16):
                a(f"""    s_add_u32 m0, s{B_T2}, {(ch & 1)*16384 + i*1024}
    s_mov_b32 s{B_T3}, {(ch*128 + i*8)*8192}
    buffer_load_dwordx4 v5, s[{B_W}:{B_W+3}], s{B_T3} offen lds""")
        issue(0); issue(1)
        for ch in range(4):
            a(f"    s_waitcnt vmcnt({16 if ch < 3 else 0})")
            for kq in range(8):
                kk = ch*8 + kq
                for ct in range(2):
                    for hf in range(2):
                        off = (ch & 1)*16384 + (kq*16 + hf*4)*128 + ct*64
                        a(f"    ds_read_b64_tr_b16 {ar((ct*32 + kk)*4 + 2*hf, 2)}, v7 offset:{off}")
                if kq % 2 == 1: a("    s_waitcnt lgkmcnt(4)")
            a("    s_waitcnt lgkmcnt(0)")
            if ch + 2 < 4: issue(ch + 2)
    else:
        a(f"""    s_lshl_b32 s{B_T0}, s{B_INST}, 2
    s_add_u32 s{B_T0}, s{B_T0}, s{B_WV}
    s_lshl_b32 s{B_T0}, s{B_T0}, 15             ; *32 rows*1024B
    v_lshlrev_b32 v5, 10, v2                    ; c*1024
    v_lshlrev_b32 v6, 4, v3                     ; hi*16
    v_add3_u32 v5, v5, v6, s{B_T0}""")
        for ct in range(2):
            srd(a, B_W, 80 + 8*ct, 0x80000)
            for kk in range(32):
                a(f"    buffer_load_dwordx4 {ar((ct*32 + kk)*4, 4)}, v5, s[{B_W}:{B_W+3}], 0 offen offset:{kk*32}")
        a("    s_waitcnt vmcnt(0)")
    a("    s_barrier")
    srd(a, B_X, 0 if kind != 'U' else 56, 2048*1024)
    if kind == 'U':
        a(f"""    v_bfe_u32 v6, v2, 2, 1
    v_lshlrev_b32 v6, 4, v6                     ; 16*((m>>2)&1)
    v_lshrrev_b32 v7, 3, v2
    v_lshlrev_b32 v7, 2, v7                     ; 4*(m>>3)
    v_and_b32 v8, 3, v2
    v_add3_u32 v6, v6, v7, v8""")
    else:
        a("    v_mov_b32 v6, v2")
    a(f"""    v_mul_u32_u24 v6, {XROW}, v6
    v_lshlrev_b32 v7, 4, v3
    v_add_u32 v6, v6, v7""")
    if kind in ('KV', 'Q'):
        a(f"""    v_lshrrev_b32 v8, 4, v2
    v_and_b32 v9, 15, v2
    v_lshlrev_b32 v9, 4, v9
    v_lshlrev_b32 v10, 8, v3
    v_add_u32 v9, v9, v10
    v_lshlrev_b32 v10, 12, v8
    v_add_u32 v10, v10, v9                      ; K-type
    v_lshlrev_b32 v11, 10, v8
    v_add_u32 v11, v11, v9                      ; V-type""")
        if kind == 'KV':
            a(f"""    s_cmp_lt_u32 s{B_WV}, 2
    s_cselect_b64 vcc, -1, 0
    s_nop 1
    v_cndmask_b32 v8, v11, v10, vcc
    s_and_b32 s{B_T0}, s{B_WV}, 1
    s_cmp_lt_u32 s{B_WV}, 2
    s_cselect_b32 s{B_T1}, 11, 12
    s_lshl_b32 s{B_T0}, s{B_T0}, s{B_T1}
    s_cmp_lt_u32 s{B_WV}, 2
    s_cselect_b32 s{B_T1}, 0, {WS_VF - WS_KF}
    s_add_u32 s{B_T1}, s{B_T1}, {WS_KF}
    s_add_u32 s{B_OUT}, s{B_T0}, s{B_T1}
    s_lshl_b32 s{B_T0}, s{B_INST}, 13
    s_add_u32 s{B_OUT}, s{B_OUT}, s{B_T0}""")
        else:
            a(f"""    v_mov_b32 v8, v10
    s_and_b32 s{B_T0}, s{B_WV}, 1
    s_lshl_b32 s{B_T0}, s{B_T0}, 11
    s_lshr_b32 s{B_T1}, s{B_WV}, 1
    s_lshl_b32 s{B_T2}, s{B_INST}, 1
    s_add_u32 s{B_T1}, s{B_T1}, s{B_T2}
    s_lshl_b32 s{B_T1}, s{B_T1}, 13
    s_add_u32 s{B_OUT}, s{B_T0}, s{B_T1}
    s_add_u32 s{B_OUT}, s{B_OUT}, {WS_QF}""")
    else:
        a(f"""    v_lshlrev_b32 v8, 16, v3
    v_lshlrev_b32 v9, 3, v2
    v_add_u32 v8, v8, v9
    s_lshl_b32 s{B_T0}, s{B_INST}, 2
    s_add_u32 s{B_T0}, s{B_T0}, s{B_WV}
    s_lshl_b32 s{B_T0}, s{B_T0}, 8
    s_add_u32 s{B_OUT}, s{B_T0}, {WS_U}""")
    if kind == 'KV':
        a(f"""    s_lshl_b32 s{B_T0}, s{B_SET}, 5
    s_add_u32 s{B_T0}, s{B_T0}, s{B_INST}
    s_lshl_b32 s{B_T0}, s{B_T0}, 2
    s_add_u32 s{B_FLG}, s{B_T0}, {F_KV}""")
    elif kind == 'Q':
        a(f"""    s_lshl_b32 s{B_T0}, s{B_SET}, 4
    s_add_u32 s{B_T0}, s{B_T0}, s{B_INST}
    s_lshl_b32 s{B_T0}, s{B_T0}, 2
    s_add_u32 s{B_FLG}, s{B_T0}, {F_Q}""")
    else:
        a(f"    s_mov_b32 s{B_FLG}, {F_U}")
    lab_end = f"L_{name}_end"
    if kind == 'KV':
        a(f"    s_cmp_lt_u32 s{B_WV}, 2\n    s_cbranch_scc0 L_{name}_V")
        proj_stream(a, name + "_K", 'K', nsets, flags, 'KV')
        a(f"    s_branch {lab_end}")
        a(f"L_{name}_V:")
        proj_stream(a, name + "_Vs", 'V', nsets, flags, 'KV')
    elif kind == 'Q':
        proj_stream(a, name + "_Q", 'K', nsets, flags, 'Q')
    else:
        proj_stream(a, name + "_U", 'U', nsets, flags, 'U')
    a(f"{lab_end}:")

def publish_progress(a, nm, mode):
    ws = f"s[{B_WS}:{B_WS+3}]"
    a(f"""    s_cmp_lg_u32 s{B_WV}, 0
    s_cbranch_scc1 L_{nm}_np
    s_mov_b64 exec, 1
    v_mov_b32 v120, 0""")
    if mode == 'store':
        a(f"""    v_mov_b32 v121, s{B_CNT}
    buffer_store_dword v121, v120, {ws}, s{B_FLG} offen sc1""")
    else:
        a(f"""    v_mov_b32 v121, 1
    buffer_atomic_add v121, v120, {ws}, s{B_FLG} offen sc1""")
    a(f"""    s_mov_b64 exec, -1
L_{nm}_np:""")

def proj_stream(a, name, epi, nsets, flags, kind):
    ws = f"s[{B_WS}:{B_WS+3}]"
    L = a.lds
    def xissue(buf):
        a(f"""    s_lshl_b32 s{B_T0}, s{B_SEG}, 15
    s_lshl_b32 s{B_T1}, s{B_WV}, 13
    s_add_u32 s{B_T0}, s{B_T0}, s{B_T1}
    s_mul_i32 s{B_T1}, s{B_WV}, {8*XROW}
    s_add_u32 s{B_T1}, s{B_T1}, {buf*XBUF}""")
        for r in range(8):
            a(f"""    s_add_u32 m0, s{B_T1}, {r*XROW}
    s_add_u32 s{B_T2}, s{B_T0}, {r*1024}
    buffer_load_dwordx4 v4, s[{B_X}:{B_X+3}], s{B_T2} offen lds""")
    a(f"""    s_mov_b32 s{B_SEG}, s{B_SET}
    s_mov_b32 s{B_CNT}, 0""")
    xissue(0)
    ACC = 32
    XF = 64
    OUTR = 96
    a(f"L_{name}_loop:")
    for buf in range(2):
        a("    s_waitcnt vmcnt(0)")
        a("    s_barrier")
        if flags:
            a(f"    s_cmp_eq_u32 s{B_CNT}, 0\n    s_cbranch_scc1 L_{name}_pp{buf}_np")
            publish_progress(a, f"{name}_pp{buf}", 'add' if kind == 'U' else 'store')
        a(f"    s_lshl_b32 s{B_T3}, s{B_SEG}, {17 if epi == 'U' else 18}")
        a(f"    s_add_u32 s{B_T3}, s{B_T3}, s{B_OUT}")
        a(f"    s_add_u32 s{B_SEG}, s{B_SEG}, {nsets}")
        a(f"    s_cmp_ge_u32 s{B_SEG}, 64\n    s_cbranch_scc1 L_{name}_nx{buf}")
        xissue(1 - buf)
        a(f"L_{name}_nx{buf}:")
        L.reset()
        NX = 8
        for kk in range(NX): a.ds(f"ds_read_b128 {vr(XF + 4*kk, 4)}, v6 offset:{buf*XBUF + kk*32}", ('x', kk))
        for kk in range(32):
            L.need(('x', kk))
            xf = vr(XF + 4*(kk % NX), 4)
            for ct in range(2):
                w_ = ar((ct*32 + kk)*4, 4)
                c_ = "0" if kk == 0 else vr(ACC + 16*ct, 16)
                if epi == 'K': a(f"    v_mfma_f32_32x32x16_bf16 {vr(ACC + 16*ct, 16)}, {w_}, {xf}, {c_}")
                else: a(f"    v_mfma_f32_32x32x16_bf16 {vr(ACC + 16*ct, 16)}, {xf}, {w_}, {c_}")
            if kk + NX < 32: a.ds(f"ds_read_b128 {xf}, v6 offset:{buf*XBUF + (kk+NX)*32}", ('x', kk+NX))
        a("    s_nop 15")
        if epi == 'K':
            for ct in range(2):
                A_ = ACC + 16*ct
                for i in range(2):
                    for r in range(4):
                        a(f"    v_cvt_pk_bf16_f32 v{OUTR + 4*(2*ct+i) + r}, v{A_ + 4*i + r}, v{A_ + 8 + 4*i + r}")
                    a(f"    buffer_store_dwordx4 {vr(OUTR + 4*(2*ct+i), 4)}, v8, {ws}, s{B_T3} offen offset:{ct*1024 + i*512} sc1")
        elif epi == 'V':
            for ct in range(2):
                A_ = ACC + 16*ct
                for ii in range(2):
                    o = OUTR + 4*(2*ct+ii)
                    a(f"    v_cvt_pk_bf16_f32 v{o}, v{A_ + 4*ii}, v{A_ + 4*ii + 1}")
                    a(f"    v_cvt_pk_bf16_f32 v{o+1}, v{A_ + 8 + 4*ii}, v{A_ + 8 + 4*ii + 1}")
                    a(f"    v_cvt_pk_bf16_f32 v{o+2}, v{A_ + 4*ii + 2}, v{A_ + 4*ii + 3}")
                    a(f"    v_cvt_pk_bf16_f32 v{o+3}, v{A_ + 8 + 4*ii + 2}, v{A_ + 8 + 4*ii + 3}")
                    a(f"    buffer_store_dwordx4 {vr(o, 4)}, v8, {ws}, s{B_T3} offen offset:{ct*2048 + ii*512} sc1")
        else:
            for rho in range(16):
                o = OUTR + 2*(rho % 8)
                a(f"    v_mov_b32 v{o}, v{ACC + rho}")
                a(f"    v_mov_b32 v{o+1}, v{ACC + 16 + rho}")
                if rho > 0 and rho % 1 == 0: pass
                a(f"    s_add_u32 s{B_T2}, s{B_T3}, {rho*4096}")
                a(f"    buffer_store_dwordx2 {vr(o, 2)}, v8, {ws}, s{B_T2} offen sc1")
        a(f"    s_add_u32 s{B_CNT}, s{B_CNT}, 1")
        a(f"    s_cmp_ge_u32 s{B_CNT}, {64 // nsets}")
        a(f"    s_cbranch_scc1 L_{name}_fin")
    a(f"    s_branch L_{name}_loop")
    a(f"L_{name}_fin:")
    a("    s_waitcnt vmcnt(0)")
    a("    s_barrier")
    if flags:
        publish_progress(a, f"{name}_ppf", 'add' if kind == 'U' else 'store')

def wait_flag(a, nm, soff_reg, target, vtmp=120, sleep=4, ge_reg=None):
    ws = f"s[{B_WS}:{B_WS+3}]"
    cmp = f"s{ge_reg}" if ge_reg is not None else str(target)
    a(f"""    v_mov_b32 v{vtmp}, 0
L_{nm}_w:
    buffer_load_dword v{vtmp+1}, v{vtmp}, {ws}, s{soff_reg} offen sc1
    s_waitcnt vmcnt(0)
    v_readfirstlane_b32 s{B_T3}, v{vtmp+1}
    s_cmp_ge_u32 s{B_T3}, {cmp}
    s_cbranch_scc1 L_{nm}_d
    s_sleep {sleep}
    s_add_u32 s{B_RET}, s{B_RET}, 1
    s_cmp_lt_u32 s{B_RET}, 1000000
    s_cbranch_scc1 L_{nm}_w
    s_endpgm
L_{nm}_d:""")

LOG2E = 1.4426950408889634
def ssm_params(a, vp, base):
    LR, LI, CR, CI = base, base+1, base+2, base+3
    T = base + 4
    a(f"    v_lshlrev_b32 v{T}, 1, v{vp}")
    for i, off in enumerate((64, 72, 112)):
        srd(a, B_W, off, 1024)
        a(f"    buffer_load_ushort v{T+1+i}, v{T}, s[{B_W}:{B_W+3}], 0 offen")
    a(f"""    s_waitcnt vmcnt(0)
    v_lshlrev_b32 v{T+1}, 16, v{T+1}          ; lre
    v_lshlrev_b32 v{T+2}, 16, v{T+2}          ; lim
    v_lshlrev_b32 v{T+3}, 16, v{T+3}          ; log_dt
    v_mul_f32 v{T+3}, {hex(f32bits(LOG2E))}, v{T+3}
    v_exp_f32 v{T+3}, v{T+3}
    s_nop 1
    v_cvt_pk_bf16_f32 v{T+3}, v{T+3}, v{T+3}
    v_lshlrev_b32 v{T+3}, 16, v{T+3}
    v_mul_f32 v{T+4}, v{T+3}, v{T+1}
    v_mul_f32 v{T+5}, v{T+3}, v{T+2}
    v_mul_f32 v{T+4}, {hex(f32bits(LOG2E))}, v{T+4}
    v_exp_f32 v{T+4}, v{T+4}                  ; mag
    v_mul_f32 v{T+5}, 0.15915494, v{T+5}      ; revolutions
    v_rndne_f32 v{T+6}, v{T+5}
    v_sub_f32 v{T+5}, v{T+5}, v{T+6}
    v_cos_f32 v{T+6}, v{T+5}
    v_sin_f32 v{T+7}, v{T+5}
    s_nop 1
    v_mul_f32 v{LR}, v{T+4}, v{T+6}
    v_mul_f32 v{LI}, v{T+4}, v{T+7}
    v_add_f32 v{T+4}, -1.0, v{LR}             ; nr
    v_mul_f32 v{T+5}, v{T+1}, v{T+1}
    v_fma_f32 v{T+5}, v{T+2}, v{T+2}, v{T+5}  ; den
    v_rcp_f32 v{T+5}, v{T+5}
    v_mul_f32 v{T+6}, v{T+4}, v{T+1}
    v_fma_f32 v{T+6}, v{LI}, v{T+2}, v{T+6}
    v_mul_f32 v{T+7}, v{LI}, v{T+1}
    v_fma_f32 v{T+7}, -v{T+4}, v{T+2}, v{T+7}
    v_mul_f32 v{CR}, v{T+6}, v{T+5}
    v_mul_f32 v{CI}, v{T+7}, v{T+5}""")

def scan_role(a, name, flags=True):
    ws = f"s[{B_WS}:{B_WS+3}]"
    a(f"""    v_and_b32 v1, 63, v0
    v_and_b32 v2, 15, v1                ; c
    v_lshrrev_b32 v3, 4, v0
    s_lshl_b32 s{B_T0}, s{B_INST}, 4
    v_add_u32 v4, s{B_T0}, v2           ; p""")
    ssm_params(a, 4, 8)
    LR, LI, CR, CI = 8, 9, 10, 11
    a(f"    v_mov_b32 v12, v{LR}\n    v_mov_b32 v13, v{LI}")
    for i in range(7):
        a("""    v_mul_f32 v14, v12, v12
    v_fma_f32 v14, -v13, v13, v14
    v_mul_f32 v15, v12, v13
    v_add_f32 v13, v15, v15
    v_mov_b32 v12, v14""")
    if flags:
        a(f"    s_mov_b32 s{B_T0}, {F_U}")
        wait_flag(a, name + "_wu", B_T0, 256)
    a(f"""    v_lshlrev_b32 v5, 19, v3
    v_lshlrev_b32 v6, 3, v4
    v_add_u32 v5, v5, v6
    v_lshlrev_b32 v6, 18, v3
    v_lshlrev_b32 v7, 2, v4
    v_add_u32 v6, v6, v7""")
    HR, HI = 16, 17
    UB = [32, 64]
    def loads(b, t0reg):
        for i in range(16):
            a(f"    s_add_u32 s{B_T1}, s{t0reg}, {i*4096}")
            a(f"    buffer_load_dwordx2 {vr(UB[b] + 2*i, 2)}, v5, {ws}, s{B_T1} offen sc1")
    def rec(b, out, hreg):
        for i in range(16):
            u = UB[b] + 2*i
            a(f"""    v_fma_f32 v18, v{LR}, v{HR}, v{u}
    v_fma_f32 v19, v{LR}, v{HI}, v{u+1}
    v_fma_f32 v18, -v{LI}, v{HI}, v18
    v_fma_f32 v{HI}, v{LI}, v{HR}, v19
    v_mov_b32 v{HR}, v18""")
            if out:
                a(f"""    v_mul_f32 v20, v{CR}, v{HR}
    v_mul_f32 v21, v{CR}, v{HI}
    v_fma_f32 v20, -v{CI}, v{HI}, v20
    v_fma_f32 v21, v{CI}, v{HR}, v21
    v_cvt_pk_bf16_f32 v{22 + (i & 3)}, v20, v21
    s_add_u32 s{B_T1}, s{hreg}, {i*2048}
    buffer_store_dword v{22 + (i & 3)}, v6, {ws}, s{B_T1} offen sc1""")
    for pas in range(2):
        if pas == 0:
            a(f"    v_mov_b32 v{HR}, 0\n    v_mov_b32 v{HI}, 0")
        SU, SH, SC = 40, 41, 42
        a(f"""    s_mov_b32 s{SU}, {WS_U}
    s_mov_b32 s{SH}, {WS_H}
    s_mov_b32 s{SC}, 0""")
        loads(0, SU)
        a(f"L_{name}_p{pas}:")
        a(f"    s_add_u32 s{SU}, s{SU}, {16*4096}")
        loads(1, SU)
        a(f"    s_waitcnt vmcnt({16})" if pas == 0 else f"    s_waitcnt vmcnt(16)")
        rec(0, pas == 1, SH)
        a(f"    s_add_u32 s{SH}, s{SH}, {16*2048}")
        a(f"    s_add_u32 s{SU}, s{SU}, {16*4096}")
        a(f"    s_add_u32 s{SC}, s{SC}, 1")
        a(f"    s_cmp_ge_u32 s{SC}, 4")
        a(f"    s_cbranch_scc1 L_{name}_p{pas}_last")
        loads(0, SU)
        a(f"    s_waitcnt vmcnt({16})")
        rec(1, pas == 1, SH)
        a(f"    s_add_u32 s{SH}, s{SH}, {16*2048}")
        a(f"    s_branch L_{name}_p{pas}")
        a(f"L_{name}_p{pas}_last:")
        a("    s_waitcnt vmcnt(0)")
        rec(1, pas == 1, SH)
        if pas == 0:
            a(f"""    v_lshlrev_b32 v18, 3, v0
    ds_write_b64 v18, v[{HR}:{HI}]
    s_waitcnt lgkmcnt(0)
    s_barrier
    v_lshlrev_b32 v18, 3, v2            ; c*8
    v_mov_b32 v{HR}, 0
    v_mov_b32 v{HI}, 0""")
            for j in range(15):
                a(f"""    ds_read_b64 v[20:21], v18 offset:{j*128}
    v_cmp_lt_u32 vcc, {j}, v3
    s_waitcnt lgkmcnt(0)
    v_fma_f32 v22, v12, v{HR}, v20
    v_fma_f32 v23, v12, v{HI}, v21
    v_fma_f32 v22, -v13, v{HI}, v22
    v_fma_f32 v23, v13, v{HR}, v23
    v_cndmask_b32 v{HR}, v{HR}, v22, vcc
    v_cndmask_b32 v{HI}, v{HI}, v23, vcc""")
    a("    s_waitcnt vmcnt(0)")
    a("    s_barrier")
    if flags:
        a(f"    s_mov_b32 s{B_FLG}, {F_SC}")
        publish_progress(a, name + "_pp", 'add')

HROW = 2064
HBUF = 32 * HROW
def y_role(a, name, nsets=8, flags=True):
    ws = f"s[{B_WS}:{B_WS+3}]"
    L = a.lds
    a(f"""    v_and_b32 v1, 63, v0
    v_and_b32 v2, 31, v1                ; c
    v_lshrrev_b32 v3, 5, v1             ; hi
    v_lshlrev_b32 v4, 4, v1             ; lane*16
    s_lshl_b32 s{B_T0}, s{B_INST}, 2
    s_add_u32 s{B_T0}, s{B_T0}, s{B_WV}
    s_lshl_b32 s{B_T0}, s{B_T0}, 5              ; d0 = 32*(4 inst + w)
    v_add_u32 v9, s{B_T0}, v2                   ; d
    v_lshlrev_b32 v5, 10, v9                    ; d*1024
    v_lshlrev_b32 v6, 4, v3
    v_add_u32 v5, v5, v6""")
    a(f"""    s_load_dwordx2 s[{B_W}:{B_W+1}], s[0:1], 96
    s_load_dwordx2 s[{B_O}:{B_O+1}], s[0:1], 104
    s_mov_b32 s{B_W+2}, 0x80000
    s_mov_b32 s{B_W+3}, 0x20000
    s_mov_b32 s{B_O+2}, 0x80000
    s_mov_b32 s{B_O+3}, 0x20000
    s_mov_b32 s{B_T1}, 0x05040100
    s_mov_b32 s{B_T2}, 0x07060302
    s_waitcnt lgkmcnt(0)""")
    for mb in range(4):
        for i in range(8):
            m = mb*8 + i
            a(f"    buffer_load_dwordx4 {vr(32 + 8*i, 4)}, v5, s[{B_W}:{B_W+3}], 0 offen offset:{m*32}")
            a(f"    buffer_load_dwordx4 {vr(36 + 8*i, 4)}, v5, s[{B_O}:{B_O+3}], 0 offen offset:{m*32}")
        a("    s_waitcnt vmcnt(0)")
        for i in range(8):
            m = mb*8 + i
            re, im = 32 + 8*i, 36 + 8*i
            for q in range(4):
                dst = (2*m + (q >> 1))*4 + (q & 1)*2
                a(f"""    v_perm_b32 v10, v{im+q}, v{re+q}, s{B_T1}
    v_perm_b32 v11, v{im+q}, v{re+q}, s{B_T2}
    v_xor_b32 v10, 0x80000000, v10
    v_xor_b32 v11, 0x80000000, v11
    v_accvgpr_write_b32 a{dst}, v10
    v_accvgpr_write_b32 a{dst+1}, v11""")
    srd(a, B_W, 120, 1024)
    a(f"""    v_lshlrev_b32 v10, 1, v9
    buffer_load_ushort v12, v10, s[{B_W}:{B_W+3}], 0 offen
    s_waitcnt vmcnt(0)
    v_lshlrev_b32 v12, 16, v12""")
    srd(a, B_X, 56, 2048*1024)
    srd(a, B_O, 128, 2048*4096)
    a(f"""    v_mul_u32_u24 v6, {HROW}, v2
    v_lshlrev_b32 v7, 5, v3
    v_add_u32 v6, v6, v7
    v_lshlrev_b32 v7, 12, v3
    v_lshlrev_b32 v8, 1, v9
    v_add_u32 v7, v7, v8                        ; x voffset
    v_lshlrev_b32 v8, 14, v3
    v_lshlrev_b32 v10, 2, v9
    v_add3_u32 v8, v8, v10, 0
    v_add_u32 v8, 2048, v8""")
    if flags:
        a(f"    s_mov_b32 s{B_T0}, {F_SC}")
        wait_flag(a, name + "_ws", B_T0, 32)
    def hissue(buf):
        a(f"""    s_lshl_b32 s{B_T0}, s{B_SEG}, 16
    s_lshl_b32 s{B_T1}, s{B_WV}, 14
    s_add_u32 s{B_T0}, s{B_T0}, s{B_T1}
    s_add_u32 s{B_T0}, s{B_T0}, {WS_H}
    s_mul_i32 s{B_T1}, s{B_WV}, {8*HROW}
    s_add_u32 s{B_T1}, s{B_T1}, {buf*HBUF}""")
        for r in range(8):
            for hf in range(2):
                a(f"""    s_add_u32 m0, s{B_T1}, {r*HROW + hf*1024}
    s_add_u32 s{B_T2}, s{B_T0}, {r*2048 + hf*1024}
    buffer_load_dwordx4 v4, {ws}, s{B_T2} offen sc1 lds""")
    a(f"""    s_mov_b32 s{B_SEG}, s{B_SET}
    s_mov_b32 s{B_CNT}, 0""")
    hissue(0)
    ACC = 32; XF = 64; XV = 96
    a(f"L_{name}_loop:")
    for buf in range(2):
        a("    s_waitcnt vmcnt(0)")
        a("    s_barrier")
        a(f"    s_mov_b32 s{B_T3}, s{B_SEG}")
        a(f"    s_add_u32 s{B_SEG}, s{B_SEG}, {nsets}")
        a(f"    s_cmp_ge_u32 s{B_SEG}, 64\n    s_cbranch_scc1 L_{name}_nx{buf}")
        hissue(1 - buf)
        a(f"L_{name}_nx{buf}:")
        a(f"    s_lshl_b32 s{B_T0}, s{B_T3}, 15")
        for i in range(4):
            for r in range(4):
                a(f"    s_add_u32 s{B_T1}, s{B_T0}, {(8*i + r)*1024}")
                a(f"    buffer_load_ushort v{XV + 4*i + r}, v7, s[{B_X}:{B_X+3}], s{B_T1} offen")
        L.reset()
        NX = 8
        def xoff(kk): return (kk >> 1)*64 + (kk & 1)*16
        base2 = buf*HBUF
        br = "v6" if buf == 0 else "v13"
        if buf == 0: a(f"    v_add_u32 v13, {HBUF}, v6")
        for kk in range(NX): a.ds(f"ds_read_b128 {vr(XF + 4*kk, 4)}, {br} offset:{xoff(kk)}", ('x', kk))
        for kk in range(64):
            L.need(('x', kk))
            xf = vr(XF + 4*(kk % NX), 4)
            c_ = "0" if kk == 0 else vr(ACC, 16)
            a(f"    v_mfma_f32_32x32x16_bf16 {vr(ACC, 16)}, {xf}, {ar(kk*4, 4)}, {c_}")
            if kk + NX < 64: a.ds(f"ds_read_b128 {xf}, {br} offset:{xoff(kk+NX)}", ('x', kk+NX))
        a("    s_waitcnt vmcnt(0)")
        a("    s_nop 7")
        a(f"    s_lshl_b32 s{B_T0}, s{B_T3}, 17")
        for i in range(4):
            for r in range(4):
                x = XV + 4*i + r
                a(f"""    v_lshlrev_b32 v{x}, 16, v{x}
    v_mul_f32 v{x}, v{x}, v12
    v_cvt_pk_bf16_f32 v{x}, v{x}, v{x}
    v_lshlrev_b32 v{x}, 16, v{x}
    v_fma_f32 v{x}, 2.0, v{ACC + 4*i + r}, v{x}
    s_add_u32 s{B_T1}, s{B_T0}, {(8*i + r)*4096}
    buffer_store_dword v{x}, v8, s[{B_O}:{B_O+3}], s{B_T1} offen""")
        a(f"    s_add_u32 s{B_CNT}, s{B_CNT}, 1")
        a(f"    s_cmp_ge_u32 s{B_CNT}, {64 // nsets}")
        a(f"    s_cbranch_scc1 L_{name}_fin")
    a(f"    s_branch L_{name}_loop")
    a(f"L_{name}_fin:")
    a("    s_waitcnt vmcnt(0)")

SCALE_C = (128 ** -0.5) * LOG2E
def attn_role(a, name, nlanes, flags=True):
    ws = f"s[{B_WS}:{B_WS+3}]"
    S_H_, S_QT, S_SEG, S_B8, S_B2, S_C_, S_FK, S_FQ = 40, 41, 42, 43, 44, 45, 46, 47
    a(f"""    v_and_b32 v1, 63, v0                ; lane
    v_and_b32 v2, 15, v1                ; n
    v_lshrrev_b32 v3, 4, v1             ; g
    v_lshlrev_b32 v4, 4, v1             ; lane*16
    s_lshr_b32 s{S_H_}, s{B_INST}, 1
    s_and_b32 s{S_QT}, s{B_INST}, 1
    s_mov_b32 s{S_C_}, {hex(f32bits(SCALE_C))}
    v_lshlrev_b32 v5, 7, v3
    v_and_b32 v6, 7, v2
    v_lshlrev_b32 v6, 4, v6
    v_add_u32 v5, v5, v6
    v_and_b32 v6, 1, v3
    v_lshlrev_b32 v6, 7, v6
    v_lshlrev_b32 v7, 2, v2
    v_add_u32 v6, v6, v7
    ; o store voffset: (g>>1)*512 + (16qt+n)*16 + (g&1)*8
    v_lshrrev_b32 v7, 1, v3
    v_lshlrev_b32 v7, 9, v7
    v_lshlrev_b32 v8, 4, v2
    v_and_b32 v9, 1, v3
    v_lshlrev_b32 v9, 3, v9
    v_add3_u32 v7, v7, v8, v9
    s_lshl_b32 s{B_T0}, s{S_QT}, 8
    v_add_u32 v7, s{B_T0}, v7
    s_lshl_b32 s{B_T0}, s{S_QT}, 4
    v_lshlrev_b32 v8, 2, v3
    v_sub_u32 v8, v2, v8
    v_add_u32 v8, s{B_T0}, v8           ; signed
    v_mov_b32 v9, 0xff800000            ; -inf
    s_mov_b32 s{S_SEG}, s{B_SET}""")
    QF, KF, VF, VM = 16, 32, 80, 112
    ST = 128
    a(f"L_{name}_loop:")
    if flags:
        a(f"""    s_and_b32 s{B_T0}, s{S_SEG}, 3
    s_lshl_b32 s{B_T1}, s{B_T0}, 5
    s_add_u32 s{B_T1}, s{B_T1}, s{S_H_}
    s_lshl_b32 s{B_T1}, s{B_T1}, 2
    s_add_u32 s{S_FK}, s{B_T1}, {F_KV}
    s_lshl_b32 s{B_T1}, s{B_T0}, 4
    s_lshr_b32 s{B_T2}, s{S_H_}, 1
    s_add_u32 s{B_T1}, s{B_T1}, s{B_T2}
    s_lshl_b32 s{B_T1}, s{B_T1}, 2
    s_add_u32 s{S_FQ}, s{B_T1}, {F_Q}
    s_lshr_b32 s{B_T2}, s{S_SEG}, 2
    s_add_u32 s{B_T2}, s{B_T2}, 1""")
        wait_flag(a, name + "_wk", S_FK, None, ge_reg=B_T2)
        wait_flag(a, name + "_wq", S_FQ, None, ge_reg=B_T2)
        a(f"""    s_lshl_b32 s{B_T1}, s{S_H_}, 2
    s_add_u32 s{S_FK}, s{B_T1}, {F_CH}
    s_add_u32 s{B_T2}, s{S_SEG}, 1""")
        wait_flag(a, name + "_wc", S_FK, None, ge_reg=B_T2, sleep=8)
    a(f"""    s_lshl_b32 s{B_T0}, s{S_SEG}, 5
    s_add_u32 s{B_T0}, s{B_T0}, s{S_H_}
    s_lshl_b32 s{S_B8}, s{B_T0}, 13
    s_lshl_b32 s{S_B2}, s{B_T0}, 11""")
    a(f"""    s_lshl_b32 s{B_T1}, s{S_QT}, 12
    s_add_u32 s{B_T1}, s{B_T1}, s{S_B8}
    s_add_u32 s{B_T1}, s{B_T1}, {WS_QF}""")
    for ks in range(4):
        a(f"    buffer_load_dwordx4 {vr(QF + 4*ks, 4)}, v4, {ws}, s{B_T1} offen offset:{ks*1024} sc1")
    a(f"    s_add_u32 s{B_T1}, s{S_B8}, {WS_KF}\n    s_add_u32 s{B_T2}, s{B_T1}, 4096")
    for T in range(2):
        for ks in range(4):
            a(f"    buffer_load_dwordx4 {vr(KF + 16*T + 4*ks, 4)}, v4, {ws}, s{B_T1 if T == 0 else B_T2} offen offset:{ks*1024} sc1")
    a(f"    s_add_u32 s{B_T1}, s{S_B2}, {WS_KM}")
    for ks in range(4):
        a(f"    buffer_load_dwordx4 {vr(KF + 32 + 4*ks, 4)}, v5, {ws}, s{B_T1} offen offset:{ks*512} sc1")
    a(f"    s_add_u32 s{B_T1}, s{S_B8}, {WS_VF}\n    s_add_u32 s{B_T2}, s{B_T1}, 4096")
    for t in range(8):
        a(f"    buffer_load_dwordx4 {vr(VF + 4*t, 4)}, v4, {ws}, s{B_T1 if t < 4 else B_T2} offen offset:{(t & 3)*1024} sc1")
    a(f"    s_add_u32 s{B_T1}, s{S_B2}, {WS_VM}")
    for t in range(8):
        a(f"    buffer_load_dword v{VM + 2*t}, v6, {ws}, s{B_T1} offen offset:{t*256} sc1")
        a(f"    buffer_load_dword v{VM + 2*t + 1}, v6, {ws}, s{B_T1} offen offset:{t*256 + 64} sc1")
    a("    s_waitcnt vmcnt(24)")
    for T in range(3):
        for ks in range(4):
            c = "0" if ks == 0 else vr(ST + 4*T, 4)
            a(f"    v_mfma_f32_16x16x32_bf16 {vr(ST + 4*T, 4)}, {vr(KF + 16*T + 4*ks, 4)}, {vr(QF + 4*ks, 4)}, {c}")
    a("    s_nop 7")
    for T in range(2):
        for r in range(4):
            a(f"    v_cmp_le_i32 vcc, {16*T + r}, v8")
            a(f"    s_nop 1")
            a(f"    v_cndmask_b32 v{ST + 4*T + r}, v9, v{ST + 4*T + r}, vcc")
    a("    v_cmp_gt_u32 vcc, 2, v3\n    s_nop 1")
    for r in range(4):
        a(f"    v_cndmask_b32 v{ST + 8 + r}, v9, v{ST + 8 + r}, vcc")
    M_, T_ = 140, 141
    a(f"    v_max3_f32 v{M_}, v{ST}, v{ST+1}, v{ST+2}")
    a(f"    v_max3_f32 v{T_}, v{ST+3}, v{ST+4}, v{ST+5}")
    a(f"    v_max3_f32 v{M_}, v{M_}, v{ST+6}, v{ST+7}")
    a(f"    v_max3_f32 v{T_}, v{T_}, v{ST+8}, v{ST+9}")
    a(f"    v_max3_f32 v{M_}, v{M_}, v{ST+10}, v{ST+11}")
    a(f"    v_max_f32 v{M_}, v{M_}, v{T_}")
    def xred(op):
        a(f"    v_mov_b32 v{T_}, v{M_}\n    s_nop 1\n    v_permlane16_swap_b32 v{M_}, v{T_}\n    {op} v{M_}, v{M_}, v{T_}")
        a(f"    v_mov_b32 v{T_}, v{M_}\n    s_nop 1\n    v_permlane32_swap_b32 v{M_}, v{T_}\n    {op} v{M_}, v{M_}, v{T_}")
    xred("v_max_f32")
    a(f"    v_mul_f32 v{M_}, s{S_C_}, v{M_}")
    for i in range(12):
        a(f"    v_fma_f32 v{ST+i}, v{ST+i}, s{S_C_}, -v{M_}")
    for i in range(12):
        a(f"    v_exp_f32 v{ST+i}, v{ST+i}")
    a("    s_nop 0")
    PX, PM = 144, 148
    a(f"    v_cvt_pk_bf16_f32 v{PX}, v{ST}, v{ST+1}")
    a(f"    v_cvt_pk_bf16_f32 v{PX+1}, v{ST+4}, v{ST+5}")
    a(f"    v_cvt_pk_bf16_f32 v{PX+2}, v{ST+2}, v{ST+3}")
    a(f"    v_cvt_pk_bf16_f32 v{PX+3}, v{ST+6}, v{ST+7}")
    a(f"    v_cvt_pk_bf16_f32 v{PM}, v{ST+8}, v{ST+9}")
    a(f"    v_cvt_pk_bf16_f32 v{PM+1}, v{ST+10}, v{ST+11}")
    a(f"    v_mov_b32 v{M_}, 0")
    for rg in (PX, PX+1, PX+2, PX+3, PM, PM+1):
        a(f"    v_lshlrev_b32 v{T_}, 16, v{rg}\n    v_add_f32 v{M_}, v{M_}, v{T_}")
        a(f"    v_and_b32 v{T_}, 0xffff0000, v{rg}\n    v_add_f32 v{M_}, v{M_}, v{T_}")
    xred("v_add_f32")
    a(f"    v_rcp_f32 v{M_}, v{M_}")
    a("    s_waitcnt vmcnt(0)")
    O = 152
    for t in range(8):
        a(f"    v_mfma_f32_16x16x32_bf16 {vr(O + 4*t, 4)}, {vr(VF + 4*t, 4)}, {vr(PX, 4)}, 0")
    for t in range(8):
        a(f"    v_mfma_f32_16x16x16_bf16 {vr(O + 4*t, 4)}, {vr(VM + 2*t, 2)}, {vr(PM, 2)}, {vr(O + 4*t, 4)}")
    a("    s_nop 7")
    a(f"    s_add_u32 s{B_T1}, s{S_B8}, {WS_OF}\n    s_add_u32 s{B_T2}, s{B_T1}, 4096")
    for t in range(8):
        o = O + 4*t
        for r in range(4): a(f"    v_mul_f32 v{o+r}, v{o+r}, v{M_}")
        a(f"    v_cvt_pk_bf16_f32 v{o}, v{o}, v{o+1}\n    v_cvt_pk_bf16_f32 v{o+1}, v{o+2}, v{o+3}")
        a(f"    buffer_store_dwordx2 {vr(o, 2)}, v7, {ws}, s{B_T1 if t < 4 else B_T2} offen offset:{(t & 3)*1024} sc1")
    if flags:
        a(f"""    s_waitcnt vmcnt(0)
    s_lshl_b32 s{B_T1}, s{S_SEG}, 2
    s_add_u32 s{B_T1}, s{B_T1}, {F_O}
    s_mov_b64 exec, 1
    v_mov_b32 v120, 0
    v_mov_b32 v121, 1
    buffer_atomic_add v121, v120, {ws}, s{B_T1} offen sc1
    s_mov_b64 exec, -1""")
    a(f"""    s_add_u32 s{S_SEG}, s{S_SEG}, {nlanes}
    s_cmp_lt_u32 s{S_SEG}, 64
    s_cbranch_scc1 L_{name}_loop
    s_waitcnt vmcnt(0)""")

def oproj_role(a, name, nsets=4, flags=True):
    ws = f"s[{B_WS}:{B_WS+3}]"
    L = a.lds
    a(f"""    v_and_b32 v1, 63, v0
    v_and_b32 v2, 31, v1                ; c
    v_lshrrev_b32 v3, 5, v1             ; hi
    v_lshlrev_b32 v4, 4, v1             ; lane*16""")
    srd(a, B_W, 40, 0x400000)
    a(f"""    v_lshrrev_b32 v5, 2, v1
    v_lshlrev_b32 v5, 10, v5
    v_and_b32 v6, 3, v1
    v_lshlrev_b32 v6, 4, v6
    s_lshl_b32 s{B_T0}, s{B_INST}, 6
    s_lshl_b32 s{B_T1}, s{B_WV}, 20             ; w*1024 rows*1024B
    s_add_u32 s{B_T0}, s{B_T0}, s{B_T1}
    v_add3_u32 v5, v5, v6, s{B_T0}
    v_and_b32 v6, 15, v1
    v_lshrrev_b32 v7, 2, v6
    v_and_b32 v6, 3, v6
    v_lshlrev_b32 v8, 3, v3
    v_add_u32 v7, v7, v8
    v_lshlrev_b32 v7, 6, v7                     ; row*64
    v_bfe_u32 v8, v1, 4, 1
    v_lshlrev_b32 v8, 5, v8
    v_lshlrev_b32 v6, 3, v6
    v_add3_u32 v7, v7, v8, v6
    s_lshl_b32 s{B_T2}, s{B_WV}, 15
    v_add_u32 v7, s{B_T2}, v7""")
    def issue(ch):
        for i in range(16):
            a(f"""    s_add_u32 m0, s{B_T2}, {(ch & 1)*16384 + i*1024}
    s_mov_b32 s{B_T3}, {(ch*256 + i*16)*1024}
    buffer_load_dwordx4 v5, s[{B_W}:{B_W+3}], s{B_T3} offen lds""")
    issue(0); issue(1)
    for ch in range(4):
        a(f"    s_waitcnt vmcnt({16 if ch < 3 else 0})")
        for kq in range(16):
            kk = ch*16 + kq
            for hf in range(2):
                a(f"    ds_read_b64_tr_b16 {ar(kk*4 + 2*hf, 2)}, v7 offset:{(ch & 1)*16384 + (kq*16 + hf*4)*64}")
            if kq % 4 == 3: a("    s_waitcnt lgkmcnt(4)")
        a("    s_waitcnt lgkmcnt(0)")
        if ch + 2 < 4: issue(ch + 2)
    a("    s_barrier")
    srd(a, B_O, 128, 2048*4096)
    a(f"""    v_lshlrev_b32 v8, 14, v3
    v_lshlrev_b32 v9, 2, v2
    s_lshl_b32 s{B_T0}, s{B_INST}, 7
    s_lshl_b32 s{B_T1}, s{B_WV}, 15
    s_add_u32 s{B_T0}, s{B_T0}, s{B_T1}
    v_add3_u32 v8, v8, v9, s{B_T0}
    s_lshl_b32 s{B_T0}, s{B_WV}, 12
    v_add_u32 v9, s{B_T0}, v4
    s_lshl_b32 s{B_T0}, s{B_WV}, 10
    v_add_u32 v10, s{B_T0}, v4
    s_mov_b32 s{B_SEG}, s{B_SET}""")
    ACC = 16; AF = 32
    a(f"L_{name}_loop:")
    if flags:
        a(f"""    s_lshl_b32 s{B_T1}, s{B_SEG}, 2
    s_add_u32 s{B_T1}, s{B_T1}, {F_O}""")
        wait_flag(a, name + "_wo", B_T1, 64, sleep=8)
    a(f"""    s_lshl_b32 s{B_T0}, s{B_SEG}, 18
    s_lshl_b32 s{B_T1}, s{B_WV}, 16             ; 8 heads * 8192
    s_add_u32 s{B_T0}, s{B_T0}, s{B_T1}
    s_add_u32 s{B_T0}, s{B_T0}, {WS_OF}""")
    def ld(kk):
        slot = kk % 48
        if kk % 4 == 0: a(f"    s_add_u32 s{B_T1}, s{B_T0}, {kk*1024}")
        a(f"    buffer_load_dwordx4 {vr(AF + 4*slot, 4)}, v4, {ws}, s{B_T1} offen offset:{(kk % 4)*1024} sc1")
    for kk in range(48): ld(kk)
    for kk in range(64):
        out = min(47, 63 - kk) if kk >= 16 else 47
        issued = 48 + min(kk, 16)
        a(f"    s_waitcnt vmcnt({issued - kk - 1})")
        c = "0" if kk == 0 else vr(ACC, 16)
        a(f"    v_mfma_f32_32x32x16_bf16 {vr(ACC, 16)}, {vr(AF + 4*(kk % 48), 4)}, {ar(kk*4, 4)}, {c}")
        if kk < 16: ld(48 + kk)
    a("    s_nop 15")
    for i in range(4): a(f"    ds_write_b128 v9, {vr(ACC + 4*i, 4)} offset:{i*1024}")
    a("    s_waitcnt lgkmcnt(0)\n    s_barrier")
    for w2 in range(4): a(f"    ds_read_b128 {vr(ACC + 4*w2, 4)}, v10 offset:{w2*4096}")
    a("    s_waitcnt lgkmcnt(0)\n    s_barrier")
    a(f"    s_lshl_b32 s{B_T0}, s{B_SEG}, 17")
    for r in range(4):
        a(f"""    v_add_f32 v{ACC+r}, v{ACC+r}, v{ACC+4+r}
    v_add_f32 v{ACC+8+r}, v{ACC+8+r}, v{ACC+12+r}
    v_add_f32 v{ACC+r}, v{ACC+r}, v{ACC+8+r}
    s_add_u32 s{B_T1}, s{B_T0}, {r*4096}
    buffer_store_dword v{ACC+r}, v8, s[{B_O}:{B_O+3}], s{B_T1} offen""")
    a(f"""    s_add_u32 s{B_SEG}, s{B_SEG}, {nsets}
    s_cmp_lt_u32 s{B_SEG}, 64
    s_cbranch_scc1 L_{name}_loop
    s_waitcnt vmcnt(0)""")
```

```python
from asmlib import *

WS_P1   = 0x0000000
WS_M    = 0x0080000
WS_FLAG = 0x0090000
WS_KF   = 0x1000000
WS_VF   = 0x2000000
WS_QF   = 0x3000000
WS_OF   = 0x4000000
WS_KM   = 0x5000000
WS_VM   = 0x5400000
WS_SIZE = 0x10000000
F_KV   = WS_FLAG + 0x000
F_CH   = WS_FLAG + 0x300

L_M   = 0
L_KX  = 8192
L_Q   = 16384
L_K   = 18560
L_O   = 20736
L_ZERO= 22912
L_SEL = 23936
L_LB  = 24960
L_MISC= 25984
L_W   = 32768
L_WO = L_W

S_WS = 8
S_W  = 12
S_STEP, S_H, S_WV = 16, 17, 18
S_P1W, S_P1W2, S_P1X = 20, 21, 22
S_P1W3, S_P1W4 = 42, 43
S_MWN = 19
S_MW, S_MW2, S_MX = 23, 24, 25
S_KN, S_VN = 26, 27
S_T0, S_T1, S_T2 = 28, 29, 44
S_HALF = 30
S_MEX = 32
S_C   = 36
S_RETRY = 37
S_KMP, S_VMP = 38, 39
S_KM0 = 45
S_PFW = 35
S_FLN = 40
S_FLT = 41
S_FCH = 7
S_PF = 34
S_TS = 46

V_IDX, V_L16, V_QW, V_QR, V_KR, V_AR, V_WO, V_WO2, V_P1S, V_P1R, V_MS, V_MP, V_VX, V_KM, V_NEG1 = range(1, 16)
V_TR = 0
V_VBX = 16
V_VBY = 24
R_AB  = 32
NAB   = 5
R_ACC = 52
R_QF  = 64
R_KF  = 80
R_KX  = 96
V_WV  = 128

def wk(t, ks): return ar(t*64 + 8*ks, 8)
def wv(t, ks): return ar(128 + t*64 + 8*ks, 8)
def wo(m, kp): return vr(128 + (m*4 + kp)*8, 8)

def chain_setup(a, name):
    a(f"""
    v_and_b32 v32, 63, v0               ; lane
    v_and_b32 v33, 15, v32              ; n = lane&15
    v_lshrrev_b32 v40, 4, v32           ; g
    v_lshlrev_b32 v{V_L16}, 4, v32      ; lane*16
    v_and_b32 v41, 1, v32
    v_mul_u32_u24 v41, 0xAAAA, v41
    v_add_u32 v{V_IDX}, 0x4444, v41
    ; QW = 2g*272 + w*64 + n*4
    v_mul_u32_u24 v41, 544, v40
    v_lshlrev_b32 v42, 2, v33
    s_lshl_b32 s{S_T0}, s{S_WV}, 6
    v_add3_u32 v{V_QW}, v41, v42, s{S_T0}
    ; QR = (n>>1)*272 + g*16
    v_lshrrev_b32 v41, 1, v33
    v_mul_u32_u24 v43, 272, v41
    v_lshlrev_b32 v42, 4, v40
    v_add_u32 v{V_QR}, v43, v42
    ; AR = (n>>1)*64 + g*16
    v_lshlrev_b32 v43, 6, v41
    v_add_u32 v{V_AR}, v43, v42
    ; KR = (n&7)*272 + g*16
    v_and_b32 v41, 7, v33
    v_mul_u32_u24 v41, 272, v41
    v_add_u32 v{V_KR}, v41, v42
    s_lshl_b32 s{S_T0}, s{S_WV}, 12
    s_add_u32 s{S_T0}, s{S_T0}, {L_W}
    v_add_u32 v{V_WO}, s{S_T0}, v{V_L16}
    v_add_u32 v{V_WO2}, 0x10000, v{V_WO}
    v_lshlrev_b32 v41, 14, v40
    v_lshlrev_b32 v42, 2, v33
    s_lshl_b32 s{S_T0}, s{S_WV}, 16
    s_lshl_b32 s{S_T1}, s{S_H}, 6
    s_add_u32 s{S_T0}, s{S_T0}, s{S_T1}
    v_add3_u32 v{V_P1S}, v41, v42, s{S_T0}
    s_lshl_b32 s{S_T0}, s{S_H}, 13
    s_lshl_b32 s{S_T1}, s{S_WV}, 11
    s_add_u32 s{S_T0}, s{S_T0}, s{S_T1}
    v_add_u32 v{V_P1R}, s{S_T0}, v{V_L16}
    s_lshr_b32 s{S_T0}, s{S_H}, 3
    s_lshl_b32 s{S_T0}, s{S_T0}, 2
    s_add_u32 s{S_T0}, s{S_T0}, s{S_WV}
    s_lshl_b32 s{S_T0}, s{S_T0}, 9
    s_and_b32 s{S_T1}, s{S_H}, 7
    s_lshl_b32 s{S_T1}, s{S_T1}, 5
    s_add_u32 s{S_T0}, s{S_T0}, s{S_T1}
    v_bfe_u32 v41, v32, 1, 1
    v_lshlrev_b32 v41, 8, v41
    v_and_b32 v42, 1, v32
    v_lshlrev_b32 v42, 4, v42
    v_lshlrev_b32 v43, 2, v40
    v_add3_u32 v41, v41, v42, v43
    v_add_u32 v{V_MS}, s{S_T0}, v41
    v_lshrrev_b32 v41, 5, v32
    v_lshlrev_b32 v41, 11, v41
    v_and_b32 v42, 31, v32
    v_lshlrev_b32 v42, 4, v42
    s_lshl_b32 s{S_T0}, s{S_WV}, 9
    v_add3_u32 v{V_MP}, v41, v42, s{S_T0}
    v_lshrrev_b32 v41, 1, v40
    v_lshlrev_b32 v41, 8, v41
    v_lshlrev_b32 v42, 4, v33
    v_and_b32 v43, 1, v40
    v_lshlrev_b32 v43, 3, v43
    v_add3_u32 v{V_VX}, v41, v42, v43
    v_lshrrev_b32 v41, 2, v33
    v_lshlrev_b32 v41, 7, v41
    v_lshlrev_b32 v42, 5, v40
    v_and_b32 v43, 3, v33
    v_lshlrev_b32 v43, 2, v43
    v_add3_u32 v{V_KM}, v41, v42, v43
    v_mov_b32 v{V_NEG1}, -1
    v_lshrrev_b32 v43, 2, v33           ; delta
    v_and_b32 v42, 3, v33               ; r
    v_mov_b32 v44, 0x3f80
    v_mov_b32 v45, 0x3f800000
    v_cmp_eq_u32 vcc, 1, v42
    s_nop 1
    v_cndmask_b32 v44, v44, v45, vcc
    v_cmp_gt_u32 vcc, 2, v42
    s_nop 1
    v_cndmask_b32 v44, 0, v44, vcc      ; r>=2 -> 0
""")
    for d in range(4):
        a(f"""    v_cmp_eq_u32 vcc, {d}, v43
    s_nop 1
    v_cndmask_b32 v{48+d}, 0, v44, vcc""")
    a(f"""    ds_write_b128 v{V_L16}, v[48:51] offset:{L_SEL}
    v_mov_b32 v52, 0x3f803f80
    v_mov_b32 v54, 0x3f803f80
    v_mov_b32 v41, 0x3f003f00
    v_cmp_gt_u32 vcc, 2, v40
    s_nop 1
    v_cndmask_b32 v53, 0, v41, vcc
    v_cndmask_b32 v55, 0, v41, vcc
    ds_write_b128 v{V_L16}, v[52:55] offset:{L_LB}
""")
    for i in range(16):
        a(f"    v_mov_b32 v{V_VBX+i}, 0")
    a(f"""    ds_write_b128 v{V_L16}, v[{V_VBX}:{V_VBX+3}] offset:{L_ZERO}
    s_mov_b32 s{S_HALF}, 0xaaaaaaaa
    s_mov_b32 s{S_HALF+1}, 0xaaaaaaaa
    s_mov_b32 s{S_MEX}, 0x000f000f
    s_mov_b32 s{S_MEX+1}, 0x000f000f
    s_mov_b32 s{S_C}, {hex(f32bits((128 ** -0.5) * 1.4426950408889634))}
    s_mov_b32 s{S_RETRY}, 0
    s_lshl_b32 s{S_T0}, s{S_WV}, 11
    s_add_u32 s{S_KM0}, s{S_T0}, {L_KX}
    s_and_b32 s{S_T0}, s{S_WV}, 1
    s_lshl_b32 s{S_T0}, s{S_T0}, 12
    s_lshr_b32 s{S_T1}, s{S_WV}, 1
    s_mul_i32 s{S_T1}, s{S_T1}, {WS_VF - WS_KF}
    s_add_u32 s{S_PFW}, s{S_T0}, s{S_T1}
    s_add_u32 s{S_PFW}, s{S_PFW}, {WS_KF}
""")

def chain_init_comm(a, name):
    ws = f"s[{S_WS}:{S_WS+3}]"
    a(f"""    v_mov_b32 v40, -1
    v_mov_b32 v41, -1
    v_mov_b32 v42, -1
    v_mov_b32 v43, -1
    s_mov_b32 s{S_T0}, {WS_P1}
    s_mov_b32 s{S_T1}, {WS_P1 + 0x40000}
    buffer_store_dwordx4 v[40:43], v{V_P1R}, {ws}, s{S_T0} offen
    buffer_store_dwordx4 v[40:43], v{V_P1R}, {ws}, s{S_T0} offen offset:1024
    buffer_store_dwordx4 v[40:43], v{V_P1R}, {ws}, s{S_T1} offen
    buffer_store_dwordx4 v[40:43], v{V_P1R}, {ws}, s{S_T1} offen offset:1024
    s_mov_b64 exec, s[{S_MEX}:{S_MEX+1}]
""")
    for sl in range(4):
        a(f"""    s_mov_b32 s{S_T0}, {WS_M + sl*8192}
    buffer_store_dword v40, v{V_MS}, {ws}, s{S_T0} offen""")
    a("    s_mov_b64 exec, -1")

def chain_load_weights(a, name):
    RING = L_W
    a(f"""
    v_and_b32 v32, 63, v0
    v_and_b32 v33, 15, v32
    v_lshrrev_b32 v40, 4, v32           ; g
    v_lshlrev_b32 v41, 13, v40          ; (lane>>4)*8192
    v_lshlrev_b32 v42, 4, v33
    s_lshl_b32 s{S_T0}, s{S_H}, 8
    s_lshl_b32 s{S_T1}, s{S_WV}, 17
    s_add_u32 s{S_T0}, s{S_T0}, s{S_T1}
    v_add3_u32 v46, v41, v42, s{S_T0}
    v_lshrrev_b32 v41, 1, v40
    v_lshlrev_b32 v41, 3, v41
    v_and_b32 v42, 1, v40
    v_lshlrev_b32 v42, 1, v42
    v_add_u32 v41, v41, v42
    v_lshrrev_b32 v42, 2, v33           ; r
    v_and_b32 v43, 1, v42
    v_lshlrev_b32 v43, 4, v43
    v_lshrrev_b32 v44, 1, v42
    v_lshlrev_b32 v44, 2, v44
    v_add3_u32 v41, v41, v43, v44       ; row
    v_lshlrev_b32 v41, 8, v41
    v_and_b32 v43, 3, v33
    v_lshlrev_b32 v43, 3, v43           ; c4*8
    s_lshl_b32 s{S_T0}, s{S_WV}, 6
    s_add_u32 s{S_T0}, s{S_T0}, {RING}
    v_add3_u32 v47, v41, v43, s{S_T0}
    v_add_u32 v48, 0x10000, v47
    v_lshrrev_b32 v41, 1, v40
    v_lshlrev_b32 v41, 2, v41
    v_and_b32 v44, 1, v40
    v_lshlrev_b32 v44, 1, v44
    v_add_u32 v41, v41, v44
    v_and_b32 v44, 1, v42
    v_lshlrev_b32 v44, 4, v44
    v_add_u32 v41, v41, v44
    v_lshlrev_b32 v41, 10, v41
    v_lshrrev_b32 v44, 1, v42
    v_lshlrev_b32 v44, 5, v44
    v_add3_u32 v41, v41, v44, v43
    s_lshl_b32 s{S_T0}, s{S_WV}, 8
    s_add_u32 s{S_T0}, s{S_T0}, {RING}
    v_add_u32 v49, s{S_T0}, v41
    v_add_u32 v50, 0x10000, v49
    s_lshl_b32 s{S_T2}, s{S_H}, 17
    s_lshl_b32 s{S_T1}, s{S_WV}, 12      ; w*4 rows*1024
    s_add_u32 s{S_T2}, s{S_T2}, s{S_T1}
""")
    ptr_off = {0: 24, 1: 32, 2: 40, 3: 16}
    chunks = [(m, ks) for m in range(4) for ks in range(8)]
    def issue(ci):
        m, ks = chunks[ci]
        slot = ci % 8
        if ks == 0:
            a(f"""    s_load_dwordx2 s[{S_W}:{S_W+1}], s[0:1], {ptr_off[m]}
    s_mov_b32 s{S_W+2}, 0x400000
    s_mov_b32 s{S_W+3}, 0x20000
    s_waitcnt lgkmcnt(0)""")
        for ii in range(4):
            a(f"""    s_lshl_b32 s{S_T0}, s{S_WV}, 12
    s_add_u32 m0, s{S_T0}, {RING + slot*16384 + ii*1024}""")
            if m == 2:
                a(f"""    s_add_u32 s{S_T1}, s{S_T2}, {ks*16384 + ii*1024}
    buffer_load_dwordx4 v{V_L16}, s[{S_W}:{S_W+3}], s{S_T1} offen lds""")
            else:
                a(f"""    s_mov_b32 s{S_T1}, {ks*524288 + ii*32768}
    buffer_load_dwordx4 v46, s[{S_W}:{S_W+3}], s{S_T1} offen lds""")
    steps = []
    for ci in range(32):
        m, ks = chunks[ci]
        if m == 2:
            if ks % 2 == 1: steps.append((ci, [ci-1, ci]))
        else: steps.append((ci, [ci]))
    issued = 0
    def issue_upto(limit):
        nonlocal issued
        while issued < min(limit, 32):
            issue(issued); issued += 1
    freed = set()
    issue_upto(8)
    for (ci, fr) in steps:
        m, ks = chunks[ci]
        a(f"    s_waitcnt vmcnt({(issued - (ci+1))*4})")
        a("    s_barrier")
        while issued < 32 and (issued - 8) in freed: issue(issued); issued += 1
        slot = ci % 8
        if m in (0, 1, 3):
            base = "v47" if slot < 4 else "v48"
            so = (slot % 4) * 16384
            for t in range(2):
                for p in range(4):
                    off = so + (32*(p >> 1) + (p & 1))*256 + 32*t
                    if m == 0: dst = ar(t*64 + 8*ks + 2*p, 2)
                    elif m == 1: dst = ar(128 + t*64 + 8*ks + 2*p, 2)
                    else: dst = vr(56 + t*8 + 2*p, 2)
                    a(f"    ds_read_b64_tr_b16 {dst}, {base} offset:{chk(off, 65535)}")
            a("    s_waitcnt lgkmcnt(0)")
            if m == 3:
                a("    s_barrier")
                wb = f"v{V_WO}" if ks < 4 else f"v{V_WO2}"
                for t in range(2):
                    for hf in range(2):
                        a(f"    ds_write_b128 {wb}, {vr(56 + t*8 + 4*hf, 4)} offset:{(ks%4)*16384 + t*2048 + hf*1024}")
                a("    s_waitcnt lgkmcnt(0)")
        else:
            kp = ks // 2
            s0 = slot - 1
            base = "v49" if s0 < 4 else "v50"
            so = (s0 % 4) * 16384
            for m_ in range(4):
                for p in range(4):
                    off = so + (8*(p >> 1) + (p & 1))*1024 + 64*m_
                    a(f"    ds_read_b64_tr_b16 {vr(128 + (m_*4+kp)*8 + 2*p, 2)}, {base} offset:{chk(off, 65535)}")
            a("    s_waitcnt lgkmcnt(0)")
        for c in fr: freed.add(c)
    a("    s_barrier")

def chain_load_mem0(a, name):
    a(f"""    s_load_dwordx2 s[{S_W}:{S_W+1}], s[0:1], 8
    s_mov_b32 s{S_W+2}, 8192
    s_mov_b32 s{S_W+3}, 0x20000
    s_waitcnt lgkmcnt(0)
    v_lshrrev_b32 v40, 7, v0            ; t>>7
    v_lshlrev_b32 v40, 6, v40           ; *32 cols *2B
    v_bfe_u32 v41, v0, 6, 1
    v_lshlrev_b32 v41, 4, v41           ; jhi*8*2B
    v_bfe_u32 v42, v0, 3, 3
    v_lshlrev_b32 v42, 10, v42          ; token*1024
    v_and_b32 v43, 7, v0
    v_lshlrev_b32 v43, 1, v43
    v_add3_u32 v40, v40, v41, v42
    v_add_u32 v40, v40, v43
""")
    for i in range(8):
        a(f"    buffer_load_ushort v{56+2*i}, v40, s[{S_W}:{S_W+3}], 0 offen offset:{128*i}")
        a(f"    buffer_load_ushort v{57+2*i}, v40, s[{S_W}:{S_W+3}], 0 offen offset:{128*i+32}")
    a("    s_waitcnt vmcnt(0)")
    a("    v_lshlrev_b32 v41, 2, v0")
    for i in range(8):
        a(f"    v_lshl_or_b32 v{56+2*i}, v{57+2*i}, 16, v{56+2*i}")
        a(f"    ds_write_b32 v41, v{56+2*i} offset:{L_M + 1024*i}")
    a("    s_waitcnt lgkmcnt(0)")

def delay(a, cyc):
    n = cyc // 4
    while n > 0:
        k = min(n, 16)
        a(f"    s_nop {k-1}")
        n -= k

def init_scalars(a):
    a(f"""    s_mov_b32 s{S_P1W}, 0
    s_mov_b32 s{S_P1W2}, 4096
    s_mov_b32 s{S_P1W3}, 8192
    s_mov_b32 s{S_P1W4}, 12288
    s_mov_b32 s{S_P1X}, 0x40000
    s_mov_b32 s{S_MW}, {WS_M + 8192}
    s_mov_b32 s{S_MW2}, {WS_M + 8192 + 4096}
    s_mov_b32 s{S_MX}, {WS_M + 3*8192}
    s_lshl_b32 s{S_T1}, s{S_H}, 11
    s_lshl_b32 s{S_T2}, s{S_WV}, 9
    s_add_u32 s{S_T1}, s{S_T1}, s{S_T2}
    s_add_u32 s{S_KMP}, s{S_T1}, {WS_KM}
    s_add_u32 s{S_VMP}, s{S_T1}, {WS_VM}
    s_add_u32 s{S_T0}, s{S_H}, 32
    s_lshl_b32 s{S_T0}, s{S_T0}, 13
    s_lshl_b32 s{S_T2}, s{S_WV}, 11
    s_add_u32 s{S_T0}, s{S_T0}, s{S_T2}
    s_add_u32 s{S_KN}, s{S_T0}, {WS_KF}
    s_add_u32 s{S_VN}, s{S_T0}, {WS_VF}
    s_add_u32 s{S_T0}, s{S_H}, 64
    s_lshl_b32 s{S_T0}, s{S_T0}, 13
    s_add_u32 s{S_PF}, s{S_T0}, s{S_PFW}
    s_lshl_b32 s{S_T0}, s{S_H}, 2
    s_add_u32 s{S_FCH}, s{S_T0}, {F_CH}""")

def chain_loop(a, name, opt):
    ws = f"s[{S_WS}:{S_WS+3}]"
    R_A = 32
    ACC = 64
    QX, QY, KX_, KY, VX, VY = [ACC + 4*i for i in range(6)]
    WB = [88, 96, 104, 112, 120]
    NWB = len(WB)
    A = lambda ks: vr(R_A + 4*ks, 4)
    stamp = opt.get('stamp')
    pts = opt.get('pts', [])
    def ts(nm):
        if not stamp: return
        if nm == 0: a(f"    s_memtime s[{S_TS}:{S_TS+1}]")
        elif nm in pts:
            i = pts.index(nm) + 1
            a(f"    s_memtime s[{S_TS+2*i}:{S_TS+2*i+1}]")
    L = a.lds
    def z2(reg): a(f"    v_mov_b64 {vr(reg,2)}, 0")
    def rt(i):
        if opt.get('rt'): a(f"    s_memrealtime s[{S_TS+2*i}:{S_TS+2*i+1}]")
    def wq_read(i, hf):
        ks, t = i // 2, i % 2
        base = f"v{V_WO}" if ks < 4 else f"v{V_WO2}"
        a.ds(f"ds_read_b128 {vr(WB[i % NWB] + 4*hf, 4)}, {base} offset:{(ks%4)*16384 + t*2048 + hf*1024}", ('W', i, hf))
    a(f"    s_mov_b32 s{S_STEP}, 0")
    init_scalars(a)
    for i in range(12): z2(ACC + 2*i)
    L.reset()
    for i in range(NWB):
        wq_read(i, 0); wq_read(i, 1)
    a(f"L_step_{name}:")
    a("    s_waitcnt lgkmcnt(0)")
    a("    s_barrier")
    L.reset()
    for i in range(NWB):
        L.tags[('W', i, 0)] = 0; L.tags[('W', i, 1)] = 0
    ts(0)
    if opt.get('rt'):
        a(f"""    s_cmp_eq_u32 s{S_STEP}, {opt['rt']+1}
    s_cbranch_scc0 L_nort_{name}
    v_mov_b32 v32, s{S_TS}
    v_mov_b32 v33, s{S_TS+2}
    v_mov_b32 v34, s{S_TS+4}
    v_mov_b32 v35, s{S_TS+6}
    v_mov_b32 v36, s{S_TS+8}
    v_mov_b32 v37, s{S_TS+10}
    v_mov_b32 v38, 0
    v_mov_b32 v39, 0
    s_lshl_b32 s{S_T0}, s{S_H}, 2
    s_add_u32 s{S_T0}, s{S_T0}, s{S_WV}
    s_lshl_b32 s{S_T0}, s{S_T0}, 5
    s_add_u32 s{S_T0}, s{S_T0}, {WS_FLAG + 0x4000}
    v_mov_b32 v40, 0
    s_mov_b64 exec, 1
    buffer_store_dwordx4 v[32:35], v40, {ws}, s{S_T0} offen
    buffer_store_dwordx4 v[36:39], v40, {ws}, s{S_T0} offen offset:16
    s_mov_b64 exec, -1
    s_waitcnt vmcnt(0)
L_nort_{name}:""")
    rt(0)
    for ks in range(4): a.ds(f"ds_read_b128 {A(ks)}, v{V_L16} offset:{L_M + ks*1024}", ('A', ks))
    flags = opt.get('flags')
    if flags:
        a(f"""    v_readfirstlane_b32 s{S_T0}, v0
    s_cmp_ge_u32 s{S_T0}, s{S_FLT}
    s_cbranch_scc1 L_kvok_{name}
L_kvw_{name}:
    buffer_load_dword v0, off, {ws}, s{S_FLN} sc1
    s_waitcnt vmcnt(0)
    v_readfirstlane_b32 s{S_T0}, v0
    s_cmp_ge_u32 s{S_T0}, s{S_FLT}
    s_cbranch_scc1 L_kvok_{name}
    s_sleep 2
    s_add_u32 s{S_RETRY}, s{S_RETRY}, 1
    s_cmp_lt_u32 s{S_RETRY}, 1000000
    s_cbranch_scc1 L_kvw_{name}
    s_endpgm
L_kvok_{name}:""")
    wqueue = [(i, hf) for i in range(NWB, 16) for hf in range(2)]
    def nextw():
        if wqueue:
            i, hf = wqueue.pop(0); wq_read(i, hf)
    def st_reset1(): a.vmem(f"buffer_store_dword v{V_NEG1}, v{V_P1R}, {ws}, s{S_P1X} offen")
    def st_reset2(): a.vmem(f"buffer_store_dword v{V_NEG1}, v{V_P1R}, {ws}, s{S_P1X} offen offset:1024")
    def st_reset3():
        a(f"    s_mov_b64 exec, s[{S_MEX}:{S_MEX+1}]")
        a.vmem(f"buffer_store_dword v{V_NEG1}, v{V_MS}, {ws}, s{S_MX} offen")
        a(f"    s_mov_b64 exec, -1")
    def pf():
        a(f"    v_lshlrev_b32 v{V_TR}, 2, v{V_L16}")
        a.vmem(f"buffer_load_dword v{V_TR}, v{V_TR}, {ws}, s{S_PF} offen")
        a(f"    s_add_u32 s{S_T0}, s{S_PF}, {32*8192}")
        a(f"    s_cmp_lt_u32 s{S_STEP}, 61")
        a(f"    s_cselect_b32 s{S_PF}, s{S_T0}, s{S_PF}")
        if flags:
            a(f"""    s_add_u32 s{S_T0}, s{S_STEP}, 3
    s_min_u32 s{S_T0}, s{S_T0}, 63
    s_lshr_b32 s{S_FLT}, s{S_T0}, 2
    s_add_u32 s{S_FLT}, s{S_FLT}, 1
    s_and_b32 s{S_T0}, s{S_T0}, 3
    s_lshl_b32 s{S_T0}, s{S_T0}, 5
    s_add_u32 s{S_T0}, s{S_T0}, s{S_H}
    s_lshl_b32 s{S_T0}, s{S_T0}, 2
    s_add_u32 s{S_FLN}, s{S_T0}, {F_KV}""")
            a.vmem(f"buffer_load_dword v0, off, {ws}, s{S_FLN} sc1")
    def upd_ring():
        pass
    def pubch():
        if not flags: return
        a(f"""    s_cmp_lg_u32 s{S_WV}, 0
    s_cbranch_scc1 L_nopub_{name}
    v_mov_b32 v0, s{S_STEP}
    s_mov_b64 exec, 1
    buffer_store_dword v0, off, {ws}, s{S_FCH} sc1
    s_mov_b64 exec, -1
L_nopub_{name}:""")
    extra = {1: lambda: (pubch(), pf()), 5: st_reset1, 6: st_reset2, 7: st_reset3}
    for ks in range(8):
        L.need(('A', ks), ('W', 2*ks, 1))
        a(f"    v_smfmac_f32_16x16x64_bf16 {vr(QX,4)}, {A(ks)}, {vr(WB[(2*ks) % NWB],8)}, v{V_IDX}")
        nextw()
        L.need(('W', 2*ks+1, 1))
        a(f"    v_smfmac_f32_16x16x64_bf16 {vr(QY,4)}, {A(ks)}, {vr(WB[(2*ks+1) % NWB],8)}, v{V_IDX}")
        nextw()
        a(f"    v_smfmac_f32_16x16x64_bf16 {vr(KX_,4)}, {A(ks)}, {wk(0,ks)}, v{V_IDX}")
        nextw()
        a(f"    v_smfmac_f32_16x16x64_bf16 {vr(KY,4)}, {A(ks)}, {wk(1,ks)}, v{V_IDX}")
        if ks == 0:
            a("    s_waitcnt vmcnt(0)")
            for k2 in range(4, 8): a.ds(f"ds_read_b128 {A(k2)}, v{V_L16} offset:{L_M + k2*1024}", ('A', k2))
        nextw()
        if ks in extra: extra[ks]()
    ts('QK')
    KXF = 96
    QF = 64
    KF = R_A
    vs = []
    for ks in range(8):
        vs.append(f"    v_smfmac_f32_16x16x64_bf16 {vr(VX,4)}, {A(ks)}, {wv(0,ks)}, v{V_IDX}")
        vs.append(f"    v_smfmac_f32_16x16x64_bf16 {vr(VY,4)}, {A(ks)}, {wv(1,ks)}, v{V_IDX}")
    def kxr(i): a.ds(f"ds_read_b128 {vr(KXF + 4*i, 4)}, v{V_L16} offset:{L_KX + i*1024}", ('KX', i))
    for j in range(4):
        a(vs[j]); kxr(j)
    a(f"    v_add_f32 v{QX}, v{QX}, v{QX+1}")
    a(f"    v_add_f32 v{QX+2}, v{QX+2}, v{QX+3}")
    a(f"    v_add_f32 v{QY}, v{QY}, v{QY+1}")
    a(f"    v_add_f32 v{QY+2}, v{QY+2}, v{QY+3}")
    kxr(4)
    a(f"    v_cvt_pk_bf16_f32 v{QX}, v{QX}, v{QY}")
    a(f"    v_cvt_pk_bf16_f32 v{QX+2}, v{QX+2}, v{QY+2}")
    a(f"    v_add_f32 v{KX_}, v{KX_}, v{KX_+1}")
    a(f"    v_add_f32 v{KX_+2}, v{KX_+2}, v{KX_+3}")
    a.ds(f"ds_write_b32 v{V_QW}, v{QX} offset:{L_Q}")
    a.ds(f"ds_write_b32 v{V_QW}, v{QX+2} offset:{L_Q+272}")
    a(f"    v_add_f32 v{KY}, v{KY}, v{KY+1}")
    a(f"    v_add_f32 v{KY+2}, v{KY+2}, v{KY+3}")
    kxr(5)
    a(f"    v_cvt_pk_bf16_f32 v{KX_}, v{KX_}, v{KY}")
    a(f"    v_cvt_pk_bf16_f32 v{KX_+2}, v{KX_+2}, v{KY+2}")
    a.ds(f"ds_write_b32 v{V_QW}, v{KX_} offset:{L_K}")
    a.ds(f"ds_write_b32 v{V_QW}, v{KX_+2} offset:{L_K+272}", 'kw')
    a(vs[4]); kxr(6)
    a(vs[5]); kxr(7)
    pubf = opt.get('pubflag', 'sc1')
    nopub = opt.get('nopub')
    a(vs[6])
    if not nopub: a.vmem(f"buffer_store_dword v{KX_}, v{V_KM}, {ws}, s{S_KMP} offen {pubf}")
    a(vs[7])
    if not nopub: a.vmem(f"buffer_store_dword v{KX_+2}, v{V_KM}, {ws}, s{S_KMP} offen offset:16 {pubf}")
    ts('preB2w')
    L.need('kw', ('KX', 7))
    ts('preB2')
    a("    s_barrier")
    ts('B2')
    a(f"    s_mov_b32 m0, s{S_KM0}")
    for ks in range(4):
        a.ds(f"ds_read_b128 {vr(QF + 4*ks, 4)}, v{V_QR} offset:{L_Q + ks*64}", ('QF', ks))
        a(vs[8 + ks])
        if ks == 0:
            a(f"    s_xor_b32 s{S_P1X}, s{S_P1X}, 0x40000\n    s_add_u32 s{S_MX}, s{S_MX}, 8192\n    s_and_b32 s{S_MX}, s{S_MX}, {hex(WS_M | 0x7fff)}")
        if ks == 2:
            a(f"    s_add_u32 s{S_KMP}, s{S_KMP}, 65536")
        if ks == 1: a.vmem(f"buffer_load_dwordx4 v{V_L16}, {ws}, s{S_KN} offen sc1 lds")
    for ks in range(4):
        a.ds(f"ds_read_b128 {vr(KF + 4*ks, 4)}, v{V_KR} offset:{L_K + ks*64}", ('KF', ks))
        a(vs[12 + ks])
        if ks == 1: a.vmem(f"buffer_load_dwordx4 v{V_L16}, {ws}, s{S_KN} offen offset:1024 sc1 lds")
        if ks == 2: a(f"    s_add_u32 s{S_KN}, s{S_KN}, {32*8192}")
    ts('V')
    ST0, ST1, ST2 = R_A + 16, R_A + 20, R_A + 24
    LBR, OX, OY, LL = 88, 92, 96, 100
    for ks in range(4):
        L.need(('QF', ks), ('KX', 4 + ks))
        c0 = "0" if ks == 0 else vr(ST0,4)
        c1 = "0" if ks == 0 else vr(ST1,4)
        a(f"    v_mfma_f32_16x16x32_bf16 {vr(ST0,4)}, {vr(KXF + 4*ks,4)}, {vr(QF+4*ks,4)}, {c0}")
        if ks == 0: a.ds(f"ds_read_b128 {vr(LBR,4)}, v{V_L16} offset:{L_LB}", 'LB')
        if ks == 1: z2(OX)
        if ks == 2: z2(OX+2)
        if ks == 3: a(f"    v_add_f32 v{VX}, v{VX}, v{VX+1}\n    v_add_f32 v{VX+2}, v{VX+2}, v{VX+3}")
        a(f"    v_mfma_f32_16x16x32_bf16 {vr(ST1,4)}, {vr(KXF + 16 + 4*ks,4)}, {vr(QF+4*ks,4)}, {c1}")
        if ks == 1: z2(OY)
        if ks == 2: z2(OY+2)
        if ks == 3: a(f"    v_add_f32 v{VY}, v{VY}, v{VY+1}\n    v_add_f32 v{VY+2}, v{VY+2}, v{VY+3}")
    ts('Sx')
    for ks in range(4):
        L.need(('KF', ks))
        c2 = "0" if ks == 0 else vr(ST2,4)
        a(f"    v_mfma_f32_16x16x32_bf16 {vr(ST2,4)}, {vr(KF + 4*ks,4)}, {vr(QF+4*ks,4)}, {c2}")
        if ks == 0:
            a(f"    v_cvt_pk_bf16_f32 v{V_VBX+2}, v{VX}, v{VX+2}\n    v_cvt_pk_bf16_f32 v{V_VBY+2}, v{VY}, v{VY+2}")
        if ks == 1:
            a(f"    v_lshrrev_b32 v{VX}, 2, v{V_L16}")
        if ks == 2 and not nopub:
            a.vmem(f"buffer_store_dword v{V_VBX+2}, v{VX}, {ws}, s{S_VMP} offen {pubf}")
        if ks == 3:
            if not nopub: a.vmem(f"buffer_store_dword v{V_VBY+2}, v{VX}, {ws}, s{S_VMP} offen offset:256 {pubf}")
            else: a("    s_nop 0")
    a(f"""    s_cmp_eq_u32 s{S_STEP}, {opt.get('nsteps',64)-1}
    s_cbranch_scc1 L_done_{name}""")
    ts('S')
    X = 64
    WACC = 104
    for r in range(4):
        a(f"    v_cndmask_b32 v{X+r}, v{ST0+r}, v{ST1+r}, s[{S_HALF}:{S_HALF+1}]")
    M_ = X + 4; T_ = X + 5
    a(f"    v_max3_f32 v{M_}, v{X}, v{X+1}, v{X+2}")
    a(f"    v_max3_f32 v{T_}, v{X+3}, v{ST2}, v{ST2+1}")
    a(f"    v_max3_f32 v{M_}, v{M_}, v{ST2+2}, v{ST2+3}")
    a(f"    v_max_f32 v{M_}, v{M_}, v{T_}")
    a("    s_nop 1")
    a(f"    v_max_f32_dpp v{M_}, v{M_}, v{M_} quad_perm:[1,0,3,2] row_mask:0xf bank_mask:0xf")
    a(f"    v_mov_b32 v{T_}, v{M_}")
    a("    s_nop 1")
    a(f"    v_permlane16_swap_b32 v{M_}, v{T_}")
    a(f"    v_max_f32 v{M_}, v{M_}, v{T_}")
    a(f"    v_mov_b32 v{T_}, v{M_}")
    a("    s_nop 1")
    a(f"    v_permlane32_swap_b32 v{M_}, v{T_}")
    a(f"    v_max_f32 v{M_}, v{M_}, v{T_}")
    a(f"    v_mul_f32 v{M_}, s{S_C}, v{M_}")
    E = X + 6
    srcs = [X, X+1, ST2, ST2+1, X+2, X+3, ST2+2, ST2+3]
    for i, s_ in enumerate(srcs):
        a(f"    v_fma_f32 v{E+i}, v{s_}, s{S_C}, -v{M_}")
    for i in range(8):
        a(f"    v_exp_f32 v{E+i}, v{E+i}")
    P = ST0
    a(f"    v_cvt_pk_bf16_f32 v{P}, v{E}, v{E+1}")
    a(f"    v_cvt_pk_bf16_f32 v{P+1}, v{E+2}, v{E+3}")
    a(f"    v_cvt_pk_bf16_f32 v{P+2}, v{E+4}, v{E+5}")
    a(f"    v_cvt_pk_bf16_f32 v{P+3}, v{E+6}, v{E+7}")
    ts('smax')
    L.need('LB')
    a("    s_nop 1")
    a(f"    v_mfma_f32_16x16x32_bf16 {vr(LL,4)}, {vr(P,4)}, {vr(LBR,4)}, 0")
    a(f"    v_smfmac_f32_16x16x64_bf16 {vr(OX,4)}, {vr(P,4)}, {vr(V_VBX,8)}, v{V_IDX}")
    a(f"    v_smfmac_f32_16x16x64_bf16 {vr(OY,4)}, {vr(P,4)}, {vr(V_VBY,8)}, v{V_IDX}")
    ts('PV')
    a.vmem(f"buffer_load_dwordx2 {vr(V_VBX,2)}, v{V_VX}, {ws}, s{S_VN} offen sc1")
    for i in range(5): z2(WACC + 2*i)
    a(f"    v_add_f32 v{LL}, v{LL}, v{LL+1}")
    a(f"    v_add_f32 v{LL+2}, v{LL+2}, v{LL+3}")
    a(f"    v_rcp_f32 v{LL}, v{LL}")
    a(f"    v_rcp_f32 v{LL+2}, v{LL+2}")
    a(f"    v_add_f32 v{OX}, v{OX}, v{OX+1}")
    a(f"    v_add_f32 v{OX+2}, v{OX+2}, v{OX+3}")
    a(f"    v_add_f32 v{OY}, v{OY}, v{OY+1}")
    a(f"    v_add_f32 v{OY+2}, v{OY+2}, v{OY+3}")
    a.vmem(f"buffer_load_dwordx2 {vr(V_VBX+4,2)}, v{V_VX}, {ws}, s{S_VN} offen offset:512 sc1")
    a(f"    v_mul_f32 v{OX}, v{OX}, v{LL}")
    a(f"    v_mul_f32 v{OY}, v{OY}, v{LL}")
    a(f"    v_mul_f32 v{OX+2}, v{OX+2}, v{LL+2}")
    a(f"    v_mul_f32 v{OY+2}, v{OY+2}, v{LL+2}")
    a(f"    v_cvt_pk_bf16_f32 v{OX}, v{OX}, v{OY}")
    a(f"    v_cvt_pk_bf16_f32 v{OX+2}, v{OX+2}, v{OY+2}")
    a.ds(f"ds_write_b32 v{V_QW}, v{OX} offset:{L_O}")
    a.ds(f"ds_write_b32 v{V_QW}, v{OX+2} offset:{L_O+272}", 'ow')
    for i in range(5, 8): z2(WACC + 2*i)
    a.vmem(f"buffer_load_dwordx2 {vr(V_VBY,2)}, v{V_VX}, {ws}, s{S_VN} offen offset:1024 sc1")
    ts('preB3w')
    L.need('ow')
    ts('preB3')
    a("    s_barrier")
    ts('B3')
    rt(5)
    OA = 64
    for kp in range(4):
        a.ds(f"ds_read_b128 {vr(OA+4*kp,4)}, v{V_QR} offset:{L_O + kp*64}", ('O', kp))
    SELR = R_A
    a.ds(f"ds_read_b128 {vr(SELR,4)}, v{V_L16} offset:{L_SEL}", 'SEL')
    a.vmem(f"buffer_load_dwordx2 {vr(V_VBY+4,2)}, v{V_VX}, {ws}, s{S_VN} offen offset:1536 sc1")
    ts('B3r')
    vxl = []
    for t, vb in enumerate((V_VBX, V_VBY)):
        for j, (rg, off) in enumerate(((0, 0), (1, 4), (4, 512), (5, 516))):
            vxl.append(f"buffer_load_dword v{vb+rg}, v{V_VX}, {ws}, s{S_VN} offen offset:{t*1024 + off} sc1")
    for m_ in range(4):
        for kp in range(4):
            L.need(('O', kp))
            a(f"    v_smfmac_f32_16x16x64_bf16 {vr(WACC+4*m_,4)}, {vr(OA+4*kp,4)}, {wo(m_,kp)}, v{V_IDX}")
            if m_ == 0 and kp == 1:
                a(f"    s_add_u32 s{S_VMP}, s{S_VMP}, 65536\n    s_add_u32 s{S_VN}, s{S_VN}, {32*8192}\n    s_add_u32 s{S_STEP}, s{S_STEP}, 1")

        if m_ >= 1:
            a("    s_nop 3" if m_ == 1 else "    s_nop 0")
            wo_post(a, WACC, m_ - 1, ws)
    a("    s_nop 3")
    wo_post(a, WACC, 3, ws)
    ts('Wo')
    rt(1)
    if opt.get('ackdiag'):
        a("    s_waitcnt vmcnt(0)")
        ts('ack')
    d1, stag = opt.get('d1', 224), opt.get('stag', 64)
    gap1, gap2 = opt.get('gap1', 120), opt.get('gap2', 120)
    SELR = R_A; RD = R_A + 4
    G1A, G1B = R_A + 8, R_A + 16
    def cons1(G):
        ts('p1ok')
        a(f"    v_mfma_f32_16x16x32_bf16 {vr(RD,4)}, {vr(SELR,4)}, {vr(G,4)}, 0")
        a(f"    v_mfma_f32_16x16x32_bf16 {vr(RD,4)}, {vr(SELR,4)}, {vr(G+4,4)}, {vr(RD,4)}")
    L.need('SEL')
    wave_delay(a, name + "_h1", d1, stag)
    poll2(a, name + "_p1", G1A, G1B, R_A + 24, V_P1R, S_P1W, None, 1024, ws, lambda: delay(a, gap1), lambda: None, cons1, (91 if opt.get('cnt') else None), lambda: ts('shot1'))
    rt(2)
    a("    s_nop 7")
    a(f"    v_add_f32_dpp v{RD}, v{RD}, v{RD} row_ror:8 row_mask:0xf bank_mask:0xf")
    a(f"    v_add_f32_dpp v{RD+1}, v{RD+1}, v{RD+1} row_ror:8 row_mask:0xf bank_mask:0xf")
    a("    s_nop 0")
    a(f"    v_add_f32_dpp v{RD}, v{RD}, v{RD} row_ror:4 row_mask:0xf bank_mask:0xf")
    a(f"    v_add_f32_dpp v{RD+1}, v{RD+1}, v{RD+1} row_ror:4 row_mask:0xf bank_mask:0xf")
    a(f"    v_cvt_pk_bf16_f32 v{RD}, v{RD}, v{RD+1}")
    a(f"    s_mov_b64 exec, s[{S_MEX}:{S_MEX+1}]")
    a(f"    buffer_store_dword v{RD}, v{V_MS}, {ws}, s{S_MW} offen")
    a(f"    s_mov_b64 exec, -1")
    ts('Mst')
    rt(3)
    if opt.get('ackdiag2'):
        a("    s_waitcnt vmcnt(0)")
        ts('ack2')
    d2 = opt.get('d2', 160)
    for i in range(NWB):
        wq_read(i, 0); wq_read(i, 1)
    a(f"""    s_xor_b32 s{S_P1W}, s{S_P1W}, 0x40000
    s_xor_b32 s{S_P1W2}, s{S_P1W2}, 0x40000
    s_xor_b32 s{S_P1W3}, s{S_P1W3}, 0x40000
    s_xor_b32 s{S_P1W4}, s{S_P1W4}, 0x40000""")
    wave_delay(a, name + "_h2", d2 - 160, opt.get('stag2', 0))
    def fill2a():
        for i in range(12): z2(ACC + 2*i)
        delay(a, gap2 - 48)
    G2A, G2B = R_A + 24, R_A + 16
    def cons2(G):
        ts('p2ok')
        a(f"    ds_write_b128 v{V_MP}, {vr(G,4)} offset:{L_M}")
        a(f"    ds_write_b128 v{V_MP}, {vr(G+4,4)} offset:{L_M+4096}")
    poll2(a, name + "_p2", G2A, G2B, RD, V_MP, S_MW, S_MW2, 0, ws, fill2a, lambda: None, cons2, (92 if opt.get('cnt') else None), lambda: ts('shot2'))
    rt(4)
    a(f"""    s_add_u32 s{S_MW}, s{S_MW}, 8192
    s_and_b32 s{S_MW}, s{S_MW}, {hex(WS_M | 0x7fff)}
    s_add_u32 s{S_MW2}, s{S_MW}, 4096""")
    ts('Mwr')
    if stamp:
        a("    s_waitcnt lgkmcnt(0)")
        for i in range(1, len(pts)+1):
            a(f"    s_sub_u32 s{S_T0}, s{S_TS+2*i}, s{S_TS}\n    s_add_u32 s{79+i}, s{79+i}, s{S_T0}")
    a(f"""    s_branch L_step_{name}
L_done_{name}:""")
    if flags:
        a(f"""    s_waitcnt vmcnt(0)
    s_barrier
    s_cmp_lg_u32 s{S_WV}, 0
    s_cbranch_scc1 L_nopub2_{name}
    v_mov_b32 v0, 64
    s_mov_b64 exec, 1
    buffer_store_dword v0, off, {ws}, s{S_FCH} sc1
    s_mov_b64 exec, -1
L_nopub2_{name}:""")

def wo_post(a, WACC, m, ws):
    X = WACC + 4*m
    a(f"    v_cvt_pk_bf16_f32 v{X}, v{X}, v{X+1}")
    a(f"    v_cvt_pk_bf16_f32 v{X+2}, v{X+2}, v{X+3}")
    s0, s1 = (S_P1W, S_P1W3) if m < 2 else (S_P1W2, S_P1W4)
    a(f"    buffer_store_dword v{X}, v{V_P1S}, {ws}, s{s0} offen offset:{(m & 1)*2048}")
    a(f"    buffer_store_dword v{X+2}, v{V_P1S}, {ws}, s{s1} offen offset:{(m & 1)*2048}")

def wave_delay(a, nm, d, stag):
    if d <= 0: return
    if stag == 0:
        delay(a, d); return
    for w in range(3):
        dl = max(0, d - stag*(3-w))
        a(f"    s_cmp_eq_u32 s{S_WV}, {w}\n    s_cbranch_scc0 L_{nm}_w{w}")
        delay(a, dl)
        a(f"    s_branch L_{nm}_e\nL_{nm}_w{w}:")
    delay(a, d)
    a(f"L_{nm}_e:")

def poll(a, nm, G, vaddr, soff, soff2, off2, ws, T, filler=None, cnt=None):
    s2 = soff2 if soff2 is not None else soff
    def lds():
        a(f"    buffer_load_dwordx4 {vr(G,4)}, v{vaddr}, {ws}, s{soff} offen sc1")
        a(f"    buffer_load_dwordx4 {vr(G+4,4)}, v{vaddr}, {ws}, s{s2} offen offset:{off2} sc1")
    lds()
    if filler: filler()
    a(f"""    s_waitcnt vmcnt(0)
    v_max_u32 v{T}, v{G}, v{G+4}
    v_cmp_eq_u32 vcc, -1, v{T}
    s_cbranch_vccz L_{nm}_ok
    s_mov_b64 exec, vcc""")
    if cnt: a(f"    s_add_u32 s{cnt}, s{cnt}, 1")
    lds()
    a(f"L_{nm}_loop:")
    a("    s_nop 15")
    lds()
    a(f"""    s_waitcnt vmcnt(2)
    s_mov_b64 exec, -1
    v_max_u32 v{T}, v{G}, v{G+4}
    v_cmp_eq_u32 vcc, -1, v{T}
    s_cbranch_vccz L_{nm}_ok2
    s_mov_b64 exec, vcc
    s_add_u32 s{S_RETRY}, s{S_RETRY}, 1
    s_cmp_lt_u32 s{S_RETRY}, 1000000
    s_cbranch_scc1 L_{nm}_loop
    s_mov_b64 exec, -1
    s_endpgm
L_{nm}_ok2:
    s_waitcnt vmcnt(0)
L_{nm}_ok:""")


def poll2(a, nm, GA, GB, T, vaddr, soff, soff2, off2, ws, fillA, fillB, consume, cnt=None, tsA=None):
    s2 = soff2 if soff2 is not None else soff
    def lds(G):
        a(f"    buffer_load_dwordx4 {vr(G,4)}, v{vaddr}, {ws}, s{soff} offen sc1")
        a(f"    buffer_load_dwordx4 {vr(G+4,4)}, v{vaddr}, {ws}, s{s2} offen offset:{off2} sc1")
    lds(GA)
    fillA()
    lds(GB)
    fillB()
    a("    s_waitcnt vmcnt(2)")
    if tsA: tsA()
    a(f"""    v_max_u32 v{T}, v{GA}, v{GA+4}
    v_cmp_eq_u32 vcc, -1, v{T}
    s_cbranch_vccz L_{nm}_okA""")
    if cnt: a(f"    s_add_u32 s{cnt}, s{cnt}, 1")
    a(f"""    s_waitcnt vmcnt(0)
    v_max_u32 v{T}, v{GB}, v{GB+4}
    v_cmp_eq_u32 vcc, -1, v{T}
    s_cbranch_vccz L_{nm}_okB""")
    if cnt: a(f"    s_add_u32 s{cnt}, s{cnt}, 0x100")
    a("    s_mov_b64 exec, vcc")
    lds(GB)
    a(f"L_{nm}_loop:")
    a("    s_nop 15")
    lds(GB)
    a(f"""    s_waitcnt vmcnt(2)
    s_mov_b64 exec, -1
    v_max_u32 v{T}, v{GB}, v{GB+4}
    v_cmp_eq_u32 vcc, -1, v{T}
    s_cbranch_vccz L_{nm}_okB
    s_mov_b64 exec, vcc
    s_add_u32 s{S_RETRY}, s{S_RETRY}, 1
    s_cmp_lt_u32 s{S_RETRY}, 1000000
    s_cbranch_scc1 L_{nm}_loop
    s_mov_b64 exec, -1
    s_endpgm
L_{nm}_okB:""")
    consume(GB)
    a(f"    s_branch L_{nm}_join")
    a(f"L_{nm}_okA:")
    consume(GA)
    a(f"L_{nm}_join:")
```

```python
import sys
from asmlib import *
import chain as C
import bulk as B
from chain import *
from bulk import B_WS, B_WV, B_T0, B_T1, B_T2, B_T3, B_SET, B_INST, B_RET, B_FLG, proj_role, scan_role, y_role, attn_role, oproj_role, wait_flag

NAME = "concat_heads__memory_aug_recurrent_mem_tr__ssm_conv_s5__prompt_kernel"
HEADER = open('concat_heads__memory_aug_recurrent_mem_tr__ssm_conv_s5__prompt.s.ref').read().split("; Override launch geometry")[0]

def gen(opt):
    name = NAME
    n = "m"
    a = Asm()
    ws = f"s[{S_WS}:{S_WS+3}]"
    a(f""".globl {name}
.p2align 8
.type {name},@function
{name}:
    s_cmp_ge_u32 s2, 256
    s_cbranch_scc1 L_exit
    s_load_dwordx2 s[4:5], s[0:1], 136      ; debug
    s_load_dwordx2 s[{S_WS}:{S_WS+1}], s[0:1], 144      ; ws
    s_getreg_b32 s3, hwreg(HW_REG_XCC_ID, 0, 4)
    s_mov_b32 s{S_WS+2}, {WS_SIZE}
    s_mov_b32 s{S_WS+3}, 0x20000
    s_waitcnt lgkmcnt(0)
    s_lshl_b32 s6, s3, 2
    v_mov_b32 v1, s6
    v_mov_b32 v2, 1
    v_cmp_eq_u32 vcc, 0, v0
    s_and_saveexec_b64 s[6:7], vcc
    global_atomic_add v3, v1, v2, s[4:5] sc0
    s_waitcnt vmcnt(0)
    v_mov_b32 v4, {L_MISC}
    ds_write_b32 v4, v3
    s_waitcnt lgkmcnt(0)
    s_mov_b64 exec, s[6:7]
    s_cmp_lg_u32 s2, 0
    s_cbranch_scc1 L_noz
    v_mov_b32 v8, 0
    v_mov_b32 v9, 0
    v_mov_b32 v10, 0
    v_mov_b32 v11, 0
    v_lshlrev_b32 v5, 4, v0
    s_mov_b32 s6, {WS_FLAG}
    v_cmp_gt_u32 vcc, {B.FLAG_BYTES // 16}, v0
    s_and_saveexec_b64 s[12:13], vcc
    s_cbranch_execz L_noz2
    buffer_store_dwordx4 v[8:11], v5, {ws}, s6 offen sc1
L_noz2:
    s_mov_b64 exec, s[12:13]
    s_waitcnt vmcnt(0)
    s_barrier
    v_mov_b32 v5, 36
    v_mov_b32 v6, 1
    v_cmp_eq_u32 vcc, 0, v0
    s_and_saveexec_b64 s[12:13], vcc
    global_atomic_add v5, v6, s[4:5]
    s_mov_b64 exec, s[12:13]
L_noz:
    s_barrier
    v_mov_b32 v4, {L_MISC}
    ds_read_b32 v3, v4
    s_waitcnt lgkmcnt(0)
    v_readfirstlane_b32 s{S_H}, v3
    v_readfirstlane_b32 s{S_WV}, v0
    s_lshr_b32 s{S_WV}, s{S_WV}, 6
    s_cmp_ge_u32 s{S_H}, 32
    s_cbranch_scc1 L_exit
    s_cmp_lg_u32 s3, 0
    s_cbranch_scc1 L_bulk
""")
    if opt.get('nochain'): a("    s_endpgm")
    chain_setup(a, n)
    chain_init_comm(a, n)
    a(f"""    s_waitcnt vmcnt(0)
    s_barrier
    v_mov_b32 v40, 32
    v_mov_b32 v41, 1
    v_cmp_eq_u32 vcc, 0, v0
    s_and_saveexec_b64 s[6:7], vcc
    global_atomic_add v40, v41, s[4:5]
    s_mov_b64 exec, s[6:7]
""")
    chain_load_mem0(a, n)
    chain_load_weights(a, n)
    a(f"""    v_mov_b32 v40, 32
L_initw:
    global_load_dwordx2 v[42:43], v40, s[4:5] sc1
    s_waitcnt vmcnt(0)
    v_readfirstlane_b32 s{S_T0}, v42
    v_readfirstlane_b32 s{S_T1}, v43
    s_cmp_ge_u32 s{S_T0}, 32
    s_cselect_b32 s{S_T0}, 1, 0
    s_and_b32 s{S_T0}, s{S_T0}, s{S_T1}
    s_cmp_lg_u32 s{S_T0}, 0
    s_cbranch_scc1 L_initd
    s_add_u32 s{S_RETRY}, s{S_RETRY}, 1
    s_cmp_lt_u32 s{S_RETRY}, 1000000
    s_cbranch_scc1 L_initw
    s_endpgm
L_initd:
""")
    for sg in range(2):
        a(f"""    s_lshl_b32 s{S_T1}, s{S_H}, 2
    s_add_u32 s{S_T1}, s{S_T1}, {F_KV + sg*128}
L_kv0_{sg}:
    buffer_load_dword v42, off, {ws}, s{S_T1} sc1
    s_waitcnt vmcnt(0)
    v_readfirstlane_b32 s{S_T0}, v42
    s_cmp_ge_u32 s{S_T0}, 1
    s_cbranch_scc1 L_kv0d_{sg}
    s_sleep 2
    s_add_u32 s{S_RETRY}, s{S_RETRY}, 1
    s_cmp_lt_u32 s{S_RETRY}, 1000000
    s_cbranch_scc1 L_kv0_{sg}
    s_endpgm
L_kv0d_{sg}:""")
    a(f"""    s_lshl_b32 s{S_FLN}, s{S_H}, 2
    s_add_u32 s{S_FLN}, s{S_FLN}, {F_KV + 2*128}
    s_mov_b32 s{S_FLT}, 1
    buffer_load_dword v0, off, {ws}, s{S_FLN} sc1
    s_lshl_b32 s{S_T1}, s{S_H}, 13
    s_lshl_b32 s{S_T0}, s{S_WV}, 11
    s_add_u32 s{S_T1}, s{S_T1}, s{S_T0}
    s_add_u32 s{S_T2}, s{S_T1}, {WS_VF}
    s_add_u32 s{S_T1}, s{S_T1}, {WS_KF}
    s_mov_b32 m0, s{S_KM0}
    s_nop 0
    buffer_load_dwordx4 v{V_L16}, {ws}, s{S_T1} offen sc1 lds
    buffer_load_dwordx4 v{V_L16}, {ws}, s{S_T1} offen offset:1024 sc1 lds
    buffer_load_dwordx2 {vr(V_VBX,2)}, v{V_VX}, {ws}, s{S_T2} offen sc1
    buffer_load_dwordx2 {vr(V_VBX+4,2)}, v{V_VX}, {ws}, s{S_T2} offen offset:512 sc1
    buffer_load_dwordx2 {vr(V_VBY,2)}, v{V_VX}, {ws}, s{S_T2} offen offset:1024 sc1
    buffer_load_dwordx2 {vr(V_VBY+4,2)}, v{V_VX}, {ws}, s{S_T2} offen offset:1536 sc1
    s_waitcnt vmcnt(0)
""")
    copt = dict(opt.get('chain', {})); copt['flags'] = 1
    chain_loop(a, n, copt)
    a("    s_waitcnt vmcnt(0)\n    s_endpgm")
    a(f"""L_bulk:
    s_sub_u32 s{B_T0}, s3, 1
    s_lshl_b32 s{B_T0}, s{B_T0}, 5
    s_add_u32 s60, s{B_T0}, s{S_H}              ; b
    s_mov_b32 s{B_WV}, s{S_WV}
    s_mov_b32 s{B_RET}, 0
    s_cmp_ge_u32 s60, 224
    s_cbranch_scc1 L_exit
    v_mov_b32 v40, 36
L_bfw:
    global_load_dword v42, v40, s[4:5] sc1
    s_waitcnt vmcnt(0)
    v_readfirstlane_b32 s{B_T0}, v42
    s_cmp_ge_u32 s{B_T0}, 1
    s_cbranch_scc1 L_bfd
    s_add_u32 s{B_RET}, s{B_RET}, 1
    s_cmp_lt_u32 s{B_RET}, 1000000
    s_cbranch_scc1 L_bfw
    s_endpgm
L_bfd:
    s_cmp_ge_u32 s60, 208
    s_cbranch_scc1 L_spare
    s_mul_i32 s{B_T0}, s60, 1261
    s_lshr_b32 s61, s{B_T0}, 16                 ; set (0..3)
    s_mul_i32 s{B_T0}, s61, 52
    s_sub_u32 s62, s60, s{B_T0}                 ; inst (0..51)
    s_mov_b32 s{B_SET}, s61
    s_cmp_lt_u32 s62, 32
    s_cbranch_scc1 L_p_kv
    s_cmp_lt_u32 s62, 48
    s_cbranch_scc1 L_p_q
    s_sub_u32 s{B_INST}, s62, 48
""")
    proj_role(a, "pu", 'U')
    a(f"    s_branch L_phase2\nL_p_q:\n    s_sub_u32 s{B_INST}, s62, 32")
    proj_role(a, "pq", 'Q')
    a(f"    s_branch L_phase2\nL_p_kv:\n    s_mov_b32 s{B_INST}, s62")
    proj_role(a, "pk", 'KV')
    a("L_phase2:")
    if opt.get('nophase2'): a("    s_endpgm")
    a(f"""    s_barrier
    s_cmp_ge_u32 s62, 44
    s_cbranch_scc1 L_scan
    s_cmp_lt_u32 s62, 12
    s_cbranch_scc1 L_t4a
    s_lshl_b32 s{B_T0}, s61, 5
    s_add_u32 s{B_T0}, s{B_T0}, s62
    s_sub_u32 s{B_T0}, s{B_T0}, 12
    s_lshl_b32 s{B_T0}, s{B_T0}, 2
    s_add_u32 s{B_T0}, s{B_T0}, s{B_WV}
    s_and_b32 s{B_INST}, s{B_T0}, 63
    s_lshr_b32 s{B_SET}, s{B_T0}, 6
""")
    attn_role(a, "t3", 8)
    a(f"""    s_endpgm
L_t4a:
    s_mul_i32 s{B_T0}, s61, 12
    s_add_u32 s{B_T0}, s{B_T0}, s62             ; 0..47
    s_lshr_b32 s{B_SET}, s{B_T0}, 4
    s_add_u32 s{B_SET}, s{B_SET}, 1
    s_and_b32 s{B_INST}, s{B_T0}, 15
    s_branch L_t4
L_spare:""")
    if opt.get('nophase2'): a("    s_endpgm")
    a(f"""    s_mov_b32 s{B_SET}, 0
    s_sub_u32 s{B_INST}, s60, 208
L_t4:
""")
    oproj_role(a, "t4", 4)
    a(f"""    s_endpgm
L_scan:
    s_lshl_b32 s{B_T0}, s61, 2
    s_add_u32 s{B_T0}, s{B_T0}, s62
    s_sub_u32 s{B_T1}, s{B_T0}, 48
    s_sub_u32 s{B_T2}, s{B_T0}, 28
    s_cmp_ge_u32 s62, 48
    s_cselect_b32 s63, s{B_T1}, s{B_T2}
    s_mov_b32 s{B_INST}, s63
""")
    scan_role(a, "sc")
    a(f"""    s_barrier
    s_lshr_b32 s{B_SET}, s63, 2
    s_and_b32 s{B_INST}, s63, 3
""")
    y_role(a, "yy")
    a("L_exit:\n    s_endpgm")
    text = HEADER + "; @launch grid=(256,1,1) block=(256,1,1) lds=163840\n"
    text += '.amdgcn_target "amdgcn-amd-amdhsa--gfx950"\n.text\n' + a.text()
    text += '.section .rodata,"a"\n.p2align 6\n' + kdesc(name)
    return text

if __name__ == '__main__':
    opt = dict(chain=dict(d1=224, stag=64, d2=224, gap1=100, gap2=100))
    for x in sys.argv[2:]: opt[x] = 1
    t = gen(opt)
    out = sys.argv[1] if len(sys.argv) > 1 else 'concat_heads__memory_aug_recurrent_mem_tr__ssm_conv_s5__prompt.s'
    open(out, 'w').write(t)
    print("written", out, len(t), "bytes")
```

```python
from asmlib import *
from chain import WS_KF, WS_VF, WS_QF, WS_OF, WS_KM, WS_VM, WS_FLAG, WS_SIZE

WS_U   = 0x6000000
WS_H   = 0x6800000
F_KV   = WS_FLAG + 0x000
F_Q    = WS_FLAG + 0x200
F_CH   = WS_FLAG + 0x1000
F_O    = WS_FLAG + 0x2000
F_U    = WS_FLAG + 0x500
F_SC   = WS_FLAG + 0x580
FLAG_BYTES = 0x4000

B_WS = 8
B_X  = 12
B_W  = 16
B_O  = 20
B_WV = 24
B_T0, B_T1, B_T2, B_T3 = 25, 26, 27, 28
B_SET, B_INST = 29, 30
B_SEG = 31
B_OUT = 32
B_CNT = 33
B_FLG = 34
B_RET = 35
B_PUB = 36

XROW = 1040
XBUF = 32 * XROW

def srd(a, base, ptr_off, nbytes):
    a(f"""    s_load_dwordx2 s[{base}:{base+1}], s[0:1], {ptr_off}
    s_mov_b32 s{base+2}, {nbytes}
    s_mov_b32 s{base+3}, 0x20000
    s_waitcnt lgkmcnt(0)""")

def proj_role(a, name, kind, nsets=4, flags=True):
    ws = f"s[{B_WS}:{B_WS+3}]"
    L = a.lds
    a(f"""    v_and_b32 v1, 63, v0                ; lane
    v_and_b32 v2, 31, v1                ; c = lane&31
    v_lshrrev_b32 v3, 5, v1             ; hi
    v_lshlrev_b32 v4, 4, v1             ; lane*16""")
    if kind in ('KV', 'Q'):
        if kind == 'KV':
            a(f"""    s_cmp_lt_u32 s{B_WV}, 2
    s_cselect_b32 s{B_T0}, 24, 32
    s_load_dwordx2 s[{B_W}:{B_W+1}], s[0:1], s{B_T0}
    s_mov_b32 s{B_W+2}, 0x400000
    s_mov_b32 s{B_W+3}, 0x20000
    s_lshl_b32 s{B_T1}, s{B_INST}, 8
    s_waitcnt lgkmcnt(0)""")
        else:
            a(f"""    s_load_dwordx2 s[{B_W}:{B_W+1}], s[0:1], 16
    s_mov_b32 s{B_W+2}, 0x400000
    s_mov_b32 s{B_W+3}, 0x20000
    s_lshr_b32 s{B_T0}, s{B_WV}, 1
    s_lshl_b32 s{B_T1}, s{B_INST}, 1
    s_add_u32 s{B_T1}, s{B_T1}, s{B_T0}
    s_lshl_b32 s{B_T1}, s{B_T1}, 8
    s_waitcnt lgkmcnt(0)""")
        a(f"""    s_and_b32 s{B_T0}, s{B_WV}, 1
    s_lshl_b32 s{B_T0}, s{B_T0}, 7
    s_add_u32 s{B_T1}, s{B_T1}, s{B_T0}         ; + (w&1)*128 bytes
    v_lshrrev_b32 v5, 3, v1
    v_lshlrev_b32 v5, 13, v5
    v_and_b32 v6, 7, v1
    v_lshlrev_b32 v6, 4, v6
    v_add3_u32 v5, v5, v6, s{B_T1}              ; voffset
    v_and_b32 v6, 15, v1
    v_lshrrev_b32 v7, 2, v6                     ; r
    v_and_b32 v6, 3, v6                         ; c4
    v_lshrrev_b32 v8, 5, v1                     ; gam>>1
    v_lshlrev_b32 v8, 3, v8
    v_add_u32 v7, v7, v8
    v_lshlrev_b32 v7, 7, v7                     ; *128
    v_bfe_u32 v8, v1, 4, 1
    v_lshlrev_b32 v8, 5, v8                     ; colbase*2
    v_lshlrev_b32 v6, 3, v6
    v_add3_u32 v7, v7, v8, v6
    s_lshl_b32 s{B_T2}, s{B_WV}, 15
    v_add_u32 v7, s{B_T2}, v7""")
        def issue(ch):
            for i in range(16):
                a(f"""    s_add_u32 m0, s{B_T2}, {(ch & 1)*16384 + i*1024}
    s_mov_b32 s{B_T3}, {(ch*128 + i*8)*8192}
    buffer_load_dwordx4 v5, s[{B_W}:{B_W+3}], s{B_T3} offen lds""")
        issue(0); issue(1)
        for ch in range(4):
            a(f"    s_waitcnt vmcnt({16 if ch < 3 else 0})")
            for kq in range(8):
                kk = ch*8 + kq
                for ct in range(2):
                    for hf in range(2):
                        off = (ch & 1)*16384 + (kq*16 + hf*4)*128 + ct*64
                        a(f"    ds_read_b64_tr_b16 {ar((ct*32 + kk)*4 + 2*hf, 2)}, v7 offset:{off}")
                if kq % 2 == 1: a("    s_waitcnt lgkmcnt(4)")
            a("    s_waitcnt lgkmcnt(0)")
            if ch + 2 < 4: issue(ch + 2)
    else:
        a(f"""    s_lshl_b32 s{B_T0}, s{B_INST}, 2
    s_add_u32 s{B_T0}, s{B_T0}, s{B_WV}
    s_lshl_b32 s{B_T0}, s{B_T0}, 15             ; *32 rows*1024B
    v_lshlrev_b32 v5, 10, v2                    ; c*1024
    v_lshlrev_b32 v6, 4, v3                     ; hi*16
    v_add3_u32 v5, v5, v6, s{B_T0}""")
        for ct in range(2):
            srd(a, B_W, 80 + 8*ct, 0x80000)
            for kk in range(32):
                a(f"    buffer_load_dwordx4 {ar((ct*32 + kk)*4, 4)}, v5, s[{B_W}:{B_W+3}], 0 offen offset:{kk*32}")
        a("    s_waitcnt vmcnt(0)")
    a("    s_barrier")
    srd(a, B_X, 0 if kind != 'U' else 56, 2048*1024)
    if kind == 'U':
        a(f"""    v_bfe_u32 v6, v2, 2, 1
    v_lshlrev_b32 v6, 4, v6                     ; 16*((m>>2)&1)
    v_lshrrev_b32 v7, 3, v2
    v_lshlrev_b32 v7, 2, v7                     ; 4*(m>>3)
    v_and_b32 v8, 3, v2
    v_add3_u32 v6, v6, v7, v8""")
    else:
        a("    v_mov_b32 v6, v2")
    a(f"""    v_mul_u32_u24 v6, {XROW}, v6
    v_lshlrev_b32 v7, 4, v3
    v_add_u32 v6, v6, v7""")
    if kind in ('KV', 'Q'):
        a(f"""    v_lshrrev_b32 v8, 4, v2
    v_and_b32 v9, 15, v2
    v_lshlrev_b32 v9, 4, v9
    v_lshlrev_b32 v10, 8, v3
    v_add_u32 v9, v9, v10
    v_lshlrev_b32 v10, 12, v8
    v_add_u32 v10, v10, v9                      ; K-type
    v_lshlrev_b32 v11, 10, v8
    v_add_u32 v11, v11, v9                      ; V-type""")
        if kind == 'KV':
            a(f"""    s_cmp_lt_u32 s{B_WV}, 2
    s_cselect_b64 vcc, -1, 0
    s_nop 1
    v_cndmask_b32 v8, v11, v10, vcc
    s_and_b32 s{B_T0}, s{B_WV}, 1
    s_cmp_lt_u32 s{B_WV}, 2
    s_cselect_b32 s{B_T1}, 11, 12
    s_lshl_b32 s{B_T0}, s{B_T0}, s{B_T1}
    s_cmp_lt_u32 s{B_WV}, 2
    s_cselect_b32 s{B_T1}, 0, {WS_VF - WS_KF}
    s_add_u32 s{B_T1}, s{B_T1}, {WS_KF}
    s_add_u32 s{B_OUT}, s{B_T0}, s{B_T1}
    s_lshl_b32 s{B_T0}, s{B_INST}, 13
    s_add_u32 s{B_OUT}, s{B_OUT}, s{B_T0}""")
        else:
            a(f"""    v_mov_b32 v8, v10
    s_and_b32 s{B_T0}, s{B_WV}, 1
    s_lshl_b32 s{B_T0}, s{B_T0}, 11
    s_lshr_b32 s{B_T1}, s{B_WV}, 1
    s_lshl_b32 s{B_T2}, s{B_INST}, 1
    s_add_u32 s{B_T1}, s{B_T1}, s{B_T2}
    s_lshl_b32 s{B_T1}, s{B_T1}, 13
    s_add_u32 s{B_OUT}, s{B_T0}, s{B_T1}
    s_add_u32 s{B_OUT}, s{B_OUT}, {WS_QF}""")
    else:
        a(f"""    v_lshlrev_b32 v8, 16, v3
    v_lshlrev_b32 v9, 3, v2
    v_add_u32 v8, v8, v9
    s_lshl_b32 s{B_T0}, s{B_INST}, 2
    s_add_u32 s{B_T0}, s{B_T0}, s{B_WV}
    s_lshl_b32 s{B_T0}, s{B_T0}, 8
    s_add_u32 s{B_OUT}, s{B_T0}, {WS_U}""")
    if kind == 'KV':
        a(f"""    s_lshl_b32 s{B_T0}, s{B_SET}, 5
    s_add_u32 s{B_T0}, s{B_T0}, s{B_INST}
    s_lshl_b32 s{B_T0}, s{B_T0}, 2
    s_add_u32 s{B_FLG}, s{B_T0}, {F_KV}""")
    elif kind == 'Q':
        a(f"""    s_lshl_b32 s{B_T0}, s{B_SET}, 4
    s_add_u32 s{B_T0}, s{B_T0}, s{B_INST}
    s_lshl_b32 s{B_T0}, s{B_T0}, 2
    s_add_u32 s{B_FLG}, s{B_T0}, {F_Q}""")
    else:
        a(f"    s_mov_b32 s{B_FLG}, {F_U}")
    lab_end = f"L_{name}_end"
    if kind == 'KV':
        a(f"    s_cmp_lt_u32 s{B_WV}, 2\n    s_cbranch_scc0 L_{name}_V")
        proj_stream(a, name + "_K", 'K', nsets, flags, 'KV')
        a(f"    s_branch {lab_end}")
        a(f"L_{name}_V:")
        proj_stream(a, name + "_Vs", 'V', nsets, flags, 'KV')
    elif kind == 'Q':
        proj_stream(a, name + "_Q", 'K', nsets, flags, 'Q')
    else:
        proj_stream(a, name + "_U", 'U', nsets, flags, 'U')
    a(f"{lab_end}:")

def publish_progress(a, nm, mode, reg=None):
    ws = f"s[{B_WS}:{B_WS+3}]"
    a(f"""    s_cmp_lg_u32 s{B_WV}, 0
    s_cbranch_scc1 L_{nm}_np
    s_mov_b64 exec, 1
    v_mov_b32 v120, 0""")
    if mode == 'store':
        a(f"""    v_mov_b32 v121, s{reg if reg is not None else B_CNT}
    buffer_store_dword v121, v120, {ws}, s{B_FLG} offen sc1""")
    else:
        a(f"""    v_mov_b32 v121, {2 if mode == 'add2' else 1}
    buffer_atomic_add v121, v120, {ws}, s{B_FLG} offen sc1""")
    a(f"""    s_mov_b64 exec, -1
L_{nm}_np:""")

def proj_stream(a, name, epi, nsets, flags, kind):
    ws = f"s[{B_WS}:{B_WS+3}]"
    L = a.lds
    def xissue(buf):
        a(f"""    s_lshl_b32 s{B_T0}, s{B_SEG}, 15
    s_lshl_b32 s{B_T1}, s{B_WV}, 13
    s_add_u32 s{B_T0}, s{B_T0}, s{B_T1}
    s_mul_i32 s{B_T1}, s{B_WV}, {8*XROW}
    s_add_u32 s{B_T1}, s{B_T1}, {buf*XBUF}""")
        for r in range(8):
            a(f"""    s_add_u32 m0, s{B_T1}, {r*XROW}
    s_add_u32 s{B_T2}, s{B_T0}, {r*1024}
    buffer_load_dwordx4 v4, s[{B_X}:{B_X+3}], s{B_T2} offen lds""")
    a(f"""    s_mov_b32 s{B_SEG}, s{B_SET}
    s_mov_b32 s{B_CNT}, 0""")
    xissue(0)
    ACC = 32
    XF = 64
    OUTR = 96
    NST = 16 if epi == 'U' else 4
    a(f"L_{name}_loop:")
    for buf in range(2):
        a(f"    s_cmp_eq_u32 s{B_CNT}, 0\n    s_cbranch_scc1 L_{name}_w0_{buf}")
        a(f"    s_waitcnt vmcnt({NST})\n    s_branch L_{name}_w1_{buf}")
        a(f"L_{name}_w0_{buf}:\n    s_waitcnt vmcnt(0)\nL_{name}_w1_{buf}:")
        a("    s_barrier")
        if flags:
            a(f"    s_cmp_lt_u32 s{B_CNT}, 2\n    s_cbranch_scc1 L_{name}_pp{buf}_np")
            a(f"    s_sub_u32 s{B_PUB}, s{B_CNT}, 1")
            publish_progress(a, f"{name}_pp{buf}", 'add' if kind == 'U' else 'store', B_PUB)
        a(f"    s_lshl_b32 s{B_T3}, s{B_SEG}, {17 if epi == 'U' else 18}")
        a(f"    s_add_u32 s{B_T3}, s{B_T3}, s{B_OUT}")
        a(f"    s_add_u32 s{B_SEG}, s{B_SEG}, {nsets}")
        a(f"    s_cmp_ge_u32 s{B_SEG}, 64\n    s_cbranch_scc1 L_{name}_nx{buf}")
        xissue(1 - buf)
        a(f"L_{name}_nx{buf}:")
        L.reset()
        NX = 8
        for kk in range(NX): a.ds(f"ds_read_b128 {vr(XF + 4*kk, 4)}, v6 offset:{buf*XBUF + kk*32}", ('x', kk))
        for kk in range(32):
            L.need(('x', kk))
            xf = vr(XF + 4*(kk % NX), 4)
            for ct in range(2):
                w_ = ar((ct*32 + kk)*4, 4)
                c_ = "0" if kk == 0 else vr(ACC + 16*ct, 16)
                if epi == 'K': a(f"    v_mfma_f32_32x32x16_bf16 {vr(ACC + 16*ct, 16)}, {w_}, {xf}, {c_}")
                else: a(f"    v_mfma_f32_32x32x16_bf16 {vr(ACC + 16*ct, 16)}, {xf}, {w_}, {c_}")
            if kk + NX < 32: a.ds(f"ds_read_b128 {xf}, v6 offset:{buf*XBUF + (kk+NX)*32}", ('x', kk+NX))
        a("    s_nop 15")
        if epi == 'K':
            for ct in range(2):
                A_ = ACC + 16*ct
                for i in range(2):
                    for r in range(4):
                        a(f"    v_cvt_pk_bf16_f32 v{OUTR + 4*(2*ct+i) + r}, v{A_ + 4*i + r}, v{A_ + 8 + 4*i + r}")
                    a(f"    buffer_store_dwordx4 {vr(OUTR + 4*(2*ct+i), 4)}, v8, {ws}, s{B_T3} offen offset:{ct*1024 + i*512} sc1")
        elif epi == 'V':
            for ct in range(2):
                A_ = ACC + 16*ct
                for ii in range(2):
                    o = OUTR + 4*(2*ct+ii)
                    a(f"    v_cvt_pk_bf16_f32 v{o}, v{A_ + 4*ii}, v{A_ + 4*ii + 1}")
                    a(f"    v_cvt_pk_bf16_f32 v{o+1}, v{A_ + 8 + 4*ii}, v{A_ + 8 + 4*ii + 1}")
                    a(f"    v_cvt_pk_bf16_f32 v{o+2}, v{A_ + 4*ii + 2}, v{A_ + 4*ii + 3}")
                    a(f"    v_cvt_pk_bf16_f32 v{o+3}, v{A_ + 8 + 4*ii + 2}, v{A_ + 8 + 4*ii + 3}")
                    a(f"    buffer_store_dwordx4 {vr(o, 4)}, v8, {ws}, s{B_T3} offen offset:{ct*2048 + ii*512} sc1")
        else:
            for rho in range(16):
                o = OUTR + 2*(rho % 8)
                a(f"    v_mov_b32 v{o}, v{ACC + rho}")
                a(f"    v_mov_b32 v{o+1}, v{ACC + 16 + rho}")
                if rho > 0 and rho % 1 == 0: pass
                a(f"    s_add_u32 s{B_T2}, s{B_T3}, {rho*4096}")
                a(f"    buffer_store_dwordx2 {vr(o, 2)}, v8, {ws}, s{B_T2} offen sc1")
        a(f"    s_add_u32 s{B_CNT}, s{B_CNT}, 1")
        a(f"    s_cmp_ge_u32 s{B_CNT}, {64 // nsets}")
        a(f"    s_cbranch_scc1 L_{name}_fin")
    a(f"    s_branch L_{name}_loop")
    a(f"L_{name}_fin:")
    a("    s_waitcnt vmcnt(0)")
    a("    s_barrier")
    if flags:
        if kind == 'U':
            publish_progress(a, f"{name}_ppf", 'add2')
        else:
            publish_progress(a, f"{name}_ppf", 'store')

def wait_flag(a, nm, soff_reg, target, vtmp=120, sleep=4, ge_reg=None):
    ws = f"s[{B_WS}:{B_WS+3}]"
    cmp = f"s{ge_reg}" if ge_reg is not None else str(target)
    a(f"""    v_mov_b32 v{vtmp}, 0
L_{nm}_w:
    buffer_load_dword v{vtmp+1}, v{vtmp}, {ws}, s{soff_reg} offen sc1
    s_waitcnt vmcnt(0)
    v_readfirstlane_b32 s{B_T3}, v{vtmp+1}
    s_cmp_ge_u32 s{B_T3}, {cmp}
    s_cbranch_scc1 L_{nm}_d
    s_sleep {sleep}
    s_add_u32 s{B_RET}, s{B_RET}, 1
    s_cmp_lt_u32 s{B_RET}, 1000000
    s_cbranch_scc1 L_{nm}_w
    s_endpgm
L_{nm}_d:""")

LOG2E = 1.4426950408889634
def ssm_params(a, vp, base):
    LR, LI, CR, CI = base, base+1, base+2, base+3
    T = base + 4
    a(f"    v_lshlrev_b32 v{T}, 1, v{vp}")
    for i, off in enumerate((64, 72, 112)):
        srd(a, B_W, off, 1024)
        a(f"    buffer_load_ushort v{T+1+i}, v{T}, s[{B_W}:{B_W+3}], 0 offen")
    a(f"""    s_waitcnt vmcnt(0)
    v_lshlrev_b32 v{T+1}, 16, v{T+1}          ; lre
    v_lshlrev_b32 v{T+2}, 16, v{T+2}          ; lim
    v_lshlrev_b32 v{T+3}, 16, v{T+3}          ; log_dt
    v_mul_f32 v{T+3}, {hex(f32bits(LOG2E))}, v{T+3}
    v_exp_f32 v{T+3}, v{T+3}
    s_nop 1
    v_cvt_pk_bf16_f32 v{T+3}, v{T+3}, v{T+3}
    v_lshlrev_b32 v{T+3}, 16, v{T+3}
    v_mul_f32 v{T+4}, v{T+3}, v{T+1}
    v_mul_f32 v{T+5}, v{T+3}, v{T+2}
    v_mul_f32 v{T+4}, {hex(f32bits(LOG2E))}, v{T+4}
    v_exp_f32 v{T+4}, v{T+4}                  ; mag
    v_mul_f32 v{T+5}, 0.15915494, v{T+5}      ; revolutions
    v_rndne_f32 v{T+6}, v{T+5}
    v_sub_f32 v{T+5}, v{T+5}, v{T+6}
    v_cos_f32 v{T+6}, v{T+5}
    v_sin_f32 v{T+7}, v{T+5}
    s_nop 1
    v_mul_f32 v{LR}, v{T+4}, v{T+6}
    v_mul_f32 v{LI}, v{T+4}, v{T+7}
    v_add_f32 v{T+4}, -1.0, v{LR}             ; nr
    v_mul_f32 v{T+5}, v{T+1}, v{T+1}
    v_fma_f32 v{T+5}, v{T+2}, v{T+2}, v{T+5}  ; den
    v_rcp_f32 v{T+5}, v{T+5}
    v_mul_f32 v{T+6}, v{T+4}, v{T+1}
    v_fma_f32 v{T+6}, v{LI}, v{T+2}, v{T+6}
    v_mul_f32 v{T+7}, v{LI}, v{T+1}
    v_fma_f32 v{T+7}, -v{T+4}, v{T+2}, v{T+7}
    v_mul_f32 v{CR}, v{T+6}, v{T+5}
    v_mul_f32 v{CI}, v{T+7}, v{T+5}""")

def scan_role(a, name, flags=True):
    ws = f"s[{B_WS}:{B_WS+3}]"
    a(f"""    v_and_b32 v1, 63, v0
    v_and_b32 v2, 15, v1                ; c
    v_lshrrev_b32 v3, 4, v0
    s_lshl_b32 s{B_T0}, s{B_INST}, 4
    v_add_u32 v4, s{B_T0}, v2           ; p""")
    ssm_params(a, 4, 8)
    LR, LI, CR, CI = 8, 9, 10, 11
    a(f"    v_mov_b32 v12, v{LR}\n    v_mov_b32 v13, v{LI}")
    for i in range(7):
        a("""    v_mul_f32 v14, v12, v12
    v_fma_f32 v14, -v13, v13, v14
    v_mul_f32 v15, v12, v13
    v_add_f32 v13, v15, v15
    v_mov_b32 v12, v14""")
    if flags:
        a(f"    s_mov_b32 s{B_T0}, {F_U}")
        wait_flag(a, name + "_wu", B_T0, 256)
    a(f"""    v_lshlrev_b32 v5, 19, v3
    v_lshlrev_b32 v6, 3, v4
    v_add_u32 v5, v5, v6
    v_lshlrev_b32 v6, 18, v3
    v_lshlrev_b32 v7, 2, v4
    v_add_u32 v6, v6, v7""")
    HR, HI = 16, 17
    UB = [32, 64]
    def loads(b, t0reg):
        for i in range(16):
            a(f"    s_add_u32 s{B_T1}, s{t0reg}, {i*4096}")
            a(f"    buffer_load_dwordx2 {vr(UB[b] + 2*i, 2)}, v5, {ws}, s{B_T1} offen sc1")
    def rec(b, out, hreg):
        for i in range(16):
            u = UB[b] + 2*i
            a(f"""    v_fma_f32 v18, v{LR}, v{HR}, v{u}
    v_fma_f32 v19, v{LR}, v{HI}, v{u+1}
    v_fma_f32 v18, -v{LI}, v{HI}, v18
    v_fma_f32 v{HI}, v{LI}, v{HR}, v19
    v_mov_b32 v{HR}, v18""")
            if out:
                a(f"""    v_mul_f32 v20, v{CR}, v{HR}
    v_mul_f32 v21, v{CR}, v{HI}
    v_fma_f32 v20, -v{CI}, v{HI}, v20
    v_fma_f32 v21, v{CI}, v{HR}, v21
    v_cvt_pk_bf16_f32 v{22 + (i & 3)}, v20, v21
    s_add_u32 s{B_T1}, s{hreg}, {i*2048}
    buffer_store_dword v{22 + (i & 3)}, v6, {ws}, s{B_T1} offen sc1""")
    for pas in range(2):
        if pas == 0:
            a(f"    v_mov_b32 v{HR}, 0\n    v_mov_b32 v{HI}, 0")
        SU, SH, SC = 40, 41, 42
        a(f"""    s_mov_b32 s{SU}, {WS_U}
    s_mov_b32 s{SH}, {WS_H}
    s_mov_b32 s{SC}, 0""")
        loads(0, SU)
        a(f"L_{name}_p{pas}:")
        a(f"    s_add_u32 s{SU}, s{SU}, {16*4096}")
        loads(1, SU)
        a(f"    s_waitcnt vmcnt({16})" if pas == 0 else f"    s_waitcnt vmcnt(16)")
        rec(0, pas == 1, SH)
        a(f"    s_add_u32 s{SH}, s{SH}, {16*2048}")
        a(f"    s_add_u32 s{SU}, s{SU}, {16*4096}")
        a(f"    s_add_u32 s{SC}, s{SC}, 1")
        a(f"    s_cmp_ge_u32 s{SC}, 4")
        a(f"    s_cbranch_scc1 L_{name}_p{pas}_last")
        loads(0, SU)
        a(f"    s_waitcnt vmcnt({16})")
        rec(1, pas == 1, SH)
        a(f"    s_add_u32 s{SH}, s{SH}, {16*2048}")
        a(f"    s_branch L_{name}_p{pas}")
        a(f"L_{name}_p{pas}_last:")
        a("    s_waitcnt vmcnt(0)")
        rec(1, pas == 1, SH)
        if pas == 0:
            a(f"""    v_lshlrev_b32 v18, 3, v0
    ds_write_b64 v18, v[{HR}:{HI}]
    s_waitcnt lgkmcnt(0)
    s_barrier
    v_lshlrev_b32 v18, 3, v2            ; c*8
    v_mov_b32 v{HR}, 0
    v_mov_b32 v{HI}, 0""")
            for j in range(15):
                a(f"""    ds_read_b64 v[20:21], v18 offset:{j*128}
    v_cmp_lt_u32 vcc, {j}, v3
    s_waitcnt lgkmcnt(0)
    v_fma_f32 v22, v12, v{HR}, v20
    v_fma_f32 v23, v12, v{HI}, v21
    v_fma_f32 v22, -v13, v{HI}, v22
    v_fma_f32 v23, v13, v{HR}, v23
    v_cndmask_b32 v{HR}, v{HR}, v22, vcc
    v_cndmask_b32 v{HI}, v{HI}, v23, vcc""")
    a("    s_waitcnt vmcnt(0)")
    a("    s_barrier")
    if flags:
        a(f"    s_mov_b32 s{B_FLG}, {F_SC}")
        publish_progress(a, name + "_pp", 'add')

HROW = 2064
HBUF = 32 * HROW
def y_role(a, name, nsets=8, flags=True):
    ws = f"s[{B_WS}:{B_WS+3}]"
    L = a.lds
    a(f"""    v_and_b32 v1, 63, v0
    v_and_b32 v2, 31, v1                ; c
    v_lshrrev_b32 v3, 5, v1             ; hi
    v_lshlrev_b32 v4, 4, v1             ; lane*16
    s_lshl_b32 s{B_T0}, s{B_INST}, 2
    s_add_u32 s{B_T0}, s{B_T0}, s{B_WV}
    s_lshl_b32 s{B_T0}, s{B_T0}, 5              ; d0 = 32*(4 inst + w)
    v_add_u32 v9, s{B_T0}, v2                   ; d
    v_lshlrev_b32 v5, 10, v9                    ; d*1024
    v_lshlrev_b32 v6, 4, v3
    v_add_u32 v5, v5, v6""")
    a(f"""    s_load_dwordx2 s[{B_W}:{B_W+1}], s[0:1], 96
    s_load_dwordx2 s[{B_O}:{B_O+1}], s[0:1], 104
    s_mov_b32 s{B_W+2}, 0x80000
    s_mov_b32 s{B_W+3}, 0x20000
    s_mov_b32 s{B_O+2}, 0x80000
    s_mov_b32 s{B_O+3}, 0x20000
    s_mov_b32 s{B_T1}, 0x05040100
    s_mov_b32 s{B_T2}, 0x07060302
    s_waitcnt lgkmcnt(0)""")
    for mb in range(4):
        for i in range(8):
            m = mb*8 + i
            a(f"    buffer_load_dwordx4 {vr(32 + 8*i, 4)}, v5, s[{B_W}:{B_W+3}], 0 offen offset:{m*32}")
            a(f"    buffer_load_dwordx4 {vr(36 + 8*i, 4)}, v5, s[{B_O}:{B_O+3}], 0 offen offset:{m*32}")
        a("    s_waitcnt vmcnt(0)")
        for i in range(8):
            m = mb*8 + i
            re, im = 32 + 8*i, 36 + 8*i
            for q in range(4):
                dst = (2*m + (q >> 1))*4 + (q & 1)*2
                a(f"""    v_perm_b32 v10, v{im+q}, v{re+q}, s{B_T1}
    v_perm_b32 v11, v{im+q}, v{re+q}, s{B_T2}
    v_xor_b32 v10, 0x80000000, v10
    v_xor_b32 v11, 0x80000000, v11
    v_accvgpr_write_b32 a{dst}, v10
    v_accvgpr_write_b32 a{dst+1}, v11""")
    srd(a, B_W, 120, 1024)
    a(f"""    v_lshlrev_b32 v10, 1, v9
    buffer_load_ushort v12, v10, s[{B_W}:{B_W+3}], 0 offen
    s_waitcnt vmcnt(0)
    v_lshlrev_b32 v12, 16, v12""")
    srd(a, B_X, 56, 2048*1024)
    srd(a, B_O, 128, 2048*4096)
    a(f"""    v_mul_u32_u24 v6, {HROW}, v2
    v_lshlrev_b32 v7, 5, v3
    v_add_u32 v6, v6, v7
    v_lshlrev_b32 v7, 12, v3
    v_lshlrev_b32 v8, 1, v9
    v_add_u32 v7, v7, v8                        ; x voffset
    v_lshlrev_b32 v8, 14, v3
    v_lshlrev_b32 v10, 2, v9
    v_add3_u32 v8, v8, v10, 0
    v_add_u32 v8, 2048, v8""")
    if flags:
        a(f"    s_mov_b32 s{B_T0}, {F_SC}")
        wait_flag(a, name + "_ws", B_T0, 32)
    def hissue(buf):
        a(f"""    s_lshl_b32 s{B_T0}, s{B_SEG}, 16
    s_lshl_b32 s{B_T1}, s{B_WV}, 14
    s_add_u32 s{B_T0}, s{B_T0}, s{B_T1}
    s_add_u32 s{B_T0}, s{B_T0}, {WS_H}
    s_mul_i32 s{B_T1}, s{B_WV}, {8*HROW}
    s_add_u32 s{B_T1}, s{B_T1}, {buf*HBUF}""")
        for r in range(8):
            for hf in range(2):
                a(f"""    s_add_u32 m0, s{B_T1}, {r*HROW + hf*1024}
    s_add_u32 s{B_T2}, s{B_T0}, {r*2048 + hf*1024}
    buffer_load_dwordx4 v4, {ws}, s{B_T2} offen sc1 lds""")
    a(f"""    s_mov_b32 s{B_SEG}, s{B_SET}
    s_mov_b32 s{B_CNT}, 0""")
    hissue(0)
    ACC = 32; XF = 64; XV = 96
    a(f"L_{name}_loop:")
    for buf in range(2):
        a("    s_waitcnt vmcnt(0)")
        a("    s_barrier")
        a(f"    s_mov_b32 s{B_T3}, s{B_SEG}")
        a(f"    s_add_u32 s{B_SEG}, s{B_SEG}, {nsets}")
        a(f"    s_cmp_ge_u32 s{B_SEG}, 64\n    s_cbranch_scc1 L_{name}_nx{buf}")
        hissue(1 - buf)
        a(f"L_{name}_nx{buf}:")
        a(f"    s_lshl_b32 s{B_T0}, s{B_T3}, 15")
        for i in range(4):
            for r in range(4):
                a(f"    s_add_u32 s{B_T1}, s{B_T0}, {(8*i + r)*1024}")
                a(f"    buffer_load_ushort v{XV + 4*i + r}, v7, s[{B_X}:{B_X+3}], s{B_T1} offen")
        L.reset()
        NX = 8
        def xoff(kk): return (kk >> 1)*64 + (kk & 1)*16
        base2 = buf*HBUF
        br = "v6" if buf == 0 else "v13"
        if buf == 0: a(f"    v_add_u32 v13, {HBUF}, v6")
        for kk in range(NX): a.ds(f"ds_read_b128 {vr(XF + 4*kk, 4)}, {br} offset:{xoff(kk)}", ('x', kk))
        for kk in range(64):
            L.need(('x', kk))
            xf = vr(XF + 4*(kk % NX), 4)
            c_ = "0" if kk == 0 else vr(ACC, 16)
            a(f"    v_mfma_f32_32x32x16_bf16 {vr(ACC, 16)}, {xf}, {ar(kk*4, 4)}, {c_}")
            if kk + NX < 64: a.ds(f"ds_read_b128 {xf}, {br} offset:{xoff(kk+NX)}", ('x', kk+NX))
        a("    s_waitcnt vmcnt(0)")
        a("    s_nop 7")
        a(f"    s_lshl_b32 s{B_T0}, s{B_T3}, 17")
        for i in range(4):
            for r in range(4):
                x = XV + 4*i + r
                a(f"""    v_lshlrev_b32 v{x}, 16, v{x}
    v_mul_f32 v{x}, v{x}, v12
    v_cvt_pk_bf16_f32 v{x}, v{x}, v{x}
    v_lshlrev_b32 v{x}, 16, v{x}
    v_fma_f32 v{x}, 2.0, v{ACC + 4*i + r}, v{x}
    s_add_u32 s{B_T1}, s{B_T0}, {(8*i + r)*4096}
    buffer_store_dword v{x}, v8, s[{B_O}:{B_O+3}], s{B_T1} offen""")
        a(f"    s_add_u32 s{B_CNT}, s{B_CNT}, 1")
        a(f"    s_cmp_ge_u32 s{B_CNT}, {64 // nsets}")
        a(f"    s_cbranch_scc1 L_{name}_fin")
    a(f"    s_branch L_{name}_loop")
    a(f"L_{name}_fin:")
    a("    s_waitcnt vmcnt(0)")

SCALE_C = (128 ** -0.5) * LOG2E
def attn_role(a, name, nlanes, flags=True, opt_sleep=6):
    ws = f"s[{B_WS}:{B_WS+3}]"
    S_H_, S_QT, S_SEG, S_B8, S_B2, S_C_, S_FK, S_FQ = 40, 41, 42, 43, 44, 45, 46, 47
    a(f"""    v_and_b32 v1, 63, v0                ; lane
    v_and_b32 v2, 15, v1                ; n
    v_lshrrev_b32 v3, 4, v1             ; g
    v_lshlrev_b32 v4, 4, v1             ; lane*16
    s_lshr_b32 s{S_H_}, s{B_INST}, 1
    s_and_b32 s{S_QT}, s{B_INST}, 1
    s_mov_b32 s{S_C_}, {hex(f32bits(SCALE_C))}
    v_lshlrev_b32 v5, 7, v3
    v_and_b32 v6, 7, v2
    v_lshlrev_b32 v6, 4, v6
    v_add_u32 v5, v5, v6
    v_and_b32 v6, 1, v3
    v_lshlrev_b32 v6, 7, v6
    v_lshlrev_b32 v7, 2, v2
    v_add_u32 v6, v6, v7
    ; o store voffset: (g>>1)*512 + (16qt+n)*16 + (g&1)*8
    v_lshrrev_b32 v7, 1, v3
    v_lshlrev_b32 v7, 9, v7
    v_lshlrev_b32 v8, 4, v2
    v_and_b32 v9, 1, v3
    v_lshlrev_b32 v9, 3, v9
    v_add3_u32 v7, v7, v8, v9
    s_lshl_b32 s{B_T0}, s{S_QT}, 8
    v_add_u32 v7, s{B_T0}, v7
    s_lshl_b32 s{B_T0}, s{S_QT}, 4
    v_lshlrev_b32 v8, 2, v3
    v_sub_u32 v8, v2, v8
    v_add_u32 v8, s{B_T0}, v8           ; signed
    v_mov_b32 v9, 0xff800000            ; -inf
    s_mov_b32 s{S_SEG}, s{B_SET}""")
    QF, KF, VF, VM = 16, 32, 80, 112
    ST = 128
    a(f"L_{name}_loop:")
    if flags:
        a(f"""    s_and_b32 s{B_T0}, s{S_SEG}, 3
    s_lshl_b32 s{B_T1}, s{B_T0}, 5
    s_add_u32 s{B_T1}, s{B_T1}, s{S_H_}
    s_lshl_b32 s{B_T1}, s{B_T1}, 2
    s_add_u32 s{S_FK}, s{B_T1}, {F_KV}
    s_lshl_b32 s{B_T1}, s{B_T0}, 4
    s_lshr_b32 s{B_T2}, s{S_H_}, 1
    s_add_u32 s{B_T1}, s{B_T1}, s{B_T2}
    s_lshl_b32 s{B_T1}, s{B_T1}, 2
    s_add_u32 s{S_FQ}, s{B_T1}, {F_Q}
    s_lshr_b32 s{B_T2}, s{S_SEG}, 2
    s_add_u32 s{B_T2}, s{B_T2}, 1""")
        wait_flag(a, name + "_wk", S_FK, None, ge_reg=B_T2)
        wait_flag(a, name + "_wq", S_FQ, None, ge_reg=B_T2)
    a(f"""    s_lshl_b32 s{B_T0}, s{S_SEG}, 5
    s_add_u32 s{B_T0}, s{B_T0}, s{S_H_}
    s_lshl_b32 s{S_B8}, s{B_T0}, 13
    s_add_u32 s{S_B2}, s{B_T0}, 32
    s_lshl_b32 s{S_B2}, s{S_B2}, 11""")
    a(f"""    s_lshl_b32 s{B_T1}, s{S_QT}, 12
    s_add_u32 s{B_T1}, s{B_T1}, s{S_B8}
    s_add_u32 s{B_T1}, s{B_T1}, {WS_QF}""")
    for ks in range(4):
        a(f"    buffer_load_dwordx4 {vr(QF + 4*ks, 4)}, v4, {ws}, s{B_T1} offen offset:{ks*1024} sc1")
    a(f"    s_add_u32 s{B_T1}, s{S_B8}, {WS_KF}\n    s_add_u32 s{B_T2}, s{B_T1}, 4096")
    for T in range(2):
        for ks in range(4):
            a(f"    buffer_load_dwordx4 {vr(KF + 16*T + 4*ks, 4)}, v4, {ws}, s{B_T1 if T == 0 else B_T2} offen offset:{ks*1024} sc1")
    a(f"    s_add_u32 s{B_T1}, s{S_B8}, {WS_VF}\n    s_add_u32 s{B_T2}, s{B_T1}, 4096")
    for t in range(8):
        a(f"    buffer_load_dwordx4 {vr(VF + 4*t, 4)}, v4, {ws}, s{B_T1 if t < 4 else B_T2} offen offset:{(t & 3)*1024} sc1")
    if flags:
        a(f"""    s_lshl_b32 s{B_T1}, s{S_H_}, 7
    s_add_u32 s{S_FK}, s{B_T1}, {F_CH}
    s_add_u32 s{B_T2}, s{S_SEG}, 1""")
        wait_flag(a, name + "_wc", S_FK, None, vtmp=190, ge_reg=B_T2, sleep=opt_sleep)
    a(f"    s_add_u32 s{B_T1}, s{S_B2}, {WS_KM}")
    for ks in range(4):
        a(f"    buffer_load_dwordx4 {vr(KF + 32 + 4*ks, 4)}, v5, {ws}, s{B_T1} offen offset:{ks*512} sc1")
    a(f"    s_add_u32 s{B_T1}, s{S_B2}, {WS_VM}")
    for t in range(8):
        a(f"    buffer_load_dword v{VM + 2*t}, v6, {ws}, s{B_T1} offen offset:{t*256} sc1")
        a(f"    buffer_load_dword v{VM + 2*t + 1}, v6, {ws}, s{B_T1} offen offset:{t*256 + 64} sc1")
    a("    s_waitcnt vmcnt(16)")
    for T in range(3):
        for ks in range(4):
            c = "0" if ks == 0 else vr(ST + 4*T, 4)
            a(f"    v_mfma_f32_16x16x32_bf16 {vr(ST + 4*T, 4)}, {vr(KF + 16*T + 4*ks, 4)}, {vr(QF + 4*ks, 4)}, {c}")
    a("    s_nop 7")
    for T in range(2):
        for r in range(4):
            a(f"    v_cmp_le_i32 vcc, {16*T + r}, v8")
            a(f"    s_nop 1")
            a(f"    v_cndmask_b32 v{ST + 4*T + r}, v9, v{ST + 4*T + r}, vcc")
    a("    v_cmp_gt_u32 vcc, 2, v3\n    s_nop 1")
    for r in range(4):
        a(f"    v_cndmask_b32 v{ST + 8 + r}, v9, v{ST + 8 + r}, vcc")
    M_, T_ = 140, 141
    a(f"    v_max3_f32 v{M_}, v{ST}, v{ST+1}, v{ST+2}")
    a(f"    v_max3_f32 v{T_}, v{ST+3}, v{ST+4}, v{ST+5}")
    a(f"    v_max3_f32 v{M_}, v{M_}, v{ST+6}, v{ST+7}")
    a(f"    v_max3_f32 v{T_}, v{T_}, v{ST+8}, v{ST+9}")
    a(f"    v_max3_f32 v{M_}, v{M_}, v{ST+10}, v{ST+11}")
    a(f"    v_max_f32 v{M_}, v{M_}, v{T_}")
    def xred(op):
        a(f"    v_mov_b32 v{T_}, v{M_}\n    s_nop 1\n    v_permlane16_swap_b32 v{M_}, v{T_}\n    {op} v{M_}, v{M_}, v{T_}")
        a(f"    v_mov_b32 v{T_}, v{M_}\n    s_nop 1\n    v_permlane32_swap_b32 v{M_}, v{T_}\n    {op} v{M_}, v{M_}, v{T_}")
    xred("v_max_f32")
    a(f"    v_mul_f32 v{M_}, s{S_C_}, v{M_}")
    for i in range(12):
        a(f"    v_fma_f32 v{ST+i}, v{ST+i}, s{S_C_}, -v{M_}")
    for i in range(12):
        a(f"    v_exp_f32 v{ST+i}, v{ST+i}")
    a("    s_nop 0")
    PX, PM = 144, 148
    a(f"    v_cvt_pk_bf16_f32 v{PX}, v{ST}, v{ST+1}")
    a(f"    v_cvt_pk_bf16_f32 v{PX+1}, v{ST+4}, v{ST+5}")
    a(f"    v_cvt_pk_bf16_f32 v{PX+2}, v{ST+2}, v{ST+3}")
    a(f"    v_cvt_pk_bf16_f32 v{PX+3}, v{ST+6}, v{ST+7}")
    a(f"    v_cvt_pk_bf16_f32 v{PM}, v{ST+8}, v{ST+9}")
    a(f"    v_cvt_pk_bf16_f32 v{PM+1}, v{ST+10}, v{ST+11}")
    a(f"    v_mov_b32 v{M_}, 0")
    for rg in (PX, PX+1, PX+2, PX+3, PM, PM+1):
        a(f"    v_lshlrev_b32 v{T_}, 16, v{rg}\n    v_add_f32 v{M_}, v{M_}, v{T_}")
        a(f"    v_and_b32 v{T_}, 0xffff0000, v{rg}\n    v_add_f32 v{M_}, v{M_}, v{T_}")
    xred("v_add_f32")
    a(f"    v_rcp_f32 v{M_}, v{M_}")
    a("    s_waitcnt vmcnt(0)")
    O = 152
    for t in range(8):
        a(f"    v_mfma_f32_16x16x32_bf16 {vr(O + 4*t, 4)}, {vr(VF + 4*t, 4)}, {vr(PX, 4)}, 0")
    for t in range(8):
        a(f"    v_mfma_f32_16x16x16_bf16 {vr(O + 4*t, 4)}, {vr(VM + 2*t, 2)}, {vr(PM, 2)}, {vr(O + 4*t, 4)}")
    a("    s_nop 7")
    a(f"    s_add_u32 s{B_T1}, s{S_B8}, {WS_OF}\n    s_add_u32 s{B_T2}, s{B_T1}, 4096")
    for t in range(8):
        o = O + 4*t
        for r in range(4): a(f"    v_mul_f32 v{o+r}, v{o+r}, v{M_}")
        a(f"    v_cvt_pk_bf16_f32 v{o}, v{o}, v{o+1}\n    v_cvt_pk_bf16_f32 v{o+1}, v{o+2}, v{o+3}")
        a(f"    buffer_store_dwordx2 {vr(o, 2)}, v7, {ws}, s{B_T1 if t < 4 else B_T2} offen offset:{(t & 3)*1024} sc1")
    if flags:
        a(f"""    s_waitcnt vmcnt(0)
    s_lshl_b32 s{B_T1}, s{S_SEG}, 7
    s_add_u32 s{B_T1}, s{B_T1}, {F_O}
    s_mov_b64 exec, 1
    v_mov_b32 v120, 0
    v_mov_b32 v121, 1
    buffer_atomic_add v121, v120, {ws}, s{B_T1} offen sc1
    s_mov_b64 exec, -1""")
    a(f"""    s_add_u32 s{S_SEG}, s{S_SEG}, {nlanes}
    s_cmp_lt_u32 s{S_SEG}, 64
    s_cbranch_scc1 L_{name}_loop
    s_waitcnt vmcnt(0)""")

def oproj_role(a, name, nsets=4, flags=True):
    ws = f"s[{B_WS}:{B_WS+3}]"
    L = a.lds
    a(f"""    v_and_b32 v1, 63, v0
    v_and_b32 v2, 31, v1                ; c
    v_lshrrev_b32 v3, 5, v1             ; hi
    v_lshlrev_b32 v4, 4, v1             ; lane*16""")
    srd(a, B_W, 40, 0x400000)
    a(f"""    v_lshrrev_b32 v5, 2, v1
    v_lshlrev_b32 v5, 10, v5
    v_and_b32 v6, 3, v1
    v_lshlrev_b32 v6, 4, v6
    s_lshl_b32 s{B_T0}, s{B_INST}, 6
    s_lshl_b32 s{B_T1}, s{B_WV}, 20             ; w*1024 rows*1024B
    s_add_u32 s{B_T0}, s{B_T0}, s{B_T1}
    v_add3_u32 v5, v5, v6, s{B_T0}
    v_and_b32 v6, 15, v1
    v_lshrrev_b32 v7, 2, v6
    v_and_b32 v6, 3, v6
    v_lshlrev_b32 v8, 3, v3
    v_add_u32 v7, v7, v8
    v_lshlrev_b32 v7, 6, v7                     ; row*64
    v_bfe_u32 v8, v1, 4, 1
    v_lshlrev_b32 v8, 5, v8
    v_lshlrev_b32 v6, 3, v6
    v_add3_u32 v7, v7, v8, v6
    s_lshl_b32 s{B_T2}, s{B_WV}, 15
    v_add_u32 v7, s{B_T2}, v7""")
    def issue(ch):
        for i in range(16):
            a(f"""    s_add_u32 m0, s{B_T2}, {(ch & 1)*16384 + i*1024}
    s_mov_b32 s{B_T3}, {(ch*256 + i*16)*1024}
    buffer_load_dwordx4 v5, s[{B_W}:{B_W+3}], s{B_T3} offen lds""")
    issue(0); issue(1)
    for ch in range(4):
        a(f"    s_waitcnt vmcnt({16 if ch < 3 else 0})")
        for kq in range(16):
            kk = ch*16 + kq
            for hf in range(2):
                a(f"    ds_read_b64_tr_b16 {ar(kk*4 + 2*hf, 2)}, v7 offset:{(ch & 1)*16384 + (kq*16 + hf*4)*64}")
            if kq % 4 == 3: a("    s_waitcnt lgkmcnt(4)")
        a("    s_waitcnt lgkmcnt(0)")
        if ch + 2 < 4: issue(ch + 2)
    a("    s_barrier")
    srd(a, B_O, 128, 2048*4096)
    a(f"""    v_lshlrev_b32 v8, 14, v3
    v_lshlrev_b32 v9, 2, v2
    s_lshl_b32 s{B_T0}, s{B_INST}, 7
    s_lshl_b32 s{B_T1}, s{B_WV}, 15
    s_add_u32 s{B_T0}, s{B_T0}, s{B_T1}
    v_add3_u32 v8, v8, v9, s{B_T0}
    s_lshl_b32 s{B_T0}, s{B_WV}, 12
    v_add_u32 v9, s{B_T0}, v4
    s_lshl_b32 s{B_T0}, s{B_WV}, 10
    v_add_u32 v10, s{B_T0}, v4
    s_mov_b32 s{B_SEG}, s{B_SET}""")
    ACC = 16; AF = 32
    a(f"L_{name}_loop:")
    if flags:
        a(f"""    s_lshl_b32 s{B_T1}, s{B_SEG}, 7
    s_add_u32 s{B_T1}, s{B_T1}, {F_O}""")
        wait_flag(a, name + "_wo", B_T1, 64, sleep=8)
    a(f"""    s_lshl_b32 s{B_T0}, s{B_SEG}, 18
    s_lshl_b32 s{B_T1}, s{B_WV}, 16             ; 8 heads * 8192
    s_add_u32 s{B_T0}, s{B_T0}, s{B_T1}
    s_add_u32 s{B_T0}, s{B_T0}, {WS_OF}""")
    def ld(kk):
        slot = kk % 48
        if kk % 4 == 0: a(f"    s_add_u32 s{B_T1}, s{B_T0}, {kk*1024}")
        a(f"    buffer_load_dwordx4 {vr(AF + 4*slot, 4)}, v4, {ws}, s{B_T1} offen offset:{(kk % 4)*1024} sc1")
    for kk in range(48): ld(kk)
    for kk in range(64):
        out = min(47, 63 - kk) if kk >= 16 else 47
        issued = 48 + min(kk, 16)
        a(f"    s_waitcnt vmcnt({issued - kk - 1})")
        c = "0" if kk == 0 else vr(ACC, 16)
        a(f"    v_mfma_f32_32x32x16_bf16 {vr(ACC, 16)}, {vr(AF + 4*(kk % 48), 4)}, {ar(kk*4, 4)}, {c}")
        if kk < 16: ld(48 + kk)
    a("    s_nop 15")
    for i in range(4): a(f"    ds_write_b128 v9, {vr(ACC + 4*i, 4)} offset:{i*1024}")
    a("    s_waitcnt lgkmcnt(0)\n    s_barrier")
    for w2 in range(4): a(f"    ds_read_b128 {vr(ACC + 4*w2, 4)}, v10 offset:{w2*4096}")
    a("    s_waitcnt lgkmcnt(0)\n    s_barrier")
    a(f"    s_lshl_b32 s{B_T0}, s{B_SEG}, 17")
    for r in range(4):
        a(f"""    v_add_f32 v{ACC+r}, v{ACC+r}, v{ACC+4+r}
    v_add_f32 v{ACC+8+r}, v{ACC+8+r}, v{ACC+12+r}
    v_add_f32 v{ACC+r}, v{ACC+r}, v{ACC+8+r}
    s_add_u32 s{B_T1}, s{B_T0}, {r*4096}
    buffer_store_dword v{ACC+r}, v8, s[{B_O}:{B_O+3}], s{B_T1} offen""")
    a(f"""    s_add_u32 s{B_SEG}, s{B_SEG}, {nsets}
    s_cmp_lt_u32 s{B_SEG}, 64
    s_cbranch_scc1 L_{name}_loop
    s_waitcnt vmcnt(0)""")
```

```python
from asmlib import *

WS_P1   = 0x0000000
WS_M    = 0x0080000
WS_FLAG = 0x0090000
WS_KF   = 0x1000000
WS_VF   = 0x2000000
WS_QF   = 0x3000000
WS_OF   = 0x4000000
WS_KM   = 0x5000000
WS_VM   = 0x5400000
WS_SIZE = 0x10000000
F_KV   = WS_FLAG + 0x000
F_CH   = WS_FLAG + 0x1000

L_M   = 0
L_KX  = 8192
L_Q   = 16384
L_K   = 18560
L_O   = 20736
L_ZERO= 22912
L_SEL = 23936
L_LB  = 24960
L_MISC= 25984
L_W   = 32768
L_WO = L_W

S_WS = 8
S_W  = 12
S_STEP, S_H, S_WV = 16, 17, 18
S_P1W, S_P1W2, S_P1X = 20, 21, 22
S_P1W3, S_P1W4 = 42, 43
S_MWN = 19
S_MW, S_MW2, S_MX = 23, 24, 25
S_KN, S_VN = 26, 27
S_T0, S_T1, S_T2 = 28, 29, 44
S_HALF = 30
S_MEX = 32
S_C   = 36
S_RETRY = 37
S_KMP, S_VMP = 38, 39
S_KM0 = 45
S_PFW = 35
S_FLN = 40
S_FLT = 41
S_FCH = 7
S_PF = 34
S_TS = 46

V_IDX, V_L16, V_QW, V_QR, V_KR, V_AR, V_WO, V_WO2, V_P1S, V_P1R, V_MS, V_MP, V_VX, V_KM, V_NEG1 = range(1, 16)
V_TR = 0
V_VBX = 16
V_VBY = 24
R_AB  = 32
NAB   = 5
R_ACC = 52
R_QF  = 64
R_KF  = 80
R_KX  = 96
V_WV  = 128

def wk(t, ks): return ar(t*64 + 8*ks, 8)
def wv(t, ks): return ar(128 + t*64 + 8*ks, 8)
def wo(m, kp): return vr(128 + (m*4 + kp)*8, 8)

def chain_setup(a, name):
    a(f"""
    v_and_b32 v32, 63, v0               ; lane
    v_and_b32 v33, 15, v32              ; n = lane&15
    v_lshrrev_b32 v40, 4, v32           ; g
    v_lshlrev_b32 v{V_L16}, 4, v32      ; lane*16
    v_and_b32 v41, 1, v32
    v_mul_u32_u24 v41, 0xAAAA, v41
    v_add_u32 v{V_IDX}, 0x4444, v41
    ; QW = 2g*272 + w*64 + n*4
    v_mul_u32_u24 v41, 544, v40
    v_lshlrev_b32 v42, 2, v33
    s_lshl_b32 s{S_T0}, s{S_WV}, 6
    v_add3_u32 v{V_QW}, v41, v42, s{S_T0}
    ; QR = (n>>1)*272 + g*16
    v_lshrrev_b32 v41, 1, v33
    v_mul_u32_u24 v43, 272, v41
    v_lshlrev_b32 v42, 4, v40
    v_add_u32 v{V_QR}, v43, v42
    ; AR = (g>>1)*512 + (n>>1)*64 + (g&1)*32 + (n&1)*16
    v_lshlrev_b32 v43, 6, v41
    v_lshrrev_b32 v44, 1, v40
    v_lshlrev_b32 v44, 9, v44
    v_add_u32 v43, v43, v44
    v_and_b32 v44, 1, v40
    v_lshlrev_b32 v44, 5, v44
    v_add_u32 v43, v43, v44
    v_and_b32 v44, 1, v33
    v_lshlrev_b32 v44, 4, v44
    v_add_u32 v{V_AR}, v43, v44
    ; KR = (n&7)*272 + g*16
    v_and_b32 v41, 7, v33
    v_mul_u32_u24 v41, 272, v41
    v_add_u32 v{V_KR}, v41, v42
    s_lshl_b32 s{S_T0}, s{S_WV}, 12
    s_add_u32 s{S_T0}, s{S_T0}, {L_W}
    v_add_u32 v{V_WO}, s{S_T0}, v{V_L16}
    v_add_u32 v{V_WO2}, 0x10000, v{V_WO}
    v_lshlrev_b32 v41, 14, v40
    v_lshlrev_b32 v42, 2, v33
    s_lshl_b32 s{S_T0}, s{S_WV}, 16
    s_lshl_b32 s{S_T1}, s{S_H}, 6
    s_add_u32 s{S_T0}, s{S_T0}, s{S_T1}
    v_add3_u32 v{V_P1S}, v41, v42, s{S_T0}
    s_lshl_b32 s{S_T0}, s{S_H}, 13
    s_lshl_b32 s{S_T1}, s{S_WV}, 11
    s_add_u32 s{S_T0}, s{S_T0}, s{S_T1}
    v_add_u32 v{V_P1R}, s{S_T0}, v{V_L16}
    s_lshr_b32 s{S_T0}, s{S_H}, 3
    s_lshl_b32 s{S_T0}, s{S_T0}, 2
    s_add_u32 s{S_T0}, s{S_T0}, s{S_WV}
    s_lshl_b32 s{S_T0}, s{S_T0}, 9
    s_and_b32 s{S_T1}, s{S_H}, 7
    s_lshl_b32 s{S_T1}, s{S_T1}, 6
    s_add_u32 s{S_T0}, s{S_T0}, s{S_T1}
    v_and_b32 v41, 3, v32
    v_lshlrev_b32 v41, 4, v41
    v_lshlrev_b32 v43, 2, v40
    v_add3_u32 v{V_MS}, v41, v43, s{S_T0}
    v_lshrrev_b32 v41, 5, v32
    v_lshlrev_b32 v41, 11, v41
    v_and_b32 v42, 31, v32
    v_lshlrev_b32 v42, 4, v42
    s_lshl_b32 s{S_T0}, s{S_WV}, 9
    v_add3_u32 v{V_MP}, v41, v42, s{S_T0}
    v_lshrrev_b32 v41, 1, v40
    v_lshlrev_b32 v41, 8, v41
    v_lshlrev_b32 v42, 4, v33
    v_and_b32 v43, 1, v40
    v_lshlrev_b32 v43, 3, v43
    v_add3_u32 v{V_VX}, v41, v42, v43
    v_lshrrev_b32 v41, 2, v33
    v_lshlrev_b32 v41, 7, v41
    v_lshlrev_b32 v42, 5, v40
    v_and_b32 v43, 3, v33
    v_lshlrev_b32 v43, 2, v43
    v_add3_u32 v{V_KM}, v41, v42, v43
    v_mov_b32 v{V_NEG1}, -1
    v_lshrrev_b32 v43, 2, v33           ; delta
    v_and_b32 v42, 3, v33               ; r
    v_mov_b32 v44, 0x3f80
    v_mov_b32 v45, 0x3f800000
    v_cmp_eq_u32 vcc, 1, v42
    s_nop 1
    v_cndmask_b32 v44, v44, v45, vcc
    v_cmp_gt_u32 vcc, 2, v42
    s_nop 1
    v_cndmask_b32 v44, 0, v44, vcc      ; r>=2 -> 0
""")
    for d in range(4):
        a(f"""    v_cmp_eq_u32 vcc, {d}, v43
    s_nop 1
    v_cndmask_b32 v{48+d}, 0, v44, vcc""")
    a(f"""    ds_write_b128 v{V_L16}, v[48:51] offset:{L_SEL}
    v_mov_b32 v52, 0x3f803f80
    v_mov_b32 v54, 0x3f803f80
    v_mov_b32 v41, 0x3f003f00
    v_cmp_gt_u32 vcc, 2, v40
    s_nop 1
    v_cndmask_b32 v53, 0, v41, vcc
    v_cndmask_b32 v55, 0, v41, vcc
    ds_write_b128 v{V_L16}, v[52:55] offset:{L_LB}
""")
    for i in range(16):
        a(f"    v_mov_b32 v{V_VBX+i}, 0")
    a(f"""    ds_write_b128 v{V_L16}, v[{V_VBX}:{V_VBX+3}] offset:{L_ZERO}
    s_mov_b32 s{S_HALF}, 0xaaaaaaaa
    s_mov_b32 s{S_HALF+1}, 0xaaaaaaaa
    s_mov_b32 s{S_MEX}, 0x000f000f
    s_mov_b32 s{S_MEX+1}, 0x000f000f
    s_mov_b32 s{S_C}, {hex(f32bits((128 ** -0.5) * 1.4426950408889634))}
    s_mov_b32 s{S_RETRY}, 0
    s_lshl_b32 s{S_T0}, s{S_WV}, 11
    s_add_u32 s{S_KM0}, s{S_T0}, {L_KX}
    s_and_b32 s{S_T0}, s{S_WV}, 1
    s_lshl_b32 s{S_T0}, s{S_T0}, 12
    s_lshr_b32 s{S_T1}, s{S_WV}, 1
    s_mul_i32 s{S_T1}, s{S_T1}, {WS_VF - WS_KF}
    s_add_u32 s{S_PFW}, s{S_T0}, s{S_T1}
    s_add_u32 s{S_PFW}, s{S_PFW}, {WS_KF}
""")

def chain_init_comm(a, name):
    ws = f"s[{S_WS}:{S_WS+3}]"
    a(f"""    v_mov_b32 v40, -1
    v_mov_b32 v41, -1
    v_mov_b32 v42, -1
    v_mov_b32 v43, -1
    s_mov_b32 s{S_T0}, {WS_P1}
    s_mov_b32 s{S_T1}, {WS_P1 + 0x40000}
    buffer_store_dwordx4 v[40:43], v{V_P1R}, {ws}, s{S_T0} offen
    buffer_store_dwordx4 v[40:43], v{V_P1R}, {ws}, s{S_T0} offen offset:1024
    buffer_store_dwordx4 v[40:43], v{V_P1R}, {ws}, s{S_T1} offen
    buffer_store_dwordx4 v[40:43], v{V_P1R}, {ws}, s{S_T1} offen offset:1024
    s_mov_b64 exec, s[{S_MEX}:{S_MEX+1}]
""")
    for sl in range(4):
        a(f"""    s_mov_b32 s{S_T0}, {WS_M + sl*8192}
    buffer_store_dword v40, v{V_MS}, {ws}, s{S_T0} offen""")
    a("    s_mov_b64 exec, -1")

def chain_load_weights(a, name):
    RING = L_W
    a(f"""
    v_and_b32 v32, 63, v0
    v_and_b32 v33, 15, v32
    v_lshrrev_b32 v40, 4, v32           ; g
    v_lshlrev_b32 v41, 13, v40          ; (lane>>4)*8192
    v_lshlrev_b32 v42, 4, v33
    s_lshl_b32 s{S_T0}, s{S_H}, 8
    s_lshl_b32 s{S_T1}, s{S_WV}, 17
    s_add_u32 s{S_T0}, s{S_T0}, s{S_T1}
    v_add3_u32 v46, v41, v42, s{S_T0}
    v_lshrrev_b32 v41, 1, v40
    v_lshlrev_b32 v41, 3, v41
    v_and_b32 v42, 1, v40
    v_lshlrev_b32 v42, 1, v42
    v_add_u32 v41, v41, v42
    v_lshrrev_b32 v42, 2, v33           ; r
    v_and_b32 v43, 1, v42
    v_lshlrev_b32 v43, 4, v43
    v_lshrrev_b32 v44, 1, v42
    v_lshlrev_b32 v44, 2, v44
    v_add3_u32 v41, v41, v43, v44       ; row
    v_lshlrev_b32 v41, 8, v41
    v_and_b32 v43, 3, v33
    v_lshlrev_b32 v43, 3, v43           ; c4*8
    s_lshl_b32 s{S_T0}, s{S_WV}, 6
    s_add_u32 s{S_T0}, s{S_T0}, {RING}
    v_add3_u32 v47, v41, v43, s{S_T0}
    v_add_u32 v48, 0x10000, v47
    v_lshrrev_b32 v41, 1, v40
    v_lshlrev_b32 v41, 2, v41
    v_and_b32 v44, 1, v40
    v_lshlrev_b32 v44, 1, v44
    v_add_u32 v41, v41, v44
    v_and_b32 v44, 1, v42
    v_lshlrev_b32 v44, 4, v44
    v_add_u32 v41, v41, v44
    v_lshlrev_b32 v41, 10, v41
    v_lshrrev_b32 v44, 1, v42
    v_lshlrev_b32 v44, 5, v44
    v_add3_u32 v41, v41, v44, v43
    s_lshl_b32 s{S_T0}, s{S_WV}, 8
    s_add_u32 s{S_T0}, s{S_T0}, {RING}
    v_add_u32 v49, s{S_T0}, v41
    v_add_u32 v50, 0x10000, v49
    s_lshl_b32 s{S_T2}, s{S_H}, 17
    s_lshl_b32 s{S_T1}, s{S_WV}, 12      ; w*4 rows*1024
    s_add_u32 s{S_T2}, s{S_T2}, s{S_T1}
""")
    ptr_off = {0: 24, 1: 32, 2: 40, 3: 16}
    chunks = [(m, ks) for m in range(4) for ks in range(8)]
    def issue(ci):
        m, ks = chunks[ci]
        slot = ci % 8
        if ks == 0:
            a(f"""    s_load_dwordx2 s[{S_W}:{S_W+1}], s[0:1], {ptr_off[m]}
    s_mov_b32 s{S_W+2}, 0x400000
    s_mov_b32 s{S_W+3}, 0x20000
    s_waitcnt lgkmcnt(0)""")
        for ii in range(4):
            a(f"""    s_lshl_b32 s{S_T0}, s{S_WV}, 12
    s_add_u32 m0, s{S_T0}, {RING + slot*16384 + ii*1024}""")
            if m == 2:
                a(f"""    s_add_u32 s{S_T1}, s{S_T2}, {ks*16384 + ii*1024}
    buffer_load_dwordx4 v{V_L16}, s[{S_W}:{S_W+3}], s{S_T1} offen lds""")
            else:
                a(f"""    s_mov_b32 s{S_T1}, {ks*524288 + ii*32768}
    buffer_load_dwordx4 v46, s[{S_W}:{S_W+3}], s{S_T1} offen lds""")
    steps = []
    for ci in range(32):
        m, ks = chunks[ci]
        if m == 2:
            if ks % 2 == 1: steps.append((ci, [ci-1, ci]))
        else: steps.append((ci, [ci]))
    issued = 0
    def issue_upto(limit):
        nonlocal issued
        while issued < min(limit, 32):
            issue(issued); issued += 1
    freed = set()
    issue_upto(8)
    for (ci, fr) in steps:
        m, ks = chunks[ci]
        a(f"    s_waitcnt vmcnt({(issued - (ci+1))*4})")
        a("    s_barrier")
        while issued < 32 and (issued - 8) in freed: issue(issued); issued += 1
        slot = ci % 8
        if m in (0, 1, 3):
            base = "v47" if slot < 4 else "v48"
            so = (slot % 4) * 16384
            for t in range(2):
                for p in range(4):
                    off = so + (32*(p >> 1) + (p & 1))*256 + 32*t
                    if m == 0: dst = ar(t*64 + 8*ks + 2*p, 2)
                    elif m == 1: dst = ar(128 + t*64 + 8*ks + 2*p, 2)
                    else: dst = vr(56 + t*8 + 2*p, 2)
                    a(f"    ds_read_b64_tr_b16 {dst}, {base} offset:{chk(off, 65535)}")
            a("    s_waitcnt lgkmcnt(0)")
            if m == 3:
                a("    s_barrier")
                wb = f"v{V_WO}" if ks < 4 else f"v{V_WO2}"
                for t in range(2):
                    for hf in range(2):
                        a(f"    ds_write_b128 {wb}, {vr(56 + t*8 + 4*hf, 4)} offset:{(ks%4)*16384 + t*2048 + hf*1024}")
                a("    s_waitcnt lgkmcnt(0)")
        else:
            kp = ks // 2
            s0 = slot - 1
            base = "v49" if s0 < 4 else "v50"
            so = (s0 % 4) * 16384
            for m_ in range(4):
                for p in range(4):
                    off = so + (8*(p >> 1) + (p & 1))*1024 + 64*m_
                    a(f"    ds_read_b64_tr_b16 {vr(128 + (m_*4+kp)*8 + 2*p, 2)}, {base} offset:{chk(off, 65535)}")
            a("    s_waitcnt lgkmcnt(0)")
        for c in fr: freed.add(c)
    a("    s_barrier")

def chain_load_mem0(a, name):
    a(f"""    s_load_dwordx2 s[{S_W}:{S_W+1}], s[0:1], 8
    s_mov_b32 s{S_W+2}, 8192
    s_mov_b32 s{S_W+3}, 0x20000
    s_waitcnt lgkmcnt(0)
    v_lshrrev_b32 v40, 7, v0            ; t>>7
    v_lshlrev_b32 v40, 6, v40           ; *32 cols *2B
    v_bfe_u32 v42, v0, 4, 3
    v_lshlrev_b32 v42, 10, v42          ; token*1024
    v_and_b32 v43, 15, v0
    v_lshlrev_b32 v43, 1, v43
    v_add_u32 v40, v40, v42
    v_add_u32 v40, v40, v43
""")
    for i in range(8):
        a(f"    buffer_load_ushort v{56+2*i}, v40, s[{S_W}:{S_W+3}], 0 offen offset:{128*i}")
        a(f"    buffer_load_ushort v{57+2*i}, v40, s[{S_W}:{S_W+3}], 0 offen offset:{128*i+32}")
    a("    s_waitcnt vmcnt(0)")
    a("    v_lshlrev_b32 v41, 2, v0")
    for i in range(8):
        a(f"    v_lshl_or_b32 v{56+2*i}, v{57+2*i}, 16, v{56+2*i}")
        a(f"    ds_write_b32 v41, v{56+2*i} offset:{L_M + 1024*i}")
    a("    s_waitcnt lgkmcnt(0)")

def delay(a, cyc):
    n = cyc // 4
    while n > 0:
        k = min(n, 16)
        a(f"    s_nop {k-1}")
        n -= k

def init_scalars(a):
    a(f"""    s_mov_b32 s{S_P1W}, 0
    s_mov_b32 s{S_P1W2}, 4096
    s_mov_b32 s{S_P1W3}, 8192
    s_mov_b32 s{S_P1W4}, 12288
    s_mov_b32 s{S_P1X}, 0x40000
    s_mov_b32 s{S_MW}, {WS_M + 8192}
    s_mov_b32 s{S_MW2}, {WS_M + 8192 + 4096}
    s_mov_b32 s{S_MX}, {WS_M + 3*8192}
    s_lshl_b32 s{S_T1}, s{S_H}, 11
    s_lshl_b32 s{S_T2}, s{S_WV}, 9
    s_add_u32 s{S_T1}, s{S_T1}, s{S_T2}
    s_add_u32 s{S_KMP}, s{S_T1}, {WS_KM}
    s_add_u32 s{S_VMP}, s{S_T1}, {WS_VM}
    s_add_u32 s{S_T0}, s{S_H}, 32
    s_lshl_b32 s{S_T0}, s{S_T0}, 13
    s_lshl_b32 s{S_T2}, s{S_WV}, 11
    s_add_u32 s{S_T0}, s{S_T0}, s{S_T2}
    s_add_u32 s{S_KN}, s{S_T0}, {WS_KF}
    s_add_u32 s{S_VN}, s{S_T0}, {WS_VF}
    s_add_u32 s{S_T0}, s{S_H}, 64
    s_lshl_b32 s{S_T0}, s{S_T0}, 13
    s_add_u32 s{S_PF}, s{S_T0}, s{S_PFW}
    s_lshl_b32 s{S_T0}, s{S_H}, 7
    s_add_u32 s{S_FCH}, s{S_T0}, {F_CH}""")

def chain_loop(a, name, opt):
    ws = f"s[{S_WS}:{S_WS+3}]"
    R_A = 32
    ACC = 64
    QX, QY, KX_, KY, VX, VY = [ACC + 4*i for i in range(6)]
    WB = [88, 96, 104, 112, 120]
    NWB = len(WB)
    A = lambda ks: vr(R_A + 4*ks, 4)
    stamp = opt.get('stamp')
    ntf = 'nt' if opt.get('nt') else ''
    pts = opt.get('pts', [])
    def ts(nm):
        if not stamp: return
        if nm == 0: a(f"    s_memtime s[{S_TS}:{S_TS+1}]")
        elif nm in pts:
            i = pts.index(nm) + 1
            a(f"    s_memtime s[{S_TS+2*i}:{S_TS+2*i+1}]")
    L = a.lds
    def z2(reg): a(f"    v_mov_b64 {vr(reg,2)}, 0")
    def rt(i):
        if opt.get('rt'): a(f"    s_memrealtime s[{S_TS+2*i}:{S_TS+2*i+1}]")
    def wq_read(i, hf):
        ks, t = i // 2, i % 2
        base = f"v{V_WO}" if ks < 4 else f"v{V_WO2}"
        a.ds(f"ds_read_b128 {vr(WB[i % NWB] + 4*hf, 4)}, {base} offset:{(ks%4)*16384 + t*2048 + hf*1024}", ('W', i, hf))
    a(f"    s_mov_b32 s{S_STEP}, 0")
    init_scalars(a)
    for i in range(12): z2(ACC + 2*i)
    L.reset()
    for i in range(NWB):
        wq_read(i, 0); wq_read(i, 1)
    a(f"L_step_{name}:")
    a("    s_waitcnt lgkmcnt(0)")
    a("    s_barrier")
    if opt.get('rawlog'):
        npt = len(pts)
        a(f"""    s_lshl_b32 s98, s{S_H}, 2
    s_add_u32 s98, s98, s{S_WV}
    s_lshl_b32 s98, s98, 12
    s_lshl_b32 s93, s{S_STEP}, 5
    s_add_u32 s98, s98, s93
    s_add_u32 s98, s98, {WS_FLAG + 0x40000}""")
        for i in range(8):
            a(f"    v_mov_b32 v{32+i}, s{S_TS + 2*i}" if i <= npt else f"    v_mov_b32 v{32+i}, 0")
        a(f"""    s_mov_b64 exec, 1
    buffer_store_dwordx4 v[32:35], off, {ws}, s98
    buffer_store_dwordx4 v[36:39], off, {ws}, s98 offset:16
    s_mov_b64 exec, -1""")
    if opt.get('steplog'):
        a(f"""    s_cmp_lg_u32 s{S_WV}, 0
    s_cbranch_scc1 L_nolog_{name}
    s_memrealtime s[94:95]
    s_memtime s[96:97]
    s_waitcnt lgkmcnt(0)
    s_lshl_b32 s98, s{S_H}, 10
    s_lshl_b32 s93, s{S_STEP}, 3
    s_add_u32 s98, s98, s93
    s_add_u32 s98, s98, {WS_FLAG + 0x20000}
    v_mov_b32 v32, s94
    v_mov_b32 v33, s96
    s_mov_b64 exec, 1
    buffer_store_dwordx2 v[32:33], off, {ws}, s98
    s_mov_b64 exec, -1
L_nolog_{name}:""")
    L.reset()
    for i in range(NWB):
        L.tags[('W', i, 0)] = 0; L.tags[('W', i, 1)] = 0
    ts(0)
    if opt.get('rt'):
        a(f"""    s_cmp_eq_u32 s{S_STEP}, {opt['rt']+1}
    s_cbranch_scc0 L_nort_{name}
    v_mov_b32 v32, s{S_TS}
    v_mov_b32 v33, s{S_TS+2}
    v_mov_b32 v34, s{S_TS+4}
    v_mov_b32 v35, s{S_TS+6}
    v_mov_b32 v36, s{S_TS+8}
    v_mov_b32 v37, s{S_TS+10}
    v_mov_b32 v38, 0
    v_mov_b32 v39, 0
    s_lshl_b32 s{S_T0}, s{S_H}, 2
    s_add_u32 s{S_T0}, s{S_T0}, s{S_WV}
    s_lshl_b32 s{S_T0}, s{S_T0}, 5
    s_add_u32 s{S_T0}, s{S_T0}, {WS_FLAG + 0x4000}
    v_mov_b32 v40, 0
    s_mov_b64 exec, 1
    buffer_store_dwordx4 v[32:35], v40, {ws}, s{S_T0} offen
    buffer_store_dwordx4 v[36:39], v40, {ws}, s{S_T0} offen offset:16
    s_mov_b64 exec, -1
    s_waitcnt vmcnt(0)
L_nort_{name}:""")
    rt(0)
    for ks in range(4): a.ds(f"ds_read_b128 {A(ks)}, v{V_AR} offset:{L_M + ks*1024}", ('A', ks))
    flags = opt.get('flags')
    if flags:
        a(f"""    v_readfirstlane_b32 s{S_T0}, v0
    s_cmp_ge_u32 s{S_T0}, s{S_FLT}
    s_cbranch_scc1 L_kvok_{name}
L_kvw_{name}:
    buffer_load_dword v0, off, {ws}, s{S_FLN} sc1
    s_waitcnt vmcnt(0)
    v_readfirstlane_b32 s{S_T0}, v0
    s_cmp_ge_u32 s{S_T0}, s{S_FLT}
    s_cbranch_scc1 L_kvok_{name}
    s_sleep 2
    s_add_u32 s{S_RETRY}, s{S_RETRY}, 1
    s_cmp_lt_u32 s{S_RETRY}, 1000000
    s_cbranch_scc1 L_kvw_{name}
    s_endpgm
L_kvok_{name}:""")
    wqueue = [(i, hf) for i in range(NWB, 16) for hf in range(2)]
    def nextw():
        if wqueue:
            i, hf = wqueue.pop(0); wq_read(i, hf)
    def st_reset1(): a.vmem(f"buffer_store_dword v{V_NEG1}, v{V_P1R}, {ws}, s{S_P1X} offen")
    def st_reset2(): a.vmem(f"buffer_store_dword v{V_NEG1}, v{V_P1R}, {ws}, s{S_P1X} offen offset:1024")
    def st_reset3():
        a(f"    s_mov_b64 exec, s[{S_MEX}:{S_MEX+1}]")
        a.vmem(f"buffer_store_dword v{V_NEG1}, v{V_MS}, {ws}, s{S_MX} offen")
        a(f"    s_mov_b64 exec, -1")
    def pf():
        a(f"    v_lshlrev_b32 v{V_TR}, 2, v{V_L16}")
        a.vmem(f"buffer_load_dword v{V_TR}, v{V_TR}, {ws}, s{S_PF} offen {ntf}")
        a(f"    s_add_u32 s{S_T0}, s{S_PF}, {0 if opt.get('samekv') else 32*8192}")
        a(f"    s_cmp_lt_u32 s{S_STEP}, 61")
        a(f"    s_cselect_b32 s{S_PF}, s{S_T0}, s{S_PF}")
        if flags:
            a(f"""    s_add_u32 s{S_T0}, s{S_STEP}, 3
    s_min_u32 s{S_T0}, s{S_T0}, 63
    s_lshr_b32 s{S_FLT}, s{S_T0}, 2
    s_add_u32 s{S_FLT}, s{S_FLT}, 1
    s_and_b32 s{S_T0}, s{S_T0}, 3
    s_lshl_b32 s{S_T0}, s{S_T0}, 5
    s_add_u32 s{S_T0}, s{S_T0}, s{S_H}
    s_lshl_b32 s{S_T0}, s{S_T0}, 2
    s_add_u32 s{S_FLN}, s{S_T0}, {F_KV}""")
            a.vmem(f"buffer_load_dword v0, off, {ws}, s{S_FLN} sc1")
    def upd_ring():
        pass
    def pubch():
        if not flags: return
        a(f"""    s_cmp_lg_u32 s{S_WV}, 0
    s_cbranch_scc1 L_nopub_{name}
    v_mov_b32 v0, s{S_STEP}
    s_mov_b64 exec, 1
    buffer_store_dword v0, off, {ws}, s{S_FCH} sc1
    s_mov_b64 exec, -1
L_nopub_{name}:""")
    extra = {1: lambda: (pubch(), pf()), 5: st_reset1, 6: st_reset2, 7: st_reset3}
    for ks in range(8):
        L.need(('A', ks), ('W', 2*ks, 1))
        a(f"    v_smfmac_f32_16x16x64_bf16 {vr(QX,4)}, {A(ks)}, {vr(WB[(2*ks) % NWB],8)}, v{V_IDX}")
        nextw()
        L.need(('W', 2*ks+1, 1))
        a(f"    v_smfmac_f32_16x16x64_bf16 {vr(QY,4)}, {A(ks)}, {vr(WB[(2*ks+1) % NWB],8)}, v{V_IDX}")
        nextw()
        a(f"    v_smfmac_f32_16x16x64_bf16 {vr(KX_,4)}, {A(ks)}, {wk(0,ks)}, v{V_IDX}")
        nextw()
        a(f"    v_smfmac_f32_16x16x64_bf16 {vr(KY,4)}, {A(ks)}, {wk(1,ks)}, v{V_IDX}")
        if ks == 0:
            a("    s_waitcnt vmcnt(0)")
            for k2 in range(4, 8): a.ds(f"ds_read_b128 {A(k2)}, v{V_AR} offset:{L_M + k2*1024}", ('A', k2))
        nextw()
        if ks in extra: extra[ks]()
        ts(f'k{ks}')
    ts('QK')
    KXF = 96
    QF = 64
    KF = R_A
    vs = []
    for ks in range(8):
        vs.append(f"    v_smfmac_f32_16x16x64_bf16 {vr(VX,4)}, {A(ks)}, {wv(0,ks)}, v{V_IDX}")
        vs.append(f"    v_smfmac_f32_16x16x64_bf16 {vr(VY,4)}, {A(ks)}, {wv(1,ks)}, v{V_IDX}")
    def kxr(i): a.ds(f"ds_read_b128 {vr(KXF + 4*i, 4)}, v{V_L16} offset:{L_KX + i*1024}", ('KX', i))
    for j in range(4):
        a(vs[j]); kxr(j)
    ts('v4')
    a(f"    v_add_f32 v{QX}, v{QX}, v{QX+1}")
    a(f"    v_add_f32 v{QX+2}, v{QX+2}, v{QX+3}")
    a(f"    v_add_f32 v{QY}, v{QY}, v{QY+1}")
    a(f"    v_add_f32 v{QY+2}, v{QY+2}, v{QY+3}")
    kxr(4)
    a(f"    v_cvt_pk_bf16_f32 v{QX}, v{QX}, v{QY}")
    a(f"    v_cvt_pk_bf16_f32 v{QX+2}, v{QX+2}, v{QY+2}")
    a(f"    v_add_f32 v{KX_}, v{KX_}, v{KX_+1}")
    a(f"    v_add_f32 v{KX_+2}, v{KX_+2}, v{KX_+3}")
    a.ds(f"ds_write_b32 v{V_QW}, v{QX} offset:{L_Q}")
    a.ds(f"ds_write_b32 v{V_QW}, v{QX+2} offset:{L_Q+272}")
    a(f"    v_add_f32 v{KY}, v{KY}, v{KY+1}")
    a(f"    v_add_f32 v{KY+2}, v{KY+2}, v{KY+3}")
    kxr(5)
    a(f"    v_cvt_pk_bf16_f32 v{KX_}, v{KX_}, v{KY}")
    a(f"    v_cvt_pk_bf16_f32 v{KX_+2}, v{KX_+2}, v{KY+2}")
    a.ds(f"ds_write_b32 v{V_QW}, v{KX_} offset:{L_K}")
    a.ds(f"ds_write_b32 v{V_QW}, v{KX_+2} offset:{L_K+272}", 'kw')
    ts('vpost')
    a(vs[4]); kxr(6)
    a(vs[5]); kxr(7)
    pubf = opt.get('pubflag', 'sc1')
    nopub = opt.get('nopub')
    a(vs[6])
    if not nopub: a.vmem(f"buffer_store_dword v{KX_}, v{V_KM}, {ws}, s{S_KMP} offen {pubf}")
    a(vs[7])
    if not nopub: a.vmem(f"buffer_store_dword v{KX_+2}, v{V_KM}, {ws}, s{S_KMP} offen offset:16 {pubf}")
    ts('preB2w')
    L.need('kw', ('KX', 7))
    ts('preB2')
    a("    s_barrier")
    ts('B2')
    a(f"    s_mov_b32 m0, s{S_KM0}")
    for ks in range(4):
        a.ds(f"ds_read_b128 {vr(QF + 4*ks, 4)}, v{V_QR} offset:{L_Q + ks*64}", ('QF', ks))
        a(vs[8 + ks])
        if ks == 0:
            a(f"    s_xor_b32 s{S_P1X}, s{S_P1X}, 0x40000\n    s_add_u32 s{S_MX}, s{S_MX}, 8192\n    s_and_b32 s{S_MX}, s{S_MX}, {hex(WS_M | 0x7fff)}")
        if ks == 2:
            a(f"    s_add_u32 s{S_KMP}, s{S_KMP}, 65536")
        if ks == 1: a.vmem(f"buffer_load_dwordx4 v{V_L16}, {ws}, s{S_KN} offen sc1 {ntf} lds")
    for ks in range(4):
        a.ds(f"ds_read_b128 {vr(KF + 4*ks, 4)}, v{V_KR} offset:{L_K + ks*64}", ('KF', ks))
        a(vs[12 + ks])
        if ks == 1: a.vmem(f"buffer_load_dwordx4 v{V_L16}, {ws}, s{S_KN} offen offset:1024 sc1 {ntf} lds")
        if ks == 2: a(f"    s_add_u32 s{S_KN}, s{S_KN}, {0 if opt.get('samekv') else 32*8192}")
    ts('V')
    ST0, ST1, ST2 = R_A + 16, R_A + 20, R_A + 24
    LBR, OX, OY, LL = 88, 92, 96, 100
    for ks in range(4):
        L.need(('QF', ks), ('KX', 4 + ks))
        c0 = "0" if ks == 0 else vr(ST0,4)
        c1 = "0" if ks == 0 else vr(ST1,4)
        a(f"    v_mfma_f32_16x16x32_bf16 {vr(ST0,4)}, {vr(KXF + 4*ks,4)}, {vr(QF+4*ks,4)}, {c0}")
        if ks == 0: a.ds(f"ds_read_b128 {vr(LBR,4)}, v{V_L16} offset:{L_LB}", 'LB')
        if ks == 1: z2(OX)
        if ks == 2: z2(OX+2)
        if ks == 3: a(f"    v_add_f32 v{VX}, v{VX}, v{VX+1}\n    v_add_f32 v{VX+2}, v{VX+2}, v{VX+3}")
        a(f"    v_mfma_f32_16x16x32_bf16 {vr(ST1,4)}, {vr(KXF + 16 + 4*ks,4)}, {vr(QF+4*ks,4)}, {c1}")
        if ks == 1: z2(OY)
        if ks == 2: z2(OY+2)
        if ks == 3: a(f"    v_add_f32 v{VY}, v{VY}, v{VY+1}\n    v_add_f32 v{VY+2}, v{VY+2}, v{VY+3}")
    ts('Sx')
    for ks in range(4):
        L.need(('KF', ks))
        c2 = "0" if ks == 0 else vr(ST2,4)
        a(f"    v_mfma_f32_16x16x32_bf16 {vr(ST2,4)}, {vr(KF + 4*ks,4)}, {vr(QF+4*ks,4)}, {c2}")
        if ks == 0:
            a(f"    v_cvt_pk_bf16_f32 v{V_VBX+2}, v{VX}, v{VX+2}\n    v_cvt_pk_bf16_f32 v{V_VBY+2}, v{VY}, v{VY+2}")
        if ks == 1:
            a(f"    v_lshrrev_b32 v{VX}, 2, v{V_L16}")
        if ks == 2 and not nopub:
            a.vmem(f"buffer_store_dword v{V_VBX+2}, v{VX}, {ws}, s{S_VMP} offen {pubf}")
        if ks == 3:
            if not nopub: a.vmem(f"buffer_store_dword v{V_VBY+2}, v{VX}, {ws}, s{S_VMP} offen offset:256 {pubf}")
            else: a("    s_nop 0")
    a(f"""    s_cmp_eq_u32 s{S_STEP}, {opt.get('nsteps',64)-1}
    s_cbranch_scc1 L_done_{name}""")
    ts('S')
    X = 64
    WACC = 104
    for r in range(4):
        a(f"    v_cndmask_b32 v{X+r}, v{ST0+r}, v{ST1+r}, s[{S_HALF}:{S_HALF+1}]")
    M_ = X + 4; T_ = X + 5
    a(f"    v_max3_f32 v{M_}, v{X}, v{X+1}, v{X+2}")
    a(f"    v_max3_f32 v{T_}, v{X+3}, v{ST2}, v{ST2+1}")
    a(f"    v_max3_f32 v{M_}, v{M_}, v{ST2+2}, v{ST2+3}")
    a(f"    v_max_f32 v{M_}, v{M_}, v{T_}")
    a("    s_nop 1")
    a(f"    v_max_f32_dpp v{M_}, v{M_}, v{M_} quad_perm:[1,0,3,2] row_mask:0xf bank_mask:0xf")
    a(f"    v_mov_b32 v{T_}, v{M_}")
    a("    s_nop 1")
    a(f"    v_permlane16_swap_b32 v{M_}, v{T_}")
    a(f"    v_max_f32 v{M_}, v{M_}, v{T_}")
    a(f"    v_mov_b32 v{T_}, v{M_}")
    a("    s_nop 1")
    a(f"    v_permlane32_swap_b32 v{M_}, v{T_}")
    a(f"    v_max_f32 v{M_}, v{M_}, v{T_}")
    a(f"    v_mul_f32 v{M_}, s{S_C}, v{M_}")
    ts('max')
    E = X + 6
    srcs = [X, X+1, ST2, ST2+1, X+2, X+3, ST2+2, ST2+3]
    for i, s_ in enumerate(srcs):
        a(f"    v_fma_f32 v{E+i}, v{s_}, s{S_C}, -v{M_}")
    for i in range(8):
        a(f"    v_exp_f32 v{E+i}, v{E+i}")
    P = ST0
    a(f"    v_cvt_pk_bf16_f32 v{P}, v{E}, v{E+1}")
    a(f"    v_cvt_pk_bf16_f32 v{P+1}, v{E+2}, v{E+3}")
    a(f"    v_cvt_pk_bf16_f32 v{P+2}, v{E+4}, v{E+5}")
    a(f"    v_cvt_pk_bf16_f32 v{P+3}, v{E+6}, v{E+7}")
    ts('smax')
    L.need('LB')
    a("    s_nop 1")
    a(f"    v_mfma_f32_16x16x32_bf16 {vr(LL,4)}, {vr(P,4)}, {vr(LBR,4)}, 0")
    a(f"    v_smfmac_f32_16x16x64_bf16 {vr(OX,4)}, {vr(P,4)}, {vr(V_VBX,8)}, v{V_IDX}")
    a(f"    v_smfmac_f32_16x16x64_bf16 {vr(OY,4)}, {vr(P,4)}, {vr(V_VBY,8)}, v{V_IDX}")
    ts('PV')
    a.vmem(f"buffer_load_dwordx2 {vr(V_VBX,2)}, v{V_VX}, {ws}, s{S_VN} offen sc1 {ntf}")
    for i in range(5): z2(WACC + 2*i)
    a(f"    v_add_f32 v{LL}, v{LL}, v{LL+1}")
    a(f"    v_add_f32 v{LL+2}, v{LL+2}, v{LL+3}")
    a(f"    v_rcp_f32 v{LL}, v{LL}")
    a(f"    v_rcp_f32 v{LL+2}, v{LL+2}")
    a(f"    v_add_f32 v{OX}, v{OX}, v{OX+1}")
    a(f"    v_add_f32 v{OX+2}, v{OX+2}, v{OX+3}")
    a(f"    v_add_f32 v{OY}, v{OY}, v{OY+1}")
    a(f"    v_add_f32 v{OY+2}, v{OY+2}, v{OY+3}")
    a.vmem(f"buffer_load_dwordx2 {vr(V_VBX+4,2)}, v{V_VX}, {ws}, s{S_VN} offen offset:512 sc1 {ntf}")
    a(f"    v_mul_f32 v{OX}, v{OX}, v{LL}")
    a(f"    v_mul_f32 v{OY}, v{OY}, v{LL}")
    a(f"    v_mul_f32 v{OX+2}, v{OX+2}, v{LL+2}")
    a(f"    v_mul_f32 v{OY+2}, v{OY+2}, v{LL+2}")
    a(f"    v_cvt_pk_bf16_f32 v{OX}, v{OX}, v{OY}")
    a(f"    v_cvt_pk_bf16_f32 v{OX+2}, v{OX+2}, v{OY+2}")
    ts('opost')
    a.ds(f"ds_write_b32 v{V_QW}, v{OX} offset:{L_O}")
    a.ds(f"ds_write_b32 v{V_QW}, v{OX+2} offset:{L_O+272}", 'ow')
    for i in range(5, 8): z2(WACC + 2*i)
    a.vmem(f"buffer_load_dwordx2 {vr(V_VBY,2)}, v{V_VX}, {ws}, s{S_VN} offen offset:1024 sc1 {ntf}")
    ts('preB3w')
    L.need('ow')
    ts('preB3')
    a("    s_barrier")
    ts('B3')
    rt(5)
    OA = 64
    for kp in range(4):
        a.ds(f"ds_read_b128 {vr(OA+4*kp,4)}, v{V_QR} offset:{L_O + kp*64}", ('O', kp))
    a.ds(f"ds_read_b128 {vr(R_A,4)}, v{V_L16} offset:{L_SEL}", 'SEL')
    a.vmem(f"buffer_load_dwordx2 {vr(V_VBY+4,2)}, v{V_VX}, {ws}, s{S_VN} offen offset:1536 sc1 {ntf}")
    ts('B3r')
    SELR = R_A; RD = R_A + 4
    G1A, G1B = R_A + 8, R_A + 16
    def shot(G, va, so, so2, off2):
        a(f"    buffer_load_dwordx4 {vr(G,4)}, v{va}, {ws}, s{so} offen sc1")
        a(f"    buffer_load_dwordx4 {vr(G+4,4)}, v{va}, {ws}, s{so2} offen offset:{off2} sc1")
    early = opt.get('early', {0: 1, 1: 2})
    for m_ in range(4):
        for kp in range(4):
            L.need(('O', kp))
            a(f"    v_smfmac_f32_16x16x64_bf16 {vr(WACC+4*m_,4)}, {vr(OA+4*kp,4)}, {wo(m_,kp)}, v{V_IDX}")
            if m_ == 0 and kp == 1:
                a(f"    s_add_u32 s{S_VMP}, s{S_VMP}, 65536\n    s_add_u32 s{S_VN}, s{S_VN}, {0 if opt.get('samekv') else 32*8192}\n    s_add_u32 s{S_STEP}, s{S_STEP}, 1")
            if kp == 0: ts(f'w{m_}')
            if m_ >= 1 and kp == 1:
                wo_post(a, WACC, m_ - 1, ws)
                for w_, pst in early.items():
                    if pst == m_ - 1:
                        a(f"    s_cmp_eq_u32 s{S_WV}, {w_}\n    s_cbranch_scc0 L_{name}_ns{w_}")
                        shot(G1A, V_P1R, S_P1W, S_P1W, 1024)
                        a(f"L_{name}_ns{w_}:")
    ts('wend')
    a("    s_nop 7")
    wo_post(a, WACC, 3, ws)
    ts('Wo')
    rt(1)
    def cons1(G):
        a(f"    v_mfma_f32_16x16x32_bf16 {vr(RD,4)}, {vr(SELR,4)}, {vr(G,4)}, 0")
        a(f"    v_mfma_f32_16x16x32_bf16 {vr(RD,4)}, {vr(SELR,4)}, {vr(G+4,4)}, {vr(RD,4)}")
    L.need('SEL')
    dw = opt.get('dw', {2: 40, 3: 140})
    gap1 = opt.get('gap1', 100)
    if opt.get('roll'):
        k1 = opt.get('k1', 3)
        a(f"""    s_cmp_eq_u32 s{S_WV}, 3
    s_cbranch_scc1 L_{name}_t3
    s_cmp_eq_u32 s{S_WV}, 2
    s_cbranch_scc1 L_{name}_t2
    s_cmp_eq_u32 s{S_WV}, 1
    s_cbranch_scc1 L_{name}_t1""")
        for w_ in range(4):
            if w_ > 0: a(f"L_{name}_t{w_}:")
            delay(a, dw[w_])
            if w_ < 3: a(f"    s_branch L_{name}_td")
        a(f"L_{name}_td:")
        pollr(a, name + "_p1", G1A, R_A + 24, V_P1R, S_P1W, S_P1W, 1024, ws, k1, gap1, None, (91 if opt.get('cnt') else None))
        cons1(G1A)
    else:
        a(f"""    s_cmp_eq_u32 s{S_WV}, 3
        s_cbranch_scc1 L_{name}_t3
        s_cmp_eq_u32 s{S_WV}, 2
        s_cbranch_scc1 L_{name}_t2
        s_cmp_eq_u32 s{S_WV}, 1
        s_cbranch_scc1 L_{name}_t1""")
        for w_ in range(4):
            if w_ > 0: a(f"L_{name}_t{w_}:")
            nm = f"{name}_p1w{w_}"
            if w_ in early:
                younger = 2 * (3 - early[w_])
                pollx(a, nm, G1A, G1B, R_A + 24, V_P1R, S_P1W, S_P1W, 1024, ws, True, younger, 0, gap1, cons1, f"L_{name}_p1j", (91 if opt.get('cnt') else None))
            else:
                pollx(a, nm, G1A, G1B, R_A + 24, V_P1R, S_P1W, S_P1W, 1024, ws, False, 0, dw[w_], gap1, cons1, f"L_{name}_p1j", (91 if opt.get('cnt') else None))
    a(f"L_{name}_p1j:")
    ts('p1ok')
    rt(2)
    a("    s_nop 7")
    a(f"    v_add_f32_dpp v{RD}, v{RD}, v{RD} row_ror:8 row_mask:0xf bank_mask:0xf")
    a(f"    v_add_f32_dpp v{RD+1}, v{RD+1}, v{RD+1} row_ror:8 row_mask:0xf bank_mask:0xf")
    a("    s_nop 0")
    a(f"    v_add_f32_dpp v{RD}, v{RD}, v{RD} row_ror:4 row_mask:0xf bank_mask:0xf")
    a(f"    v_add_f32_dpp v{RD+1}, v{RD+1}, v{RD+1} row_ror:4 row_mask:0xf bank_mask:0xf")
    a(f"    v_cvt_pk_bf16_f32 v{RD}, v{RD}, v{RD+1}")
    a(f"    s_mov_b64 exec, s[{S_MEX}:{S_MEX+1}]")
    a(f"    buffer_store_dword v{RD}, v{V_MS}, {ws}, s{S_MW} offen")
    a(f"    s_mov_b64 exec, -1")
    ts('Mst')
    rt(3)
    if opt.get('ackdiag2'):
        a("    s_waitcnt vmcnt(0)")
        ts('ack2')
    d2 = opt.get('d2', 160); gap2 = opt.get('gap2', 100)
    for i in range(NWB):
        wq_read(i, 0); wq_read(i, 1)
    a(f"""    s_xor_b32 s{S_P1W}, s{S_P1W}, 0x40000
    s_xor_b32 s{S_P1W2}, s{S_P1W2}, 0x40000
    s_xor_b32 s{S_P1W3}, s{S_P1W3}, 0x40000
    s_xor_b32 s{S_P1W4}, s{S_P1W4}, 0x40000""")
    wave_delay(a, name + "_h2", d2 - 160, opt.get('stag2', 0))
    def fill2a():
        for i in range(12): z2(ACC + 2*i)
        delay(a, gap2 - 48)
    G2A, G2B = R_A + 24, R_A + 16
    def cons2(G):
        ts('p2ok')
        a(f"    ds_write_b128 v{V_MP}, {vr(G,4)} offset:{L_M}")
        a(f"    ds_write_b128 v{V_MP}, {vr(G+4,4)} offset:{L_M+4096}")
    if opt.get('roll'):
        if opt.get('k2', 3) == 1:
            for i in range(12): z2(ACC + 2*i)
        pollr(a, name + "_p2", G2A, RD, V_MP, S_MW, S_MW2, 0, ws, opt.get('k2', 3), gap2, fill2a, (92 if opt.get('cnt') else None))
        cons2(G2A)
    else:
        poll2(a, name + "_p2", G2A, G2B, RD, V_MP, S_MW, S_MW2, 0, ws, fill2a, lambda: None, cons2, (92 if opt.get('cnt') else None), lambda: ts('shot2'))
    rt(4)
    a(f"""    s_add_u32 s{S_MW}, s{S_MW}, 8192
    s_and_b32 s{S_MW}, s{S_MW}, {hex(WS_M | 0x7fff)}
    s_add_u32 s{S_MW2}, s{S_MW}, 4096""")
    ts('Mwr')
    if stamp:
        a("    s_waitcnt lgkmcnt(0)")
        for i in range(1, len(pts)+1):
            a(f"    s_sub_u32 s{S_T0}, s{S_TS+2*i}, s{S_TS}\n    s_add_u32 s{79+i}, s{79+i}, s{S_T0}")
    a(f"""    s_branch L_step_{name}
L_done_{name}:""")
    if flags:
        a(f"""    s_waitcnt vmcnt(0)
    s_barrier
    s_cmp_lg_u32 s{S_WV}, 0
    s_cbranch_scc1 L_nopub2_{name}
    v_mov_b32 v0, 64
    s_mov_b64 exec, 1
    buffer_store_dword v0, off, {ws}, s{S_FCH} sc1
    s_mov_b64 exec, -1
L_nopub2_{name}:""")

def wo_post(a, WACC, m, ws):
    X = WACC + 4*m
    a(f"    v_cvt_pk_bf16_f32 v{X}, v{X}, v{X+1}")
    a(f"    v_cvt_pk_bf16_f32 v{X+2}, v{X+2}, v{X+3}")
    s0, s1 = (S_P1W, S_P1W3) if m < 2 else (S_P1W2, S_P1W4)
    a(f"    buffer_store_dword v{X}, v{V_P1S}, {ws}, s{s0} offen offset:{(m & 1)*2048}")
    a(f"    buffer_store_dword v{X+2}, v{V_P1S}, {ws}, s{s1} offen offset:{(m & 1)*2048}")

def wave_delay(a, nm, d, stag):
    if d <= 0: return
    if stag == 0:
        delay(a, d); return
    for w in range(3):
        dl = max(0, d - stag*(3-w))
        a(f"    s_cmp_eq_u32 s{S_WV}, {w}\n    s_cbranch_scc0 L_{nm}_w{w}")
        delay(a, dl)
        a(f"    s_branch L_{nm}_e\nL_{nm}_w{w}:")
    delay(a, d)
    a(f"L_{nm}_e:")

def poll(a, nm, G, vaddr, soff, soff2, off2, ws, T, filler=None, cnt=None):
    s2 = soff2 if soff2 is not None else soff
    def lds():
        a(f"    buffer_load_dwordx4 {vr(G,4)}, v{vaddr}, {ws}, s{soff} offen sc1")
        a(f"    buffer_load_dwordx4 {vr(G+4,4)}, v{vaddr}, {ws}, s{s2} offen offset:{off2} sc1")
    lds()
    if filler: filler()
    a(f"""    s_waitcnt vmcnt(0)
    v_max_u32 v{T}, v{G}, v{G+4}
    v_cmp_eq_u32 vcc, -1, v{T}
    s_cbranch_vccz L_{nm}_ok
    s_mov_b64 exec, vcc""")
    if cnt: a(f"    s_add_u32 s{cnt}, s{cnt}, 1")
    lds()
    a(f"L_{nm}_loop:")
    a("    s_nop 15")
    lds()
    a(f"""    s_waitcnt vmcnt(2)
    s_mov_b64 exec, -1
    v_max_u32 v{T}, v{G}, v{G+4}
    v_cmp_eq_u32 vcc, -1, v{T}
    s_cbranch_vccz L_{nm}_ok2
    s_mov_b64 exec, vcc
    s_add_u32 s{S_RETRY}, s{S_RETRY}, 1
    s_cmp_lt_u32 s{S_RETRY}, 1000000
    s_cbranch_scc1 L_{nm}_loop
    s_mov_b64 exec, -1
    s_endpgm
L_{nm}_ok2:
    s_waitcnt vmcnt(0)
L_{nm}_ok:""")


def poll2(a, nm, GA, GB, T, vaddr, soff, soff2, off2, ws, fillA, fillB, consume, cnt=None, tsA=None):
    s2 = soff2 if soff2 is not None else soff
    def lds(G):
        a(f"    buffer_load_dwordx4 {vr(G,4)}, v{vaddr}, {ws}, s{soff} offen sc1")
        a(f"    buffer_load_dwordx4 {vr(G+4,4)}, v{vaddr}, {ws}, s{s2} offen offset:{off2} sc1")
    lds(GA)
    fillA()
    lds(GB)
    fillB()
    a("    s_waitcnt vmcnt(2)")
    if tsA: tsA()
    a(f"""    v_max_u32 v{T}, v{GA}, v{GA+4}
    v_cmp_eq_u32 vcc, -1, v{T}
    s_cbranch_vccz L_{nm}_okA""")
    if cnt: a(f"    s_add_u32 s{cnt}, s{cnt}, 1")
    a(f"""    s_waitcnt vmcnt(0)
    v_max_u32 v{T}, v{GB}, v{GB+4}
    v_cmp_eq_u32 vcc, -1, v{T}
    s_cbranch_vccz L_{nm}_okB""")
    if cnt: a(f"    s_add_u32 s{cnt}, s{cnt}, 0x100")
    a("    s_mov_b64 exec, vcc")
    lds(GB)
    a(f"L_{nm}_loop:")
    a("    s_nop 15")
    lds(GB)
    a(f"""    s_waitcnt vmcnt(2)
    s_mov_b64 exec, -1
    v_max_u32 v{T}, v{GB}, v{GB+4}
    v_cmp_eq_u32 vcc, -1, v{T}
    s_cbranch_vccz L_{nm}_okB
    s_mov_b64 exec, vcc
    s_add_u32 s{S_RETRY}, s{S_RETRY}, 1
    s_cmp_lt_u32 s{S_RETRY}, 1000000
    s_cbranch_scc1 L_{nm}_loop
    s_mov_b64 exec, -1
    s_endpgm
L_{nm}_okB:""")
    consume(GB)
    a(f"    s_branch L_{nm}_join")
    a(f"L_{nm}_okA:")
    consume(GA)
    a(f"L_{nm}_join:")


def pollx(a, nm, GA, GB, T, vaddr, soff, soff2, off2, ws, issued, younger, d, gap, consume, join, cnt=None):
    def lds(G):
        a(f"    buffer_load_dwordx4 {vr(G,4)}, v{vaddr}, {ws}, s{soff} offen sc1")
        a(f"    buffer_load_dwordx4 {vr(G+4,4)}, v{vaddr}, {ws}, s{soff2} offen offset:{off2} sc1")
    if issued:
        a(f"    s_waitcnt vmcnt({younger})")
        a(f"""    v_max_u32 v{T}, v{GA}, v{GA+4}
    v_cmp_eq_u32 vcc, -1, v{T}
    s_cbranch_vccz L_{nm}_okA""")
        lds(GB)
    else:
        delay(a, d)
        lds(GA)
        delay(a, gap)
        lds(GB)
        a(f"""    s_waitcnt vmcnt(2)
    v_max_u32 v{T}, v{GA}, v{GA+4}
    v_cmp_eq_u32 vcc, -1, v{T}
    s_cbranch_vccz L_{nm}_okA""")
    if cnt: a(f"    s_add_u32 s{cnt}, s{cnt}, 1")
    a(f"""    s_waitcnt vmcnt(0)
    v_max_u32 v{T}, v{GB}, v{GB+4}
    v_cmp_eq_u32 vcc, -1, v{T}
    s_cbranch_vccz L_{nm}_okB""")
    if cnt: a(f"    s_add_u32 s{cnt}, s{cnt}, 0x100")
    a("    s_mov_b64 exec, vcc")
    lds(GB)
    a(f"L_{nm}_loop:")
    a("    s_nop 7")
    lds(GB)
    a(f"""    s_waitcnt vmcnt(2)
    s_mov_b64 exec, -1
    v_max_u32 v{T}, v{GB}, v{GB+4}
    v_cmp_eq_u32 vcc, -1, v{T}
    s_cbranch_vccz L_{nm}_okB
    s_mov_b64 exec, vcc
    s_add_u32 s{S_RETRY}, s{S_RETRY}, 1
    s_cmp_lt_u32 s{S_RETRY}, 1000000
    s_cbranch_scc1 L_{nm}_loop
    s_mov_b64 exec, -1
    s_endpgm
L_{nm}_okB:""")
    consume(GB)
    a(f"    s_branch {join}")
    a(f"L_{nm}_okA:")
    consume(GA)
    a(f"    s_branch {join}")


def pollr(a, nm, G, T, vaddr, soff, soff2, off2, ws, k, gap, fill=None, cnt=None):
    def lds():
        a(f"    buffer_load_dwordx4 {vr(G,4)}, v{vaddr}, {ws}, s{soff} offen sc1")
        a(f"    buffer_load_dwordx4 {vr(G+4,4)}, v{vaddr}, {ws}, s{soff2} offen offset:{off2} sc1")
    for i in range(k):
        lds()
        if i < k - 1:
            if i == 0 and fill: fill()
            else: delay(a, gap)
    a(f"L_{nm}_loop:")
    a(f"""    s_waitcnt vmcnt({2*(k-1)})
    s_mov_b64 exec, -1
    v_max_u32 v{T}, v{G}, v{G+4}
    v_cmp_eq_u32 vcc, -1, v{T}
    s_cbranch_vccz L_{nm}_ok
    s_mov_b64 exec, vcc""")
    lds()
    if cnt: a(f"    s_add_u32 s{cnt}, s{cnt}, 1")
    a(f"""    s_add_u32 s{S_RETRY}, s{S_RETRY}, 1
    s_cmp_lt_u32 s{S_RETRY}, 1000000
    s_cbranch_scc1 L_{nm}_loop
    s_mov_b64 exec, -1
    s_endpgm
L_{nm}_ok:""")
```

```python
from asmlib import *
from chain import *

S_LATE = 46
S_CNT1, S_CNT2 = 91, 92
S_FLTN, S_FLNN = 72, 73
S_FCV = 74
S_W0 = 70

def chain_loop2(a, name, opt):
    ws = f"s[{S_WS}:{S_WS+3}]"
    flags = opt.get('flags')
    R_A = 32
    ACC = 64
    QX, QY, KX_, KY, VX, VY = [ACC + 4*i for i in range(6)]
    WB = [88, 96, 104, 112, 120]
    NWB = len(WB)
    EARLY = opt.get('earlyhalf', 1)
    KS = [0, 2, 4, 6, 1, 3, 5, 7] if EARLY else list(range(8))
    A = lambda j: vr(R_A + 4*j, 4)
    L = a.lds
    cnt1 = S_CNT1 if opt.get('cnt') else None
    cnt2 = S_CNT2 if opt.get('cnt') else None
    stamp = opt.get('stamp'); pts = opt.get('pts', [])
    S_TS = 48
    def ts(nm):
        if not stamp: return
        if nm == 0: a(f"    s_memtime s[{S_TS}:{S_TS+1}]")
        elif nm in pts:
            i = pts.index(nm) + 1
            a(f"    s_memtime s[{S_TS+2*i}:{S_TS+2*i+1}]")
    def z2(reg): a(f"    v_mov_b64 {vr(reg,2)}, 0")
    def wq_read(i, hf):
        ks, t = KS[i // 2], i % 2
        base = f"v{V_WO}" if ks < 4 else f"v{V_WO2}"
        a.ds(f"ds_read_b128 {vr(WB[i % NWB] + 4*hf, 4)}, {base} offset:{(ks%4)*16384 + t*2048 + hf*1024}", ('W', i, hf))
    def aread(j): a.ds(f"ds_read_b128 {A(j)}, v{V_AR} offset:{L_M + KS[j]*1024}", ('A', j))
    G2 = R_A + 16
    def mshot():
        a(f"    buffer_load_dwordx4 {vr(G2,4)}, v{V_MP}, {ws}, s{S_MW} offen sc1")
        a(f"    buffer_load_dwordx4 {vr(G2+4,4)}, v{V_MP}, {ws}, s{S_MW2} offen sc1")
    def check_loop(nm, G, T, reissue, cnt):
        a(f"""L_{nm}_chk:
    v_max_u32 v{T}, v{G}, v{G+4}
    v_cmp_eq_u32 vcc, -1, v{T}
    s_cbranch_vccnz L_{nm}_retry
L_{nm}_ok:""")
        def tail():
            a(f"L_{nm}_retry:\n    s_mov_b64 exec, vcc")
            reissue()
            if cnt: a(f"    s_add_u32 s{cnt}, s{cnt}, 1")
            a(f"""    s_add_u32 s{S_RETRY}, s{S_RETRY}, 1
    s_cmp_lt_u32 s{S_RETRY}, 1000000
    s_cbranch_scc0 L_abort_{name}
    s_waitcnt vmcnt(0)
    s_mov_b64 exec, -1
    s_branch L_{nm}_chk""")
        tails.append(tail)
    tails = []

    a(f"    s_mov_b32 s{S_STEP}, 0")
    init_scalars(a)
    a(f"""    s_cmp_ge_u32 s{S_WV}, 2
    s_cselect_b64 s[{S_LATE}:{S_LATE+1}], -1, 0""")
    a(f"""    s_mov_b32 s{S_MWN}, s{S_MW}
    s_cmp_eq_u32 s{S_WV}, 0
    s_cselect_b32 s{S_W0}, 1, 0
    s_mov_b32 s{S_W0+1}, 0
    s_sub_u32 s{S_VN}, s{S_VN}, {32*8192}
    s_lshl_b32 s{S_FLNN}, s{S_H}, 2
    s_add_u32 s{S_FLNN}, s{S_FLNN}, {F_KV + 3*128}
    s_mov_b32 s{S_FLTN}, 1
    s_mov_b32 s{S_FCV}, 0""")
    for i in range(12): z2(ACC + 2*i)
    L.reset()
    for i in range(NWB):
        wq_read(i, 0); wq_read(i, 1)
    a(f"    ds_read_b128 {vr(G2,4)}, v{V_MP} offset:{L_M}")
    a(f"    ds_read_b128 {vr(G2+4,4)}, v{V_MP} offset:{L_M+4096}")
    if stamp:
        for i in range(0, len(pts)+1): a(f"    s_mov_b32 s{S_TS+2*i}, 0")
    a(f"L_step_{name}:")
    a("    s_waitcnt lgkmcnt(0)")
    a("    s_barrier")
    if opt.get('steplog'):
        a(f"""    s_lshl_b32 s98, s{S_H}, 10
    s_lshl_b32 s93, s{S_STEP}, 3
    s_add_u32 s98, s98, s93
    s_add_u32 s98, s98, {WS_FLAG + 0x20000}
    v_mov_b32 v32, s96
    v_mov_b32 v33, s96
    s_memtime s[96:97]
    s_mov_b64 exec, s[{S_W0}:{S_W0+1}]
    buffer_store_dwordx2 v[32:33], off, {ws}, s98
    s_mov_b64 exec, -1""")
    if opt.get('winlog'):
        a(f"    s_and_b32 s{S_T0}, s{S_STEP}, 7\n    s_cmp_lg_u32 s{S_T0}, 0\n    s_cbranch_scc1 L_nowin_{name}")
        for k in range(8):
            a(f"    s_cmp_eq_u32 s{S_STEP}, {8*k}\n    s_cbranch_scc0 L_win{k}_{name}\n    s_memtime s[{76+2*k}:{77+2*k}]\nL_win{k}_{name}:")
        a(f"L_nowin_{name}:")
    if opt.get('rawlog'):
        npt = len(pts)
        a(f"""    s_lshl_b32 s98, s{S_H}, 2
    s_add_u32 s98, s98, s{S_WV}
    s_lshl_b32 s98, s98, 12
    s_lshl_b32 s93, s{S_STEP}, 5
    s_add_u32 s98, s98, s93
    s_add_u32 s98, s98, {WS_FLAG + 0x40000}""")
        for i in range(8):
            a(f"    v_mov_b32 v{32+i}, s{S_TS + 2*i}" if i <= npt else f"    v_mov_b32 v{32+i}, 0")
        a(f"""    s_mov_b64 exec, 1
    buffer_store_dwordx4 v[32:35], off, {ws}, s98
    buffer_store_dwordx4 v[36:39], off, {ws}, s98 offset:16
    s_mov_b64 exec, -1""")
    if stamp:
        for i in range(1, len(pts)+1):
            a(f"    s_sub_u32 s{S_T0}, s{S_TS+2*i}, s{S_TS}\n    s_add_u32 s{79+i}, s{79+i}, s{S_T0}")
    L.reset()
    for i in range(NWB):
        L.tags[('W', i, 0)] = 0; L.tags[('W', i, 1)] = 0
    ts(0)
    KMT = R_A + 28
    for j in range(4): aread(j)
    a.ds(f"ds_read_b32 v{KMT}, v{V_QW} offset:{L_K}", 'km0')
    a.ds(f"ds_read_b32 v{KMT+1}, v{V_QW} offset:{L_K+272}", 'km1')
    a(f"    s_mov_b32 s{S_MW}, s{S_MWN}\n    s_add_u32 s{S_MW2}, s{S_MWN}, 4096")
    if flags and not opt.get('nofl'):
        a(f"""    v_readfirstlane_b32 s{S_T0}, v0
    s_cmp_lt_u32 s{S_T0}, s{S_FLT}
    s_cbranch_scc1 L_kvw_{name}
L_kvok_{name}:
    s_mov_b32 s{S_FLN}, s{S_FLNN}
    s_mov_b32 s{S_FLT}, s{S_FLTN}""")
        def kvtail():
            a(f"""L_kvw_{name}:
    buffer_load_dword v0, off, {ws}, s{S_FLN} sc1
    s_waitcnt vmcnt(0)
    v_readfirstlane_b32 s{S_T0}, v0
    s_cmp_ge_u32 s{S_T0}, s{S_FLT}
    s_cbranch_scc1 L_kvok_{name}
    s_sleep 2
    s_add_u32 s{S_RETRY}, s{S_RETRY}, 1
    s_cmp_lt_u32 s{S_RETRY}, 1000000
    s_cbranch_scc1 L_kvw_{name}
    s_branch L_abort_{name}""")
        tails.append(kvtail)
    wqueue = [(i, hf) for i in range(NWB, 16) for hf in range(2)]
    def nextw():
        if wqueue:
            i, hf = wqueue.pop(0); wq_read(i, hf)
    KXF = 96
    def kxr(i): a.ds(f"ds_read_b128 {vr(KXF + 4*i, 4)}, v{V_L16} offset:{L_KX + i*1024}", ('KX', i))
    vq = {}
    def at(slot, f): vq.setdefault(slot, []).append(f)
    def pubch():
        if not flags or opt.get('nofch'): return
        a(f"""    v_mov_b32 v0, s{S_FCV}
    s_mov_b64 exec, s[{S_W0}:{S_W0+1}]
    buffer_store_dword v0, off, {ws}, s{S_FCH} sc1
    s_mov_b64 exec, -1""")
    def pf():
        a(f"    v_lshlrev_b32 v{V_TR}, 2, v{V_L16}")
        a(f"    buffer_load_dword v{V_TR}, v{V_TR}, {ws}, s{S_PF} offen")
    def flagload():
        if flags and not opt.get('nofl'): a(f"    buffer_load_dword v0, off, {ws}, s{S_FLN} sc1")
    spec = opt.get('spec2') or opt.get('spec1')
    vx = [(V_VBX, 0), (V_VBX+4, 512), (V_VBY, 1024), (V_VBY+4, 1536)]
    def vxl(q): a(f"    buffer_load_dwordx2 {vr(vx[q][0],2)}, v{V_VX}, {ws}, s{S_VN} offen offset:{vx[q][1]} sc1")
    def reset3():
        a(f"    s_mov_b64 exec, s[{S_MEX}:{S_MEX+1}]")
        a(f"    buffer_store_dword v{V_NEG1}, v{V_MS}, {ws}, s{S_MX} offen")
        a(f"    s_mov_b64 exec, -1")
    NV0 = opt.get('nv0', 4)
    start = []; c = 0
    for j in range(8):
        start.append(c); c += 6 if j < NV0 else 4
    nslots = c
    consumed = {}
    for j in range(8): consumed[2*j] = start[j]; consumed[2*j+1] = start[j] + 1
    at(2, lambda: (a("    s_waitcnt vmcnt(0)") if spec else None, vxl(0)))
    at(4, lambda: aread(4)); at(5, lambda: aread(5)); at(10, lambda: aread(6))
    at(6, lambda: vxl(1)); at(10, lambda: vxl(2)); at(14, lambda: vxl(3))
    at(16, lambda: (a(f"    v_lshrrev_b32 v0, 2, v{V_L16}"), a(f"    buffer_store_dword v{V_VBX+2}, v0, {ws}, s{S_VMP} offen sc1")))
    at(17, lambda: a(f"    buffer_store_dword v{V_VBY+2}, v0, {ws}, s{S_VMP} offen offset:256 sc1"))
    at(11, lambda: (L.need('km1'), a("    s_nop 0")) if False else None)
    at(20, lambda: (L.need('km1'), a(f"    buffer_store_dword v{KMT}, v{V_KM}, {ws}, s{S_KMP} offen sc1")))
    at(21, lambda: (a(f"    buffer_store_dword v{KMT+1}, v{V_KM}, {ws}, s{S_KMP} offen offset:16 sc1"), aread(7)))
    at(22, pubch); at(23, pf); at(26, flagload)
    freeat = {0: consumed[11], 1: consumed[11], 2: consumed[12], 3: consumed[12], 4: consumed[13], 5: consumed[13], 6: consumed[14], 7: consumed[14]}
    kxq = list(range(8))
    slot = 0
    def after():
        nonlocal slot
        did = False
        if wqueue:
            i, hf = wqueue[0]
            if slot >= consumed[i - NWB]:
                wqueue.pop(0); wq_read(i, hf); did = True
        if not did and not wqueue and kxq and slot >= freeat[kxq[0]]:
            kxr(kxq.pop(0))
        for f in vq.get(slot, []): f()
        slot += 1
    vs = []
    for j in range(8):
        vs.append(f"    v_smfmac_f32_16x16x64_bf16 {vr(VX,4)}, {A(j)}, {wv(0,KS[j])}, v{V_IDX}")
        vs.append(f"    v_smfmac_f32_16x16x64_bf16 {vr(VY,4)}, {A(j)}, {wv(1,KS[j])}, v{V_IDX}")
    for j in range(8):
        ks = KS[j]
        if j in (1, 2, 4): ts(f'j{j}')
        L.need(('A', j), ('W', 2*j, 1), ('W', 2*j+1, 1))
        a(f"    v_smfmac_f32_16x16x64_bf16 {vr(QX,4)}, {A(j)}, {vr(WB[(2*j) % NWB],8)}, v{V_IDX}"); after()
        a(f"    v_smfmac_f32_16x16x64_bf16 {vr(QY,4)}, {A(j)}, {vr(WB[(2*j+1) % NWB],8)}, v{V_IDX}"); after()
        a(f"    v_smfmac_f32_16x16x64_bf16 {vr(KX_,4)}, {A(j)}, {wk(0,ks)}, v{V_IDX}"); after()
        a(f"    v_smfmac_f32_16x16x64_bf16 {vr(KY,4)}, {A(j)}, {wk(1,ks)}, v{V_IDX}"); after()
        if j < NV0:
            a(vs[2*j]); after()
            a(vs[2*j+1]); after()
    assert not wqueue, wqueue
    ts('QK')
    QF = 64; KF = R_A
    vr_ = vs[2*NV0:]
    def nv():
        if vr_: a(vr_.pop(0))
    nv()
    if kxq: kxr(kxq.pop(0))
    nv()
    if kxq: kxr(kxq.pop(0))
    a(f"    v_add_f32 v{QX}, v{QX}, v{QX+1}")
    a(f"    v_add_f32 v{QX+2}, v{QX+2}, v{QX+3}")
    a(f"    v_add_f32 v{QY}, v{QY}, v{QY+1}")
    a(f"    v_add_f32 v{QY+2}, v{QY+2}, v{QY+3}")
    a(f"    v_cvt_pk_bf16_f32 v{QX}, v{QX}, v{QY}")
    a(f"    v_cvt_pk_bf16_f32 v{QX+2}, v{QX+2}, v{QY+2}")
    a(f"    v_add_f32 v{KX_}, v{KX_}, v{KX_+1}")
    a.ds(f"ds_write_b32 v{V_QW}, v{QX} offset:{L_Q}")
    a(f"    v_add_f32 v{KX_+2}, v{KX_+2}, v{KX_+3}")
    a.ds(f"ds_write_b32 v{V_QW}, v{QX+2} offset:{L_Q+272}")
    a(f"    v_add_f32 v{KY}, v{KY}, v{KY+1}")
    a(f"    v_add_f32 v{KY+2}, v{KY+2}, v{KY+3}")
    a(f"    v_cvt_pk_bf16_f32 v{KX_}, v{KX_}, v{KY}")
    a(f"    v_cvt_pk_bf16_f32 v{KX_+2}, v{KX_+2}, v{KY+2}")
    a.ds(f"ds_write_b32 v{V_QW}, v{KX_} offset:{L_K}")
    a.ds(f"ds_write_b32 v{V_QW}, v{KX_+2} offset:{L_K+272}", 'kw')
    ts('vpost')
    while kxq: kxr(kxq.pop(0))
    nv()
    a(f"    buffer_store_dword v{V_NEG1}, v{V_P1R}, {ws}, s{S_P1X} offen")
    nv()
    a(f"    buffer_store_dword v{V_NEG1}, v{V_P1R}, {ws}, s{S_P1X} offen offset:1024")
    nv()
    reset3()
    L.need('kw')
    a("    s_barrier")
    ts('B2')
    for ks in range(4):
        a.ds(f"ds_read_b128 {vr(QF + 4*ks, 4)}, v{V_QR} offset:{L_Q + ks*64}", ('QF', ks))
        nv()
    for ks in range(4):
        a.ds(f"ds_read_b128 {vr(KF + 4*ks, 4)}, v{V_KR} offset:{L_K + ks*64}", ('KF', ks))
        nv()
    while vr_: nv()
    ts('V')
    ST0, ST1, ST2 = R_A + 16, R_A + 20, R_A + 24
    LBR, OX, OY, LL = 88, 92, 96, 100
    WACC = 104
    for ks in range(4):
        L.need(('QF', ks), ('KX', ks), ('KX', 4 + ks))
        c0 = "0" if ks == 0 else vr(ST0,4)
        c1 = "0" if ks == 0 else vr(ST1,4)
        a(f"    v_mfma_f32_16x16x32_bf16 {vr(ST0,4)}, {vr(KXF + 4*ks,4)}, {vr(QF+4*ks,4)}, {c0}")
        if ks == 0: a.ds(f"ds_read_b128 {vr(LBR,4)}, v{V_L16} offset:{L_LB}", 'LB')
        if ks == 1: z2(OX); z2(OX+2)
        if ks == 2: a(f"    v_add_f32 v{VX}, v{VX}, v{VX+1}\n    v_add_f32 v{VX+2}, v{VX+2}, v{VX+3}")
        if ks == 3: a(f"    v_cvt_pk_bf16_f32 v{V_VBX+2}, v{VX}, v{VX+2}")
        a(f"    v_mfma_f32_16x16x32_bf16 {vr(ST1,4)}, {vr(KXF + 16 + 4*ks,4)}, {vr(QF+4*ks,4)}, {c1}")
        if ks == 1: z2(OY); z2(OY+2)
        if ks == 2: a(f"    v_add_f32 v{VY}, v{VY}, v{VY+1}\n    v_add_f32 v{VY+2}, v{VY+2}, v{VY+3}")
        if ks == 3: a(f"    v_cvt_pk_bf16_f32 v{V_VBY+2}, v{VY}, v{VY+2}")
    ts('Sx')
    X = 80
    X = R_A + 28
    for ks in range(4):
        L.need(('KF', ks))
        c2 = "0" if ks == 0 else vr(ST2,4)
        a(f"    v_mfma_f32_16x16x32_bf16 {vr(ST2,4)}, {vr(KF + 4*ks,4)}, {vr(QF+4*ks,4)}, {c2}")
        if ks == 1:
            a(f"    v_cndmask_b32 v{X}, v{ST0}, v{ST1}, s[{S_HALF}:{S_HALF+1}]")
            a(f"    v_cndmask_b32 v{X+1}, v{ST0+1}, v{ST1+1}, s[{S_HALF}:{S_HALF+1}]")
        if ks == 2:
            a(f"    v_cndmask_b32 v{X+2}, v{ST0+2}, v{ST1+2}, s[{S_HALF}:{S_HALF+1}]")
            a(f"    v_cndmask_b32 v{X+3}, v{ST0+3}, v{ST1+3}, s[{S_HALF}:{S_HALF+1}]")
        if ks == 3:
            a("    s_nop 0")
    M_, T_ = 64, 65
    a(f"    v_max3_f32 v{M_+16}, v{X}, v{X+1}, v{X+2}")
    a(f"""    s_cmp_eq_u32 s{S_STEP}, {opt.get('nsteps',64)-1}
    s_cbranch_scc1 L_done_{name}""")
    a(f"    v_max_f32 v{M_+16}, v{M_+16}, v{X+3}")
    z2(WACC); z2(WACC+2); z2(WACC+4)
    ts('S')
    M_ = 80; T_ = 81
    a(f"    v_max3_f32 v{T_}, v{ST2}, v{ST2+1}, v{ST2+2}")
    a(f"    v_max3_f32 v{M_}, v{M_}, v{T_}, v{ST2+3}")
    z2(WACC+6); z2(WACC+8)
    a(f"    v_max_f32_dpp v{M_}, v{M_}, v{M_} quad_perm:[1,0,3,2] row_mask:0xf bank_mask:0xf")
    a(f"    v_mov_b32 v{T_}, v{M_}")
    z2(WACC+10); z2(WACC+12)
    a(f"    v_permlane16_swap_b32 v{M_}, v{T_}")
    a(f"    v_max_f32 v{M_}, v{M_}, v{T_}")
    a(f"    v_mov_b32 v{T_}, v{M_}")
    z2(WACC+14)
    a("    s_nop 0")
    a(f"    v_permlane32_swap_b32 v{M_}, v{T_}")
    a(f"    v_max_f32 v{M_}, v{M_}, v{T_}")
    a(f"    v_mul_f32 v{M_}, s{S_C}, v{M_}")
    E = 64
    srcs = [X, X+1, ST2, ST2+1, X+2, X+3, ST2+2, ST2+3]
    for i, s_ in enumerate(srcs):
        a(f"    v_fma_f32 v{E+i}, v{s_}, s{S_C}, -v{M_}")
    for i in range(8):
        a(f"    v_exp_f32 v{E+i}, v{E+i}")
    P = ST0
    for d in range(4): a(f"    v_cvt_pk_bf16_f32 v{P+d}, v{E+2*d}, v{E+2*d+1}")
    ts('smax')
    ts('prePV')
    L.need('LB')
    nyoung = ((0 if opt.get('nofch') else 1) + (0 if opt.get('nofl') else 1) if flags else 0) + 1 + 3 + 2 + 2
    a(f"    s_waitcnt vmcnt({nyoung})")
    ts('vxok')
    a("    s_nop 0")
    a(f"    v_mfma_f32_16x16x32_bf16 {vr(LL,4)}, {vr(P,4)}, {vr(LBR,4)}, 0")
    a(f"    v_smfmac_f32_16x16x64_bf16 {vr(OX,4)}, {vr(P,4)}, {vr(V_VBX,8)}, v{V_IDX}")
    a(f"    v_smfmac_f32_16x16x64_bf16 {vr(OY,4)}, {vr(P,4)}, {vr(V_VBY,8)}, v{V_IDX}")
    ts('PV')
    a("    s_nop 0")
    a(f"    v_add_f32 v{LL}, v{LL}, v{LL+1}")
    a(f"    v_add_f32 v{LL+2}, v{LL+2}, v{LL+3}")
    a(f"    v_rcp_f32 v{LL}, v{LL}")
    a(f"    v_rcp_f32 v{LL+2}, v{LL+2}")
    a("    s_nop 0")
    a(f"    v_add_f32 v{OX}, v{OX}, v{OX+1}")
    a(f"    v_add_f32 v{OX+2}, v{OX+2}, v{OX+3}")
    a(f"    v_add_f32 v{OY}, v{OY}, v{OY+1}")
    a(f"    v_add_f32 v{OY+2}, v{OY+2}, v{OY+3}")
    a(f"    v_mul_f32 v{OX}, v{OX}, v{LL}")
    a(f"    v_mul_f32 v{OY}, v{OY}, v{LL}")
    a(f"    v_mul_f32 v{OX+2}, v{OX+2}, v{LL+2}")
    a(f"    v_mul_f32 v{OY+2}, v{OY+2}, v{LL+2}")
    a(f"    v_cvt_pk_bf16_f32 v{OX}, v{OX}, v{OY}")
    a(f"    v_cvt_pk_bf16_f32 v{OX+2}, v{OX+2}, v{OY+2}")
    ts('opost')
    a.ds(f"ds_write_b32 v{V_QW}, v{OX} offset:{L_O}")
    a.ds(f"ds_write_b32 v{V_QW}, v{OX+2} offset:{L_O+272}", 'ow')
    L.need('ow')
    a("    s_barrier")
    ts('B3')
    OA = 64
    for kp in range(4):
        a.ds(f"ds_read_b128 {vr(OA+4*kp,4)}, v{V_QR} offset:{L_O + kp*64}", ('O', kp))
    SELR = R_A; RD = R_A + 4; G1 = R_A + 8
    a.ds(f"ds_read_b128 {vr(SELR,4)}, v{V_L16} offset:{L_SEL}", 'SEL')
    def pshot():
        a(f"    buffer_load_dwordx4 {vr(G1,4)}, v{V_P1R}, {ws}, s{S_P1W} offen sc1")
        a(f"    buffer_load_dwordx4 {vr(G1+4,4)}, v{V_P1R}, {ws}, s{S_P1W} offen offset:1024 sc1")
    for m_ in range(4):
        for kp in range(4):
            L.need(('O', kp))
            a(f"    v_smfmac_f32_16x16x64_bf16 {vr(WACC+4*m_,4)}, {vr(OA+4*kp,4)}, {wo(m_,kp)}, v{V_IDX}")
            if kp == 0: ts(f'w{m_}')
            if m_ == 0 and kp == 1:
                a(f"    s_mov_b32 m0, s{S_KM0}")
            if m_ >= 1 and kp == opt.get('postk', 3):
                wo_post(a, WACC, m_ - 1, ws)
    a("    s_nop 7")
    wo_post(a, WACC, 3, ws)
    ts('Wo')
    if opt.get('ackdiag'):
        a("    s_waitcnt vmcnt(14)")
        ts('km')
        a("    s_waitcnt vmcnt(13)")
        ts('fch')
        a("    s_waitcnt vmcnt(12)")
        ts('pf')
        a("    s_waitcnt vmcnt(11)")
        ts('flag')
        a("    s_waitcnt vmcnt(8)")
        ts('old')
        a("    s_waitcnt vmcnt(0)")
        ts('ack')
    L.need('SEL')
    dw = opt.get('dw', (0, 40, 100, 180))
    a(f"""    s_cmp_eq_u32 s{S_WV}, 3
    s_cbranch_scc1 L_{name}_t3
    s_cmp_eq_u32 s{S_WV}, 2
    s_cbranch_scc1 L_{name}_t2
    s_cmp_eq_u32 s{S_WV}, 1
    s_cbranch_scc1 L_{name}_t1""")
    for w_ in range(4):
        if w_ > 0: a(f"L_{name}_t{w_}:")
        delay(a, dw[w_])
        if w_ < 3: a(f"    s_branch L_{name}_td")
    a(f"L_{name}_td:")
    pshot()
    if opt.get('spec1'):
        delay(a, opt['spec1'])
        pshot()
        a(f"""    s_waitcnt vmcnt(2)
    v_max_u32 v{R_A+24}, v{G1}, v{G1+4}
    v_cmp_eq_u32 vcc, -1, v{R_A+24}
    s_cbranch_vccz L_{name}_p1_ok
    s_waitcnt vmcnt(0)""")
    else:
        a("    s_waitcnt vmcnt(0)")
    check_loop(name + "_p1", G1, R_A + 24, pshot, cnt1)
    ts('p1ok')
    a(f"    v_mfma_f32_16x16x32_bf16 {vr(RD,4)}, {vr(SELR,4)}, {vr(G1,4)}, 0")
    a(f"    v_mfma_f32_16x16x32_bf16 {vr(RD,4)}, {vr(SELR,4)}, {vr(G1+4,4)}, {vr(RD,4)}")
    a("    s_nop 7")
    a(f"    v_add_f32_dpp v{RD}, v{RD}, v{RD} row_ror:8 row_mask:0xf bank_mask:0xf")
    a(f"    v_add_f32_dpp v{RD+1}, v{RD+1}, v{RD+1} row_ror:8 row_mask:0xf bank_mask:0xf")
    a("    s_nop 0")
    a(f"    v_add_f32_dpp v{RD}, v{RD}, v{RD} row_ror:4 row_mask:0xf bank_mask:0xf")
    a(f"    v_add_f32_dpp v{RD+1}, v{RD+1}, v{RD+1} row_ror:4 row_mask:0xf bank_mask:0xf")
    a(f"    v_cvt_pk_bf16_f32 v{RD}, v{RD}, v{RD+1}")
    a(f"    s_mov_b64 exec, s[{S_MEX}:{S_MEX+1}]")
    a(f"    buffer_store_dword v{RD}, v{V_MS}, {ws}, s{S_MW} offen")
    a(f"    s_mov_b64 exec, -1")
    ts('Mst')
    a(f"    buffer_load_dwordx4 v{V_L16}, {ws}, s{S_KN} offen sc1 lds")
    a(f"    buffer_load_dwordx4 v{V_L16}, {ws}, s{S_KN} offen offset:1024 sc1 lds")
    a(f"    s_add_u32 s{S_KN}, s{S_KN}, {32*8192}")
    if opt.get('ackdiag2'):
        a("    s_waitcnt vmcnt(2)")
        ts('mack')
        a("    s_waitcnt vmcnt(0)")
        ts('dma')
    def fillers():
        L.reset()
        for i in range(NWB):
            wq_read(i, 0); wq_read(i, 1)
        a(f"""    s_xor_b32 s{S_P1W}, s{S_P1W}, 0x40000
    s_xor_b32 s{S_P1W2}, s{S_P1W2}, 0x40000
    s_xor_b32 s{S_P1W3}, s{S_P1W3}, 0x40000
    s_xor_b32 s{S_P1W4}, s{S_P1W4}, 0x40000
    s_xor_b32 s{S_P1X}, s{S_P1X}, 0x40000
    s_add_u32 s{S_MX}, s{S_MX}, 8192
    s_and_b32 s{S_MX}, s{S_MX}, {hex(WS_M | 0x7fff)}
    s_add_u32 s{S_KMP}, s{S_KMP}, 65536
    s_add_u32 s{S_VMP}, s{S_VMP}, 65536
    s_add_u32 s{S_VN}, s{S_VN}, {32*8192}
    s_add_u32 s{S_T0}, s{S_PF}, {32*8192}
    s_cmp_lt_u32 s{S_STEP}, 61
    s_cselect_b32 s{S_PF}, s{S_T0}, s{S_PF}
    s_mov_b32 s{S_FCV}, s{S_STEP}
    s_add_u32 s{S_STEP}, s{S_STEP}, 1
    s_add_u32 s{S_MWN}, s{S_MW}, 8192
    s_and_b32 s{S_MWN}, s{S_MWN}, {hex(WS_M | 0x7fff)}""")
        if flags:
            a(f"""    s_add_u32 s{S_T1}, s{S_STEP}, 3
    s_min_u32 s{S_T1}, s{S_T1}, 63
    s_lshr_b32 s{S_FLTN}, s{S_T1}, 2
    s_add_u32 s{S_FLTN}, s{S_FLTN}, 1
    s_and_b32 s{S_T1}, s{S_T1}, 3
    s_lshl_b32 s{S_T1}, s{S_T1}, 5
    s_add_u32 s{S_T1}, s{S_T1}, s{S_H}
    s_lshl_b32 s{S_T1}, s{S_T1}, 2
    s_add_u32 s{S_FLNN}, s{S_T1}, {F_KV}""")
        for i in range(12): z2(ACC + 2*i)
    if EARLY or not opt.get('fillafter'): fillers()
    d2e, d2l = opt.get('d2', (0, 0))
    if EARLY: a(f"    s_cmp_ge_u32 s{S_WV}, 2\n    s_cbranch_scc1 L_{name}_late")
    delay(a, d2e)
    mshot()
    if opt.get('fillafter') and not opt.get('spec2'): fillers()
    if opt.get('spec2'):
        if opt.get('fillafter'): fillers()
        else: delay(a, opt['spec2'])
        mshot()
        a(f"""    s_waitcnt vmcnt(2)
    v_max_u32 v{R_A+24}, v{G2}, v{G2+4}
    v_cmp_eq_u32 vcc, -1, v{R_A+24}
    s_cbranch_vccz L_{name}_m2e_ok
    s_waitcnt vmcnt(0)""")
    else:
        a("    s_waitcnt vmcnt(0)")
    check_loop(name + "_m2e", G2, R_A + 24, mshot, cnt2)
    ts('p2ok')
    a(f"    ds_write_b128 v{V_MP}, {vr(G2,4)} offset:{L_M}")
    a(f"    ds_write_b128 v{V_MP}, {vr(G2+4,4)} offset:{L_M+4096}")
    a(f"    s_branch L_step_{name}")
    if EARLY:
        a(f"L_{name}_late:")
        delay(a, d2l)
        mshot()
        a(f"    s_branch L_step_{name}")
    for t in tails: t()
    a(f"L_abort_{name}:\n    s_mov_b64 exec, -1\n    s_endpgm")
    a(f"L_done_{name}:")
    a(f"""    ds_read_b32 v60, v{V_QW} offset:{L_K}
    ds_read_b32 v61, v{V_QW} offset:{L_K+272}
    v_lshrrev_b32 v62, 2, v{V_L16}
    s_add_u32 s{S_KMP}, s{S_KMP}, 65536
    s_add_u32 s{S_VMP}, s{S_VMP}, 65536
    buffer_store_dword v{V_VBX+2}, v62, {ws}, s{S_VMP} offen sc1
    buffer_store_dword v{V_VBY+2}, v62, {ws}, s{S_VMP} offen offset:256 sc1
    s_waitcnt lgkmcnt(0)
    buffer_store_dword v60, v{V_KM}, {ws}, s{S_KMP} offen sc1
    buffer_store_dword v61, v{V_KM}, {ws}, s{S_KMP} offen offset:16 sc1""")
    if flags:
        a(f"""    s_waitcnt vmcnt(0)
    s_barrier
    s_cmp_lg_u32 s{S_WV}, 0
    s_cbranch_scc1 L_nopub2_{name}
    v_mov_b32 v62, 64
    s_mov_b64 exec, 1
    buffer_store_dword v62, off, {ws}, s{S_FCH} sc1
    s_mov_b64 exec, -1
L_nopub2_{name}:""")
```

```python
import sys
from asmlib import *
import chain as C
import bulk as B
from chain import *
from chain2 import chain_loop2
from bulk import B_WS, B_WV, B_T0, B_T1, B_T2, B_T3, B_SET, B_INST, B_RET, B_FLG, proj_role, scan_role, y_role, attn_role, oproj_role, wait_flag

NAME = "concat_heads__memory_aug_recurrent_mem_tr__ssm_conv_s5__prompt_kernel"
HEADER = open('concat_heads__memory_aug_recurrent_mem_tr__ssm_conv_s5__prompt.s.ref').read().split("; Override launch geometry")[0]

def gen(opt):
    name = NAME
    DIAG = opt.get('diag')
    def stamp(a, idx, treg0, vt):
        if not DIAG: return
        a(f"""    s_memrealtime s[{treg0}:{treg0+1}]
    s_waitcnt lgkmcnt(0)
    v_mov_b32 v{vt or 250}, s{treg0}
    s_mov_b64 exec, 1
    buffer_store_dword v{vt or 250}, off, s[8:11], s99 offset:{idx*4}
    s_mov_b64 exec, -1""")
    n = "m"
    a = Asm()
    ws = f"s[{S_WS}:{S_WS+3}]"
    a(f""".globl {name}
.p2align 8
.type {name},@function
{name}:
    s_cmp_ge_u32 s2, 256
    s_cbranch_scc1 L_exit
    s_load_dwordx2 s[4:5], s[0:1], 136      ; debug
    s_load_dwordx2 s[{S_WS}:{S_WS+1}], s[0:1], 144      ; ws
    s_getreg_b32 s3, hwreg(HW_REG_XCC_ID, 0, 4)
    s_mov_b32 s{S_WS+2}, {WS_SIZE}
    s_mov_b32 s{S_WS+3}, 0x20000
    s_waitcnt lgkmcnt(0)
    s_lshl_b32 s6, s3, 2
    v_mov_b32 v1, s6
    v_mov_b32 v2, 1
    v_cmp_eq_u32 vcc, 0, v0
    s_and_saveexec_b64 s[6:7], vcc
    global_atomic_add v3, v1, v2, s[4:5] sc0
    s_waitcnt vmcnt(0)
    v_mov_b32 v4, {L_MISC}
    ds_write_b32 v4, v3
    s_waitcnt lgkmcnt(0)
    s_mov_b64 exec, s[6:7]
    s_cmp_lg_u32 s2, 0
    s_cbranch_scc1 L_noz
    v_mov_b32 v8, 0
    v_mov_b32 v9, 0
    v_mov_b32 v10, 0
    v_mov_b32 v11, 0
    v_lshlrev_b32 v5, 4, v0
    s_mov_b32 s6, {WS_FLAG}
    buffer_store_dwordx4 v[8:11], v5, {ws}, s6 offen sc1
    s_add_u32 s6, s6, 4096
    buffer_store_dwordx4 v[8:11], v5, {ws}, s6 offen sc1
    s_add_u32 s6, s6, 4096
    buffer_store_dwordx4 v[8:11], v5, {ws}, s6 offen sc1
    s_add_u32 s6, s6, 4096
    buffer_store_dwordx4 v[8:11], v5, {ws}, s6 offen sc1
    s_waitcnt vmcnt(0)
    s_barrier
    v_mov_b32 v5, 36
    v_mov_b32 v6, 1
    v_cmp_eq_u32 vcc, 0, v0
    s_and_saveexec_b64 s[12:13], vcc
    global_atomic_add v5, v6, s[4:5]
    s_mov_b64 exec, s[12:13]
L_noz:
    s_barrier
    v_mov_b32 v4, {L_MISC}
    ds_read_b32 v3, v4
    s_waitcnt lgkmcnt(0)
    v_readfirstlane_b32 s{S_H}, v3
    v_readfirstlane_b32 s{S_WV}, v0
    s_lshr_b32 s{S_WV}, s{S_WV}, 6
    s_cmp_ge_u32 s{S_H}, 32
    s_cbranch_scc1 L_exit
""")
    if DIAG:
        a(f"""    s_lshl_b32 s99, s3, 5
    s_add_u32 s99, s99, s{S_H}
    s_lshl_b32 s99, s99, 2
    s_add_u32 s99, s99, s{S_WV}
    s_lshl_b32 s99, s99, 5
    s_add_u32 s99, s99, {WS_FLAG + 0x8000}""")
    stamp(a, 0, 96, 0)
    a("""    s_cmp_lg_u32 s3, 0
    s_cbranch_scc1 L_bulk
""")
    if opt.get('nochain'): a("    s_endpgm")
    chain_setup(a, n)
    chain_init_comm(a, n)
    a(f"""    s_waitcnt vmcnt(0)
    s_barrier
    v_mov_b32 v40, 32
    v_mov_b32 v41, 1
    v_cmp_eq_u32 vcc, 0, v0
    s_and_saveexec_b64 s[6:7], vcc
    global_atomic_add v40, v41, s[4:5]
    s_mov_b64 exec, s[6:7]
""")
    chain_load_mem0(a, n)
    chain_load_weights(a, n)
    a(f"""    v_mov_b32 v40, 40
    v_mov_b32 v41, 1
    v_cmp_eq_u32 vcc, 0, v0
    s_and_saveexec_b64 s[6:7], vcc
    global_atomic_add v40, v41, s[4:5]
    s_mov_b64 exec, s[6:7]""")
    stamp(a, 1, 96, 40)
    a(f"""    v_mov_b32 v40, 32
L_initw:
    global_load_dwordx2 v[42:43], v40, s[4:5] sc1
    s_waitcnt vmcnt(0)
    v_readfirstlane_b32 s{S_T0}, v42
    v_readfirstlane_b32 s{S_T1}, v43
    s_cmp_ge_u32 s{S_T0}, 32
    s_cselect_b32 s{S_T0}, 1, 0
    s_and_b32 s{S_T0}, s{S_T0}, s{S_T1}
    s_cmp_lg_u32 s{S_T0}, 0
    s_cbranch_scc1 L_initd
    s_add_u32 s{S_RETRY}, s{S_RETRY}, 1
    s_cmp_lt_u32 s{S_RETRY}, 1000000
    s_cbranch_scc1 L_initw
    s_endpgm
L_initd:
""")
    for sg in range(2):
        a(f"""    s_lshl_b32 s{S_T1}, s{S_H}, 2
    s_add_u32 s{S_T1}, s{S_T1}, {F_KV + sg*128}
L_kv0_{sg}:
    buffer_load_dword v42, off, {ws}, s{S_T1} sc1
    s_waitcnt vmcnt(0)
    v_readfirstlane_b32 s{S_T0}, v42
    s_cmp_ge_u32 s{S_T0}, 1
    s_cbranch_scc1 L_kv0d_{sg}
    s_sleep 2
    s_add_u32 s{S_RETRY}, s{S_RETRY}, 1
    s_cmp_lt_u32 s{S_RETRY}, 1000000
    s_cbranch_scc1 L_kv0_{sg}
    s_endpgm
L_kv0d_{sg}:""")
    a(f"""    s_lshl_b32 s{S_FLN}, s{S_H}, 2
    s_add_u32 s{S_FLN}, s{S_FLN}, {F_KV + 2*128}
    s_mov_b32 s{S_FLT}, 1
    buffer_load_dword v0, off, {ws}, s{S_FLN} sc1
    s_lshl_b32 s{S_T1}, s{S_H}, 13
    s_lshl_b32 s{S_T0}, s{S_WV}, 11
    s_add_u32 s{S_T1}, s{S_T1}, s{S_T0}
    s_add_u32 s{S_T2}, s{S_T1}, {WS_VF}
    s_add_u32 s{S_T1}, s{S_T1}, {WS_KF}
    s_mov_b32 m0, s{S_KM0}
    s_nop 0
    buffer_load_dwordx4 v{V_L16}, {ws}, s{S_T1} offen sc1 lds
    buffer_load_dwordx4 v{V_L16}, {ws}, s{S_T1} offen offset:1024 sc1 lds
    s_waitcnt vmcnt(0)
""")
    copt = dict(opt.get('chain', {})); copt['flags'] = 0 if opt.get('noflags') else 1
    if DIAG and opt.get('steplog'): copt['steplog'] = 1
    stamp(a, 2, 96, 40)
    if DIAG:
        copt['cnt'] = 1
        if opt.get('winlog'): copt['winlog'] = 1; copt['cnt'] = 0
        a("    s_mov_b32 s91, 0\n    s_mov_b32 s92, 0")
        if opt.get('pts'):
            copt['stamp'] = 1; copt['pts'] = opt['pts']
            for i in range(1, 12): a(f"    s_mov_b32 s{79+i}, 0")
    chain_loop2(a, n, copt)
    stamp(a, 3, 96, 40)
    if DIAG:
        a(f"""    v_mov_b32 v40, s91
    v_mov_b32 v41, s92
    s_mov_b64 exec, 1
    buffer_store_dwordx2 v[40:41], off, s[8:11], s99 offset:16
    s_mov_b64 exec, -1""")
        if opt.get('winlog'):
            a("    s_memtime s[92:93]\n    s_waitcnt lgkmcnt(0)")
            for k in range(8): a(f"    v_mov_b32 v{40+k}, s{76+2*k}")
            a("    v_mov_b32 v48, s92")
            a(f"""    s_lshl_b32 s98, s{S_H}, 2
    s_add_u32 s98, s98, s{S_WV}
    s_lshl_b32 s98, s98, 6
    s_add_u32 s98, s98, {WS_FLAG + 0x30000}
    s_mov_b64 exec, 1
    buffer_store_dwordx4 v[40:43], off, s[8:11], s98
    buffer_store_dwordx4 v[44:47], off, s[8:11], s98 offset:16
    buffer_store_dwordx4 v[48:51], off, s[8:11], s98 offset:32
    s_mov_b64 exec, -1""")
        if opt.get('pts'):
            a(f"""    s_lshl_b32 s98, s{S_H}, 2
    s_add_u32 s98, s98, s{S_WV}
    s_lshl_b32 s98, s98, 6
    s_add_u32 s98, s98, {WS_FLAG + 0x30000}""")
            for i in range(12): a(f"    v_mov_b32 v{40+i}, s{80+i}")
            a(f"""    s_mov_b64 exec, 1
    buffer_store_dwordx4 v[40:43], off, s[8:11], s98
    buffer_store_dwordx4 v[44:47], off, s[8:11], s98 offset:16
    buffer_store_dwordx4 v[48:51], off, s[8:11], s98 offset:32
    s_mov_b64 exec, -1""")
    a("    s_waitcnt vmcnt(0)\n    s_endpgm")
    a("L_bulk:")
    if opt.get('nobulk'): a("    s_endpgm")
    a(f"""    s_sub_u32 s{B_T0}, s3, 1
    s_lshl_b32 s{B_T0}, s{B_T0}, 5
    s_add_u32 s60, s{B_T0}, s{S_H}              ; b
    s_mov_b32 s{B_WV}, s{S_WV}
    s_mov_b32 s{B_RET}, 0
    s_cmp_ge_u32 s60, 224
    s_cbranch_scc1 L_exit
    v_mov_b32 v40, 36
L_bfw:
    global_load_dword v42, v40, s[4:5] sc1
    s_waitcnt vmcnt(0)
    v_readfirstlane_b32 s{B_T0}, v42
    s_cmp_ge_u32 s{B_T0}, 1
    s_cbranch_scc1 L_bfd
    s_add_u32 s{B_RET}, s{B_RET}, 1
    s_cmp_lt_u32 s{B_RET}, 1000000
    s_cbranch_scc1 L_bfw
    s_endpgm
""")
    CW = 32 if opt.get('delay') else 0
    a(f"""L_bfd:
    s_and_b32 s{B_SET}, s60, 3
    s_cmp_lt_u32 s60, 128
    s_cbranch_scc1 L_p_kv
    v_mov_b32 v40, 40
L_cww:
    global_load_dword v42, v40, s[4:5] sc1
    s_waitcnt vmcnt(0)
    v_readfirstlane_b32 s{B_T0}, v42
    s_cmp_ge_u32 s{B_T0}, {CW}
    s_cbranch_scc1 L_cwd
    s_sleep 8
    s_add_u32 s{B_RET}, s{B_RET}, 1
    s_cmp_lt_u32 s{B_RET}, 1000000
    s_cbranch_scc1 L_cww
    s_endpgm
L_cwd:
    s_cmp_ge_u32 s60, 208
    s_cbranch_scc1 L_spare
    s_cmp_lt_u32 s60, 192
    s_cbranch_scc1 L_p_q
    s_sub_u32 s{B_INST}, s60, 192
    s_lshr_b32 s{B_INST}, s{B_INST}, 2
""")
    if opt.get('nossm'): a("    s_endpgm")
    proj_role(a, "pu", 'U')
    a(f"    s_branch L_phase2\nL_p_q:\n    s_sub_u32 s{B_INST}, s60, 128\n    s_lshr_b32 s{B_INST}, s{B_INST}, 2")
    if opt.get('noq'): a("    s_endpgm")
    proj_role(a, "pq", 'Q')
    a(f"    s_branch L_phase2\nL_p_kv:\n    s_lshr_b32 s{B_INST}, s60, 2")
    proj_role(a, "pk", 'KV')
    a("L_phase2:")
    stamp(a, 1, 96, 0)
    if opt.get('nophase2'): a("    s_endpgm")
    a(f"""    s_barrier
    s_cmp_ge_u32 s60, 176
    s_cbranch_scc1 L_scan
    s_cmp_ge_u32 s60, 80
    s_cbranch_scc1 L_t3a
    s_and_b32 s{B_T0}, s60, 16
    s_cmp_eq_u32 s{B_T0}, 0
    s_cbranch_scc1 L_t4a
    s_lshr_b32 s{B_T0}, s60, 5
    s_lshl_b32 s{B_T0}, s{B_T0}, 4
    s_and_b32 s{B_T1}, s60, 15
    s_add_u32 s{B_T0}, s{B_T0}, s{B_T1}
    s_branch L_t3b
L_t3a:
    s_sub_u32 s{B_T0}, s60, 48                  ; b in [80,176) -> 32..127
L_t3b:
    s_lshl_b32 s{B_T0}, s{B_T0}, 2
    s_add_u32 s{B_T0}, s{B_T0}, s{B_WV}
    s_and_b32 s{B_INST}, s{B_T0}, 63
    s_lshr_b32 s{B_SET}, s{B_T0}, 6
""")
    if opt.get('not3'): a("    s_endpgm")
    attn_role(a, "t3", 8)
    stamp(a, 3, 96, 0)
    a("    s_waitcnt vmcnt(0)")
    a(f"""    s_endpgm
L_t4a:
    s_lshr_b32 s{B_SET}, s60, 5                 ; 0,1,2
    s_and_b32 s{B_INST}, s60, 15
    s_branch L_t4
L_spare:""")
    if opt.get('nophase2'): a("    s_endpgm")
    a(f"""    s_mov_b32 s{B_SET}, 3
    s_sub_u32 s{B_INST}, s60, 208
L_t4:
""")
    if opt.get('not3'): a("    s_endpgm")
    oproj_role(a, "t4", 4)
    stamp(a, 3, 96, 0)
    a("    s_waitcnt vmcnt(0)")
    a(f"""    s_endpgm
L_scan:
    s_sub_u32 s63, s60, 176                     ; task 0..31
    s_mov_b32 s{B_INST}, s63
""")
    if opt.get('nossm'): a("    s_endpgm")
    scan_role(a, "sc")
    stamp(a, 2, 96, 0)
    a(f"""    s_barrier
    s_lshr_b32 s{B_SET}, s63, 2
    s_and_b32 s{B_INST}, s63, 3
""")
    y_role(a, "yy")
    stamp(a, 3, 96, 0)
    a("    s_waitcnt vmcnt(0)")
    a("L_exit:\n    s_endpgm")
    text = HEADER + "; @launch grid=(256,1,1) block=(256,1,1) lds=163840\n"
    text += '.amdgcn_target "amdgcn-amd-amdhsa--gfx950"\n.text\n' + a.text()
    text += '.section .rodata,"a"\n.p2align 6\n' + kdesc(name)
    return text

if __name__ == '__main__':
    opt = dict(chain=dict(v2=1, earlyhalf=0, dw=(64,128,192,256), d2=(140,0), spec1=100, spec2=120, fillafter=1, postk=3, nv0=0))
    for x in sys.argv[2:]:
        if '=' in x:
            k_, v_ = x.split('=', 1)
            if k_ == 'pts': opt['pts'] = v_.split(',')
            elif k_.startswith('c.'): opt['chain'][k_[2:]] = eval(v_)
            else: opt[k_] = eval(v_)
        else: opt[x] = 1
    t = gen(opt)
    out = sys.argv[1] if len(sys.argv) > 1 else 'concat_heads__memory_aug_recurrent_mem_tr__ssm_conv_s5__prompt.s'
    open(out, 'w').write(t)
    print("written", out, len(t), "bytes")
```

```python
from asmlib import *
from chain import WS_KF, WS_VF, WS_QF, WS_OF, WS_KM, WS_VM, WS_FLAG, WS_SIZE

WS_U   = 0x6000000
WS_H   = 0x6800000
F_KV   = WS_FLAG + 0x000
F_Q    = WS_FLAG + 0x200
F_CH   = WS_FLAG + 0x1000
F_O    = WS_FLAG + 0x2000
F_U    = WS_FLAG + 0x500
F_SC   = WS_FLAG + 0x580
FLAG_BYTES = 0x4000

B_WS = 8
B_X  = 12
B_W  = 16
B_O  = 20
B_WV = 24
B_T0, B_T1, B_T2, B_T3 = 25, 26, 27, 28
B_SET, B_INST = 29, 30
B_SEG = 31
B_OUT = 32
B_CNT = 33
B_FLG = 34
B_RET = 35
B_PUB = 36

XROW = 1040
XBUF = 32 * XROW

def srd(a, base, ptr_off, nbytes):
    a(f"""    s_load_dwordx2 s[{base}:{base+1}], s[0:1], {ptr_off}
    s_mov_b32 s{base+2}, {nbytes}
    s_mov_b32 s{base+3}, 0x20000
    s_waitcnt lgkmcnt(0)""")

def proj_role(a, name, kind, nsets=4, flags=True):
    ws = f"s[{B_WS}:{B_WS+3}]"
    L = a.lds
    a(f"""    v_and_b32 v1, 63, v0                ; lane
    v_and_b32 v2, 31, v1                ; c = lane&31
    v_lshrrev_b32 v3, 5, v1             ; hi
    v_lshlrev_b32 v4, 4, v1             ; lane*16""")
    if kind in ('KV', 'Q'):
        if kind == 'KV':
            a(f"""    s_cmp_lt_u32 s{B_WV}, 2
    s_cselect_b32 s{B_T0}, 24, 32
    s_load_dwordx2 s[{B_W}:{B_W+1}], s[0:1], s{B_T0}
    s_mov_b32 s{B_W+2}, 0x400000
    s_mov_b32 s{B_W+3}, 0x20000
    s_lshl_b32 s{B_T1}, s{B_INST}, 8
    s_waitcnt lgkmcnt(0)""")
        else:
            a(f"""    s_load_dwordx2 s[{B_W}:{B_W+1}], s[0:1], 16
    s_mov_b32 s{B_W+2}, 0x400000
    s_mov_b32 s{B_W+3}, 0x20000
    s_lshr_b32 s{B_T0}, s{B_WV}, 1
    s_lshl_b32 s{B_T1}, s{B_INST}, 1
    s_add_u32 s{B_T1}, s{B_T1}, s{B_T0}
    s_lshl_b32 s{B_T1}, s{B_T1}, 8
    s_waitcnt lgkmcnt(0)""")
        a(f"""    s_and_b32 s{B_T0}, s{B_WV}, 1
    s_lshl_b32 s{B_T0}, s{B_T0}, 7
    s_add_u32 s{B_T1}, s{B_T1}, s{B_T0}         ; + (w&1)*128 bytes
    v_lshrrev_b32 v5, 3, v1
    v_lshlrev_b32 v5, 13, v5
    v_and_b32 v6, 7, v1
    v_lshlrev_b32 v6, 4, v6
    v_add3_u32 v5, v5, v6, s{B_T1}              ; voffset
    v_and_b32 v6, 15, v1
    v_lshrrev_b32 v7, 2, v6                     ; r
    v_and_b32 v6, 3, v6                         ; c4
    v_lshrrev_b32 v8, 5, v1                     ; gam>>1
    v_lshlrev_b32 v8, 3, v8
    v_add_u32 v7, v7, v8
    v_lshlrev_b32 v7, 7, v7                     ; *128
    v_bfe_u32 v8, v1, 4, 1
    v_lshlrev_b32 v8, 5, v8                     ; colbase*2
    v_lshlrev_b32 v6, 3, v6
    v_add3_u32 v7, v7, v8, v6
    s_lshl_b32 s{B_T2}, s{B_WV}, 15
    v_add_u32 v7, s{B_T2}, v7""")
        def issue(ch):
            for i in range(16):
                a(f"""    s_add_u32 m0, s{B_T2}, {(ch & 1)*16384 + i*1024}
    s_mov_b32 s{B_T3}, {(ch*128 + i*8)*8192}
    buffer_load_dwordx4 v5, s[{B_W}:{B_W+3}], s{B_T3} offen lds""")
        issue(0); issue(1)
        for ch in range(4):
            a(f"    s_waitcnt vmcnt({16 if ch < 3 else 0})")
            for kq in range(8):
                kk = ch*8 + kq
                for ct in range(2):
                    for hf in range(2):
                        off = (ch & 1)*16384 + (kq*16 + hf*4)*128 + ct*64
                        a(f"    ds_read_b64_tr_b16 {ar((ct*32 + kk)*4 + 2*hf, 2)}, v7 offset:{off}")
                if kq % 2 == 1: a("    s_waitcnt lgkmcnt(4)")
            a("    s_waitcnt lgkmcnt(0)")
            if ch + 2 < 4: issue(ch + 2)
    else:
        a(f"""    s_lshl_b32 s{B_T0}, s{B_INST}, 2
    s_add_u32 s{B_T0}, s{B_T0}, s{B_WV}
    s_lshl_b32 s{B_T0}, s{B_T0}, 15             ; *32 rows*1024B
    v_lshlrev_b32 v5, 10, v2                    ; c*1024
    v_lshlrev_b32 v6, 4, v3                     ; hi*16
    v_add3_u32 v5, v5, v6, s{B_T0}""")
        for ct in range(2):
            srd(a, B_W, 80 + 8*ct, 0x80000)
            for kk in range(32):
                a(f"    buffer_load_dwordx4 {ar((ct*32 + kk)*4, 4)}, v5, s[{B_W}:{B_W+3}], 0 offen offset:{kk*32}")
        a("    s_waitcnt vmcnt(0)")
    a("    s_barrier")
    srd(a, B_X, 0 if kind != 'U' else 56, 2048*1024)
    if kind == 'U':
        a(f"""    v_bfe_u32 v6, v2, 2, 1
    v_lshlrev_b32 v6, 4, v6                     ; 16*((m>>2)&1)
    v_lshrrev_b32 v7, 3, v2
    v_lshlrev_b32 v7, 2, v7                     ; 4*(m>>3)
    v_and_b32 v8, 3, v2
    v_add3_u32 v6, v6, v7, v8""")
    else:
        a("    v_mov_b32 v6, v2")
    a(f"""    v_mul_u32_u24 v6, {XROW}, v6
    v_lshlrev_b32 v7, 4, v3
    v_add_u32 v6, v6, v7""")
    if kind in ('KV', 'Q'):
        a(f"""    v_lshrrev_b32 v8, 4, v2
    v_and_b32 v9, 15, v2
    v_lshlrev_b32 v9, 4, v9
    v_lshlrev_b32 v10, 8, v3
    v_add_u32 v9, v9, v10
    v_lshlrev_b32 v10, 12, v8
    v_add_u32 v10, v10, v9                      ; K-type
    v_lshlrev_b32 v11, 10, v8
    v_add_u32 v11, v11, v9                      ; V-type""")
        if kind == 'KV':
            a(f"""    s_cmp_lt_u32 s{B_WV}, 2
    s_cselect_b64 vcc, -1, 0
    s_nop 1
    v_cndmask_b32 v8, v11, v10, vcc
    s_and_b32 s{B_T0}, s{B_WV}, 1
    s_cmp_lt_u32 s{B_WV}, 2
    s_cselect_b32 s{B_T1}, 11, 12
    s_lshl_b32 s{B_T0}, s{B_T0}, s{B_T1}
    s_cmp_lt_u32 s{B_WV}, 2
    s_cselect_b32 s{B_T1}, 0, {WS_VF - WS_KF}
    s_add_u32 s{B_T1}, s{B_T1}, {WS_KF}
    s_add_u32 s{B_OUT}, s{B_T0}, s{B_T1}
    s_lshl_b32 s{B_T0}, s{B_INST}, 13
    s_add_u32 s{B_OUT}, s{B_OUT}, s{B_T0}""")
        else:
            a(f"""    v_mov_b32 v8, v10
    s_and_b32 s{B_T0}, s{B_WV}, 1
    s_lshl_b32 s{B_T0}, s{B_T0}, 11
    s_lshr_b32 s{B_T1}, s{B_WV}, 1
    s_lshl_b32 s{B_T2}, s{B_INST}, 1
    s_add_u32 s{B_T1}, s{B_T1}, s{B_T2}
    s_lshl_b32 s{B_T1}, s{B_T1}, 13
    s_add_u32 s{B_OUT}, s{B_T0}, s{B_T1}
    s_add_u32 s{B_OUT}, s{B_OUT}, {WS_QF}""")
    else:
        a(f"""    v_lshlrev_b32 v8, 16, v3
    v_lshlrev_b32 v9, 3, v2
    v_add_u32 v8, v8, v9
    s_lshl_b32 s{B_T0}, s{B_INST}, 2
    s_add_u32 s{B_T0}, s{B_T0}, s{B_WV}
    s_lshl_b32 s{B_T0}, s{B_T0}, 8
    s_add_u32 s{B_OUT}, s{B_T0}, {WS_U}""")
    if kind == 'KV':
        a(f"""    s_lshl_b32 s{B_T0}, s{B_SET}, 5
    s_add_u32 s{B_T0}, s{B_T0}, s{B_INST}
    s_lshl_b32 s{B_T0}, s{B_T0}, 2
    s_add_u32 s{B_FLG}, s{B_T0}, {F_KV}""")
    elif kind == 'Q':
        a(f"""    s_lshl_b32 s{B_T0}, s{B_SET}, 4
    s_add_u32 s{B_T0}, s{B_T0}, s{B_INST}
    s_lshl_b32 s{B_T0}, s{B_T0}, 2
    s_add_u32 s{B_FLG}, s{B_T0}, {F_Q}""")
    else:
        a(f"    s_mov_b32 s{B_FLG}, {F_U}")
    lab_end = f"L_{name}_end"
    if kind == 'KV':
        a(f"    s_cmp_lt_u32 s{B_WV}, 2\n    s_cbranch_scc0 L_{name}_V")
        proj_stream(a, name + "_K", 'K', nsets, flags, 'KV')
        a(f"    s_branch {lab_end}")
        a(f"L_{name}_V:")
        proj_stream(a, name + "_Vs", 'V', nsets, flags, 'KV')
    elif kind == 'Q':
        proj_stream(a, name + "_Q", 'K', nsets, flags, 'Q')
    else:
        proj_stream(a, name + "_U", 'U', nsets, flags, 'U')
    a(f"{lab_end}:")

def publish_progress(a, nm, mode, reg=None):
    ws = f"s[{B_WS}:{B_WS+3}]"
    a(f"""    s_cmp_lg_u32 s{B_WV}, 0
    s_cbranch_scc1 L_{nm}_np
    s_mov_b64 exec, 1
    v_mov_b32 v120, 0""")
    if mode == 'store':
        a(f"""    v_mov_b32 v121, s{reg if reg is not None else B_CNT}
    buffer_store_dword v121, v120, {ws}, s{B_FLG} offen sc1""")
    else:
        a(f"""    v_mov_b32 v121, {2 if mode == 'add2' else 1}
    buffer_atomic_add v121, v120, {ws}, s{B_FLG} offen sc1""")
    a(f"""    s_mov_b64 exec, -1
L_{nm}_np:""")

def proj_stream(a, name, epi, nsets, flags, kind):
    ws = f"s[{B_WS}:{B_WS+3}]"
    L = a.lds
    def xissue(buf):
        a(f"""    s_lshl_b32 s{B_T0}, s{B_SEG}, 15
    s_lshl_b32 s{B_T1}, s{B_WV}, 13
    s_add_u32 s{B_T0}, s{B_T0}, s{B_T1}
    s_mul_i32 s{B_T1}, s{B_WV}, {8*XROW}
    s_add_u32 s{B_T1}, s{B_T1}, {buf*XBUF}""")
        for r in range(8):
            a(f"""    s_add_u32 m0, s{B_T1}, {r*XROW}
    s_add_u32 s{B_T2}, s{B_T0}, {r*1024}
    buffer_load_dwordx4 v4, s[{B_X}:{B_X+3}], s{B_T2} offen lds""")
    a(f"""    s_mov_b32 s{B_SEG}, s{B_SET}
    s_mov_b32 s{B_CNT}, 0""")
    xissue(0)
    ACC = 32
    XF = 64
    OUTR = 96
    NST = 16 if epi == 'U' else 4
    a(f"L_{name}_loop:")
    for buf in range(2):
        a(f"    s_cmp_eq_u32 s{B_CNT}, 0\n    s_cbranch_scc1 L_{name}_w0_{buf}")
        a(f"    s_waitcnt vmcnt({NST})\n    s_branch L_{name}_w1_{buf}")
        a(f"L_{name}_w0_{buf}:\n    s_waitcnt vmcnt(0)\nL_{name}_w1_{buf}:")
        a("    s_barrier")
        if flags:
            a(f"    s_cmp_lt_u32 s{B_CNT}, 2\n    s_cbranch_scc1 L_{name}_pp{buf}_np")
            a(f"    s_sub_u32 s{B_PUB}, s{B_CNT}, 1")
            publish_progress(a, f"{name}_pp{buf}", 'add' if kind == 'U' else 'store', B_PUB)
        a(f"    s_lshl_b32 s{B_T3}, s{B_SEG}, {17 if epi == 'U' else 18}")
        a(f"    s_add_u32 s{B_T3}, s{B_T3}, s{B_OUT}")
        a(f"    s_add_u32 s{B_SEG}, s{B_SEG}, {nsets}")
        a(f"    s_cmp_ge_u32 s{B_SEG}, 64\n    s_cbranch_scc1 L_{name}_nx{buf}")
        xissue(1 - buf)
        a(f"L_{name}_nx{buf}:")
        L.reset()
        NX = 8
        for kk in range(NX): a.ds(f"ds_read_b128 {vr(XF + 4*kk, 4)}, v6 offset:{buf*XBUF + kk*32}", ('x', kk))
        for kk in range(32):
            L.need(('x', kk))
            xf = vr(XF + 4*(kk % NX), 4)
            for ct in range(2):
                w_ = ar((ct*32 + kk)*4, 4)
                c_ = "0" if kk == 0 else vr(ACC + 16*ct, 16)
                if epi == 'K': a(f"    v_mfma_f32_32x32x16_bf16 {vr(ACC + 16*ct, 16)}, {w_}, {xf}, {c_}")
                else: a(f"    v_mfma_f32_32x32x16_bf16 {vr(ACC + 16*ct, 16)}, {xf}, {w_}, {c_}")
            if kk + NX < 32: a.ds(f"ds_read_b128 {xf}, v6 offset:{buf*XBUF + (kk+NX)*32}", ('x', kk+NX))
        a("    s_nop 15")
        if epi == 'K':
            for ct in range(2):
                A_ = ACC + 16*ct
                for i in range(2):
                    for r in range(4):
                        a(f"    v_cvt_pk_bf16_f32 v{OUTR + 4*(2*ct+i) + r}, v{A_ + 4*i + r}, v{A_ + 8 + 4*i + r}")
                    a(f"    buffer_store_dwordx4 {vr(OUTR + 4*(2*ct+i), 4)}, v8, {ws}, s{B_T3} offen offset:{ct*1024 + i*512} sc1")
        elif epi == 'V':
            for ct in range(2):
                A_ = ACC + 16*ct
                for ii in range(2):
                    o = OUTR + 4*(2*ct+ii)
                    a(f"    v_cvt_pk_bf16_f32 v{o}, v{A_ + 4*ii}, v{A_ + 4*ii + 1}")
                    a(f"    v_cvt_pk_bf16_f32 v{o+1}, v{A_ + 8 + 4*ii}, v{A_ + 8 + 4*ii + 1}")
                    a(f"    v_cvt_pk_bf16_f32 v{o+2}, v{A_ + 4*ii + 2}, v{A_ + 4*ii + 3}")
                    a(f"    v_cvt_pk_bf16_f32 v{o+3}, v{A_ + 8 + 4*ii + 2}, v{A_ + 8 + 4*ii + 3}")
                    a(f"    buffer_store_dwordx4 {vr(o, 4)}, v8, {ws}, s{B_T3} offen offset:{ct*2048 + ii*512} sc1")
        else:
            for rho in range(16):
                o = OUTR + 2*(rho % 8)
                a(f"    v_mov_b32 v{o}, v{ACC + rho}")
                a(f"    v_mov_b32 v{o+1}, v{ACC + 16 + rho}")
                if rho > 0 and rho % 1 == 0: pass
                a(f"    s_add_u32 s{B_T2}, s{B_T3}, {rho*4096}")
                a(f"    buffer_store_dwordx2 {vr(o, 2)}, v8, {ws}, s{B_T2} offen sc1")
        a(f"    s_add_u32 s{B_CNT}, s{B_CNT}, 1")
        a(f"    s_cmp_ge_u32 s{B_CNT}, {64 // nsets}")
        a(f"    s_cbranch_scc1 L_{name}_fin")
    a(f"    s_branch L_{name}_loop")
    a(f"L_{name}_fin:")
    a("    s_waitcnt vmcnt(0)")
    a("    s_barrier")
    if flags:
        if kind == 'U':
            publish_progress(a, f"{name}_ppf", 'add2')
        else:
            publish_progress(a, f"{name}_ppf", 'store')

def wait_flag(a, nm, soff_reg, target, vtmp=120, sleep=4, ge_reg=None, far=None, farsleep=48):
    ws = f"s[{B_WS}:{B_WS+3}]"
    cmp = f"s{ge_reg}" if ge_reg is not None else str(target)
    a(f"""    v_mov_b32 v{vtmp}, 0
L_{nm}_w:
    buffer_load_dword v{vtmp+1}, v{vtmp}, {ws}, s{soff_reg} offen sc1
    s_waitcnt vmcnt(0)
    v_readfirstlane_b32 s{B_T3}, v{vtmp+1}
    s_cmp_ge_u32 s{B_T3}, {cmp}
    s_cbranch_scc1 L_{nm}_d""")
    if far is not None:
        a(f"""    s_add_u32 s{B_T3}, s{B_T3}, {far}
    s_cmp_ge_u32 s{B_T3}, {cmp}
    s_cbranch_scc1 L_{nm}_n
    s_sleep {farsleep}
L_{nm}_n:""")
    a(f"""    s_sleep {sleep}
    s_add_u32 s{B_RET}, s{B_RET}, 1
    s_cmp_lt_u32 s{B_RET}, 1000000
    s_cbranch_scc1 L_{nm}_w
    s_endpgm
L_{nm}_d:""")

LOG2E = 1.4426950408889634
def ssm_params(a, vp, base):
    LR, LI, CR, CI = base, base+1, base+2, base+3
    T = base + 4
    a(f"    v_lshlrev_b32 v{T}, 1, v{vp}")
    for i, off in enumerate((64, 72, 112)):
        srd(a, B_W, off, 1024)
        a(f"    buffer_load_ushort v{T+1+i}, v{T}, s[{B_W}:{B_W+3}], 0 offen")
    a(f"""    s_waitcnt vmcnt(0)
    v_lshlrev_b32 v{T+1}, 16, v{T+1}          ; lre
    v_lshlrev_b32 v{T+2}, 16, v{T+2}          ; lim
    v_lshlrev_b32 v{T+3}, 16, v{T+3}          ; log_dt
    v_mul_f32 v{T+3}, {hex(f32bits(LOG2E))}, v{T+3}
    v_exp_f32 v{T+3}, v{T+3}
    s_nop 1
    v_cvt_pk_bf16_f32 v{T+3}, v{T+3}, v{T+3}
    v_lshlrev_b32 v{T+3}, 16, v{T+3}
    v_mul_f32 v{T+4}, v{T+3}, v{T+1}
    v_mul_f32 v{T+5}, v{T+3}, v{T+2}
    v_mul_f32 v{T+4}, {hex(f32bits(LOG2E))}, v{T+4}
    v_exp_f32 v{T+4}, v{T+4}                  ; mag
    v_mul_f32 v{T+5}, 0.15915494, v{T+5}      ; revolutions
    v_rndne_f32 v{T+6}, v{T+5}
    v_sub_f32 v{T+5}, v{T+5}, v{T+6}
    v_cos_f32 v{T+6}, v{T+5}
    v_sin_f32 v{T+7}, v{T+5}
    s_nop 1
    v_mul_f32 v{LR}, v{T+4}, v{T+6}
    v_mul_f32 v{LI}, v{T+4}, v{T+7}
    v_add_f32 v{T+4}, -1.0, v{LR}             ; nr
    v_mul_f32 v{T+5}, v{T+1}, v{T+1}
    v_fma_f32 v{T+5}, v{T+2}, v{T+2}, v{T+5}  ; den
    v_rcp_f32 v{T+5}, v{T+5}
    v_mul_f32 v{T+6}, v{T+4}, v{T+1}
    v_fma_f32 v{T+6}, v{LI}, v{T+2}, v{T+6}
    v_mul_f32 v{T+7}, v{LI}, v{T+1}
    v_fma_f32 v{T+7}, -v{T+4}, v{T+2}, v{T+7}
    v_mul_f32 v{CR}, v{T+6}, v{T+5}
    v_mul_f32 v{CI}, v{T+7}, v{T+5}""")

def scan_role(a, name, flags=True):
    ws = f"s[{B_WS}:{B_WS+3}]"
    a(f"""    v_and_b32 v1, 63, v0
    v_and_b32 v2, 15, v1                ; c
    v_lshrrev_b32 v3, 4, v0
    s_lshl_b32 s{B_T0}, s{B_INST}, 4
    v_add_u32 v4, s{B_T0}, v2           ; p""")
    ssm_params(a, 4, 8)
    LR, LI, CR, CI = 8, 9, 10, 11
    a(f"    v_mov_b32 v12, v{LR}\n    v_mov_b32 v13, v{LI}")
    for i in range(7):
        a("""    v_mul_f32 v14, v12, v12
    v_fma_f32 v14, -v13, v13, v14
    v_mul_f32 v15, v12, v13
    v_add_f32 v13, v15, v15
    v_mov_b32 v12, v14""")
    if flags:
        a(f"    s_mov_b32 s{B_T0}, {F_U}")
        wait_flag(a, name + "_wu", B_T0, 256)
    a(f"""    v_lshlrev_b32 v5, 19, v3
    v_lshlrev_b32 v6, 3, v4
    v_add_u32 v5, v5, v6
    v_lshlrev_b32 v6, 18, v3
    v_lshlrev_b32 v7, 2, v4
    v_add_u32 v6, v6, v7""")
    HR, HI = 16, 17
    UB = [32, 64]
    def loads(b, t0reg):
        for i in range(16):
            a(f"    s_add_u32 s{B_T1}, s{t0reg}, {i*4096}")
            a(f"    buffer_load_dwordx2 {vr(UB[b] + 2*i, 2)}, v5, {ws}, s{B_T1} offen sc1")
    def rec(b, out, hreg):
        for i in range(16):
            u = UB[b] + 2*i
            a(f"""    v_fma_f32 v18, v{LR}, v{HR}, v{u}
    v_fma_f32 v19, v{LR}, v{HI}, v{u+1}
    v_fma_f32 v18, -v{LI}, v{HI}, v18
    v_fma_f32 v{HI}, v{LI}, v{HR}, v19
    v_mov_b32 v{HR}, v18""")
            if out:
                a(f"""    v_mul_f32 v20, v{CR}, v{HR}
    v_mul_f32 v21, v{CR}, v{HI}
    v_fma_f32 v20, -v{CI}, v{HI}, v20
    v_fma_f32 v21, v{CI}, v{HR}, v21
    v_cvt_pk_bf16_f32 v{22 + (i & 3)}, v20, v21
    s_add_u32 s{B_T1}, s{hreg}, {i*2048}
    buffer_store_dword v{22 + (i & 3)}, v6, {ws}, s{B_T1} offen sc1""")
    for pas in range(2):
        if pas == 0:
            a(f"    v_mov_b32 v{HR}, 0\n    v_mov_b32 v{HI}, 0")
        SU, SH, SC = 40, 41, 42
        a(f"""    s_mov_b32 s{SU}, {WS_U}
    s_mov_b32 s{SH}, {WS_H}
    s_mov_b32 s{SC}, 0""")
        loads(0, SU)
        a(f"L_{name}_p{pas}:")
        a(f"    s_add_u32 s{SU}, s{SU}, {16*4096}")
        loads(1, SU)
        a(f"    s_waitcnt vmcnt({16})" if pas == 0 else f"    s_waitcnt vmcnt(16)")
        rec(0, pas == 1, SH)
        a(f"    s_add_u32 s{SH}, s{SH}, {16*2048}")
        a(f"    s_add_u32 s{SU}, s{SU}, {16*4096}")
        a(f"    s_add_u32 s{SC}, s{SC}, 1")
        a(f"    s_cmp_ge_u32 s{SC}, 4")
        a(f"    s_cbranch_scc1 L_{name}_p{pas}_last")
        loads(0, SU)
        a(f"    s_waitcnt vmcnt({16})")
        rec(1, pas == 1, SH)
        a(f"    s_add_u32 s{SH}, s{SH}, {16*2048}")
        a(f"    s_branch L_{name}_p{pas}")
        a(f"L_{name}_p{pas}_last:")
        a("    s_waitcnt vmcnt(0)")
        rec(1, pas == 1, SH)
        if pas == 0:
            a(f"""    v_lshlrev_b32 v18, 3, v0
    ds_write_b64 v18, v[{HR}:{HI}]
    s_waitcnt lgkmcnt(0)
    s_barrier
    v_lshlrev_b32 v18, 3, v2            ; c*8
    v_mov_b32 v{HR}, 0
    v_mov_b32 v{HI}, 0""")
            for j in range(15):
                a(f"""    ds_read_b64 v[20:21], v18 offset:{j*128}
    v_cmp_lt_u32 vcc, {j}, v3
    s_waitcnt lgkmcnt(0)
    v_fma_f32 v22, v12, v{HR}, v20
    v_fma_f32 v23, v12, v{HI}, v21
    v_fma_f32 v22, -v13, v{HI}, v22
    v_fma_f32 v23, v13, v{HR}, v23
    v_cndmask_b32 v{HR}, v{HR}, v22, vcc
    v_cndmask_b32 v{HI}, v{HI}, v23, vcc""")
    a("    s_waitcnt vmcnt(0)")
    a("    s_barrier")
    if flags:
        a(f"    s_mov_b32 s{B_FLG}, {F_SC}")
        publish_progress(a, name + "_pp", 'add')

HROW = 2064
HBUF = 32 * HROW
def y_role(a, name, nsets=8, flags=True):
    ws = f"s[{B_WS}:{B_WS+3}]"
    L = a.lds
    a(f"""    v_and_b32 v1, 63, v0
    v_and_b32 v2, 31, v1                ; c
    v_lshrrev_b32 v3, 5, v1             ; hi
    v_lshlrev_b32 v4, 4, v1             ; lane*16
    s_lshl_b32 s{B_T0}, s{B_INST}, 2
    s_add_u32 s{B_T0}, s{B_T0}, s{B_WV}
    s_lshl_b32 s{B_T0}, s{B_T0}, 5              ; d0 = 32*(4 inst + w)
    v_add_u32 v9, s{B_T0}, v2                   ; d
    v_lshlrev_b32 v5, 10, v9                    ; d*1024
    v_lshlrev_b32 v6, 4, v3
    v_add_u32 v5, v5, v6""")
    a(f"""    s_load_dwordx2 s[{B_W}:{B_W+1}], s[0:1], 96
    s_load_dwordx2 s[{B_O}:{B_O+1}], s[0:1], 104
    s_mov_b32 s{B_W+2}, 0x80000
    s_mov_b32 s{B_W+3}, 0x20000
    s_mov_b32 s{B_O+2}, 0x80000
    s_mov_b32 s{B_O+3}, 0x20000
    s_mov_b32 s{B_T1}, 0x05040100
    s_mov_b32 s{B_T2}, 0x07060302
    s_waitcnt lgkmcnt(0)""")
    for mb in range(4):
        for i in range(8):
            m = mb*8 + i
            a(f"    buffer_load_dwordx4 {vr(32 + 8*i, 4)}, v5, s[{B_W}:{B_W+3}], 0 offen offset:{m*32}")
            a(f"    buffer_load_dwordx4 {vr(36 + 8*i, 4)}, v5, s[{B_O}:{B_O+3}], 0 offen offset:{m*32}")
        a("    s_waitcnt vmcnt(0)")
        for i in range(8):
            m = mb*8 + i
            re, im = 32 + 8*i, 36 + 8*i
            for q in range(4):
                dst = (2*m + (q >> 1))*4 + (q & 1)*2
                a(f"""    v_perm_b32 v10, v{im+q}, v{re+q}, s{B_T1}
    v_perm_b32 v11, v{im+q}, v{re+q}, s{B_T2}
    v_xor_b32 v10, 0x80000000, v10
    v_xor_b32 v11, 0x80000000, v11
    v_accvgpr_write_b32 a{dst}, v10
    v_accvgpr_write_b32 a{dst+1}, v11""")
    srd(a, B_W, 120, 1024)
    a(f"""    v_lshlrev_b32 v10, 1, v9
    buffer_load_ushort v12, v10, s[{B_W}:{B_W+3}], 0 offen
    s_waitcnt vmcnt(0)
    v_lshlrev_b32 v12, 16, v12""")
    srd(a, B_X, 56, 2048*1024)
    srd(a, B_O, 128, 2048*4096)
    a(f"""    v_mul_u32_u24 v6, {HROW}, v2
    v_lshlrev_b32 v7, 5, v3
    v_add_u32 v6, v6, v7
    v_lshlrev_b32 v7, 12, v3
    v_lshlrev_b32 v8, 1, v9
    v_add_u32 v7, v7, v8                        ; x voffset
    v_lshlrev_b32 v8, 14, v3
    v_lshlrev_b32 v10, 2, v9
    v_add3_u32 v8, v8, v10, 0
    v_add_u32 v8, 2048, v8""")
    if flags:
        a(f"    s_mov_b32 s{B_T0}, {F_SC}")
        wait_flag(a, name + "_ws", B_T0, 32)
    def hissue(buf):
        a(f"""    s_lshl_b32 s{B_T0}, s{B_SEG}, 16
    s_lshl_b32 s{B_T1}, s{B_WV}, 14
    s_add_u32 s{B_T0}, s{B_T0}, s{B_T1}
    s_add_u32 s{B_T0}, s{B_T0}, {WS_H}
    s_mul_i32 s{B_T1}, s{B_WV}, {8*HROW}
    s_add_u32 s{B_T1}, s{B_T1}, {buf*HBUF}""")
        for r in range(8):
            for hf in range(2):
                a(f"""    s_add_u32 m0, s{B_T1}, {r*HROW + hf*1024}
    s_add_u32 s{B_T2}, s{B_T0}, {r*2048 + hf*1024}
    buffer_load_dwordx4 v4, {ws}, s{B_T2} offen sc1 lds""")
    a(f"""    s_mov_b32 s{B_SEG}, s{B_SET}
    s_mov_b32 s{B_CNT}, 0""")
    hissue(0)
    ACC = 32; XF = 64; XV = 96
    a(f"L_{name}_loop:")
    for buf in range(2):
        a("    s_waitcnt vmcnt(0)")
        a("    s_barrier")
        a(f"    s_mov_b32 s{B_T3}, s{B_SEG}")
        a(f"    s_add_u32 s{B_SEG}, s{B_SEG}, {nsets}")
        a(f"    s_cmp_ge_u32 s{B_SEG}, 64\n    s_cbranch_scc1 L_{name}_nx{buf}")
        hissue(1 - buf)
        a(f"L_{name}_nx{buf}:")
        a(f"    s_lshl_b32 s{B_T0}, s{B_T3}, 15")
        for i in range(4):
            for r in range(4):
                a(f"    s_add_u32 s{B_T1}, s{B_T0}, {(8*i + r)*1024}")
                a(f"    buffer_load_ushort v{XV + 4*i + r}, v7, s[{B_X}:{B_X+3}], s{B_T1} offen")
        L.reset()
        NX = 8
        def xoff(kk): return (kk >> 1)*64 + (kk & 1)*16
        base2 = buf*HBUF
        br = "v6" if buf == 0 else "v13"
        if buf == 0: a(f"    v_add_u32 v13, {HBUF}, v6")
        for kk in range(NX): a.ds(f"ds_read_b128 {vr(XF + 4*kk, 4)}, {br} offset:{xoff(kk)}", ('x', kk))
        for kk in range(64):
            L.need(('x', kk))
            xf = vr(XF + 4*(kk % NX), 4)
            c_ = "0" if kk == 0 else vr(ACC, 16)
            a(f"    v_mfma_f32_32x32x16_bf16 {vr(ACC, 16)}, {xf}, {ar(kk*4, 4)}, {c_}")
            if kk + NX < 64: a.ds(f"ds_read_b128 {xf}, {br} offset:{xoff(kk+NX)}", ('x', kk+NX))
        a("    s_waitcnt vmcnt(0)")
        a("    s_nop 7")
        a(f"    s_lshl_b32 s{B_T0}, s{B_T3}, 17")
        for i in range(4):
            for r in range(4):
                x = XV + 4*i + r
                a(f"""    v_lshlrev_b32 v{x}, 16, v{x}
    v_mul_f32 v{x}, v{x}, v12
    v_cvt_pk_bf16_f32 v{x}, v{x}, v{x}
    v_lshlrev_b32 v{x}, 16, v{x}
    v_fma_f32 v{x}, 2.0, v{ACC + 4*i + r}, v{x}
    s_add_u32 s{B_T1}, s{B_T0}, {(8*i + r)*4096}
    buffer_store_dword v{x}, v8, s[{B_O}:{B_O+3}], s{B_T1} offen sc1""")
        a(f"    s_add_u32 s{B_CNT}, s{B_CNT}, 1")
        a(f"    s_cmp_ge_u32 s{B_CNT}, {64 // nsets}")
        a(f"    s_cbranch_scc1 L_{name}_fin")
    a(f"    s_branch L_{name}_loop")
    a(f"L_{name}_fin:")
    a("    s_waitcnt vmcnt(0)")

SCALE_C = (128 ** -0.5) * LOG2E
def attn_role(a, name, nlanes, flags=True, opt_sleep=6):
    ws = f"s[{B_WS}:{B_WS+3}]"
    S_H_, S_QT, S_SEG, S_B8, S_B2, S_C_, S_FK, S_FQ = 40, 41, 42, 43, 44, 45, 46, 47
    a(f"""    v_and_b32 v1, 63, v0                ; lane
    v_and_b32 v2, 15, v1                ; n
    v_lshrrev_b32 v3, 4, v1             ; g
    v_lshlrev_b32 v4, 4, v1             ; lane*16
    s_lshr_b32 s{S_H_}, s{B_INST}, 1
    s_and_b32 s{S_QT}, s{B_INST}, 1
    s_mov_b32 s{S_C_}, {hex(f32bits(SCALE_C))}
    v_lshlrev_b32 v5, 4, v3
    v_and_b32 v6, 7, v2
    v_lshlrev_b32 v6, 6, v6
    v_add_u32 v5, v5, v6
    v_and_b32 v6, 1, v3
    v_lshlrev_b32 v6, 7, v6
    v_lshlrev_b32 v7, 2, v2
    v_add_u32 v6, v6, v7
    ; o store voffset: (g>>1)*512 + (16qt+n)*16 + (g&1)*8
    v_lshrrev_b32 v7, 1, v3
    v_lshlrev_b32 v7, 9, v7
    v_lshlrev_b32 v8, 4, v2
    v_and_b32 v9, 1, v3
    v_lshlrev_b32 v9, 3, v9
    v_add3_u32 v7, v7, v8, v9
    s_lshl_b32 s{B_T0}, s{S_QT}, 8
    v_add_u32 v7, s{B_T0}, v7
    s_lshl_b32 s{B_T0}, s{S_QT}, 4
    v_lshlrev_b32 v8, 2, v3
    v_sub_u32 v8, v2, v8
    v_add_u32 v8, s{B_T0}, v8           ; signed
    v_mov_b32 v9, 0xff800000            ; -inf
    s_mov_b32 s{S_SEG}, s{B_SET}""")
    QF, KF, VF, VM = 16, 32, 80, 112
    ST = 128
    a(f"L_{name}_loop:")
    if flags:
        a(f"""    s_and_b32 s{B_T0}, s{S_SEG}, 3
    s_lshl_b32 s{B_T1}, s{B_T0}, 5
    s_add_u32 s{B_T1}, s{B_T1}, s{S_H_}
    s_lshl_b32 s{B_T1}, s{B_T1}, 2
    s_add_u32 s{S_FK}, s{B_T1}, {F_KV}
    s_lshl_b32 s{B_T1}, s{B_T0}, 4
    s_lshr_b32 s{B_T2}, s{S_H_}, 1
    s_add_u32 s{B_T1}, s{B_T1}, s{B_T2}
    s_lshl_b32 s{B_T1}, s{B_T1}, 2
    s_add_u32 s{S_FQ}, s{B_T1}, {F_Q}
    s_lshr_b32 s{B_T2}, s{S_SEG}, 2
    s_add_u32 s{B_T2}, s{B_T2}, 1""")
        wait_flag(a, name + "_wk", S_FK, None, ge_reg=B_T2)
        wait_flag(a, name + "_wq", S_FQ, None, ge_reg=B_T2)
    a(f"""    s_lshl_b32 s{B_T0}, s{S_SEG}, 5
    s_add_u32 s{B_T0}, s{B_T0}, s{S_H_}
    s_lshl_b32 s{S_B8}, s{B_T0}, 13
    s_add_u32 s{S_B2}, s{B_T0}, 32
    s_lshl_b32 s{S_B2}, s{S_B2}, 11""")
    a(f"""    s_lshl_b32 s{B_T1}, s{S_QT}, 12
    s_add_u32 s{B_T1}, s{B_T1}, s{S_B8}
    s_add_u32 s{B_T1}, s{B_T1}, {WS_QF}""")
    for ks in range(4):
        a(f"    buffer_load_dwordx4 {vr(QF + 4*ks, 4)}, v4, {ws}, s{B_T1} offen offset:{ks*1024} sc1")
    a(f"    s_add_u32 s{B_T1}, s{S_B8}, {WS_KF}\n    s_add_u32 s{B_T2}, s{B_T1}, 4096")
    for T in range(2):
        for ks in range(4):
            a(f"    buffer_load_dwordx4 {vr(KF + 16*T + 4*ks, 4)}, v4, {ws}, s{B_T1 if T == 0 else B_T2} offen offset:{ks*1024} sc1")
    a(f"    s_add_u32 s{B_T1}, s{S_B8}, {WS_VF}\n    s_add_u32 s{B_T2}, s{B_T1}, 4096")
    for t in range(8):
        a(f"    buffer_load_dwordx4 {vr(VF + 4*t, 4)}, v4, {ws}, s{B_T1 if t < 4 else B_T2} offen offset:{(t & 3)*1024} sc1")
    if flags:
        a(f"""    s_lshl_b32 s{B_T1}, s{S_H_}, 7
    s_add_u32 s{S_FK}, s{B_T1}, {F_CH}
    s_add_u32 s{B_T2}, s{S_SEG}, 1""")
        wait_flag(a, name + "_wc", S_FK, None, vtmp=190, ge_reg=B_T2, sleep=opt_sleep, far=2, farsleep=40)
    a(f"    s_add_u32 s{B_T1}, s{S_B2}, {WS_KM}")
    for ks in range(4):
        a(f"    buffer_load_dwordx4 {vr(KF + 32 + 4*ks, 4)}, v5, {ws}, s{B_T1} offen offset:{ks*512} sc1")
    a(f"    s_add_u32 s{B_T1}, s{S_B2}, {WS_VM}")
    for t in range(8):
        a(f"    buffer_load_dword v{VM + 2*t}, v6, {ws}, s{B_T1} offen offset:{t*256} sc1")
        a(f"    buffer_load_dword v{VM + 2*t + 1}, v6, {ws}, s{B_T1} offen offset:{t*256 + 64} sc1")
    a("    s_waitcnt vmcnt(16)")
    for T in range(3):
        for ks in range(4):
            c = "0" if ks == 0 else vr(ST + 4*T, 4)
            a(f"    v_mfma_f32_16x16x32_bf16 {vr(ST + 4*T, 4)}, {vr(KF + 16*T + 4*ks, 4)}, {vr(QF + 4*ks, 4)}, {c}")
    a("    s_nop 7")
    for T in range(2):
        for r in range(4):
            a(f"    v_cmp_le_i32 vcc, {16*T + r}, v8")
            a(f"    s_nop 1")
            a(f"    v_cndmask_b32 v{ST + 4*T + r}, v9, v{ST + 4*T + r}, vcc")
    a("    v_cmp_gt_u32 vcc, 2, v3\n    s_nop 1")
    for r in range(4):
        a(f"    v_cndmask_b32 v{ST + 8 + r}, v9, v{ST + 8 + r}, vcc")
    M_, T_ = 140, 141
    a(f"    v_max3_f32 v{M_}, v{ST}, v{ST+1}, v{ST+2}")
    a(f"    v_max3_f32 v{T_}, v{ST+3}, v{ST+4}, v{ST+5}")
    a(f"    v_max3_f32 v{M_}, v{M_}, v{ST+6}, v{ST+7}")
    a(f"    v_max3_f32 v{T_}, v{T_}, v{ST+8}, v{ST+9}")
    a(f"    v_max3_f32 v{M_}, v{M_}, v{ST+10}, v{ST+11}")
    a(f"    v_max_f32 v{M_}, v{M_}, v{T_}")
    def xred(op):
        a(f"    v_mov_b32 v{T_}, v{M_}\n    s_nop 1\n    v_permlane16_swap_b32 v{M_}, v{T_}\n    {op} v{M_}, v{M_}, v{T_}")
        a(f"    v_mov_b32 v{T_}, v{M_}\n    s_nop 1\n    v_permlane32_swap_b32 v{M_}, v{T_}\n    {op} v{M_}, v{M_}, v{T_}")
    xred("v_max_f32")
    a(f"    v_mul_f32 v{M_}, s{S_C_}, v{M_}")
    for i in range(12):
        a(f"    v_fma_f32 v{ST+i}, v{ST+i}, s{S_C_}, -v{M_}")
    for i in range(12):
        a(f"    v_exp_f32 v{ST+i}, v{ST+i}")
    a("    s_nop 0")
    PX, PM = 144, 148
    a(f"    v_cvt_pk_bf16_f32 v{PX}, v{ST}, v{ST+1}")
    a(f"    v_cvt_pk_bf16_f32 v{PX+1}, v{ST+4}, v{ST+5}")
    a(f"    v_cvt_pk_bf16_f32 v{PX+2}, v{ST+2}, v{ST+3}")
    a(f"    v_cvt_pk_bf16_f32 v{PX+3}, v{ST+6}, v{ST+7}")
    a(f"    v_cvt_pk_bf16_f32 v{PM}, v{ST+8}, v{ST+9}")
    a(f"    v_cvt_pk_bf16_f32 v{PM+1}, v{ST+10}, v{ST+11}")
    a(f"    v_mov_b32 v{M_}, 0")
    for rg in (PX, PX+1, PX+2, PX+3, PM, PM+1):
        a(f"    v_lshlrev_b32 v{T_}, 16, v{rg}\n    v_add_f32 v{M_}, v{M_}, v{T_}")
        a(f"    v_and_b32 v{T_}, 0xffff0000, v{rg}\n    v_add_f32 v{M_}, v{M_}, v{T_}")
    xred("v_add_f32")
    a(f"    v_rcp_f32 v{M_}, v{M_}")
    a("    s_waitcnt vmcnt(0)")
    O = 152
    for t in range(8):
        a(f"    v_mfma_f32_16x16x32_bf16 {vr(O + 4*t, 4)}, {vr(VF + 4*t, 4)}, {vr(PX, 4)}, 0")
    for t in range(8):
        a(f"    v_mfma_f32_16x16x16_bf16 {vr(O + 4*t, 4)}, {vr(VM + 2*t, 2)}, {vr(PM, 2)}, {vr(O + 4*t, 4)}")
    a("    s_nop 7")
    a(f"    s_add_u32 s{B_T1}, s{S_B8}, {WS_OF}\n    s_add_u32 s{B_T2}, s{B_T1}, 4096")
    for t in range(8):
        o = O + 4*t
        for r in range(4): a(f"    v_mul_f32 v{o+r}, v{o+r}, v{M_}")
        a(f"    v_cvt_pk_bf16_f32 v{o}, v{o}, v{o+1}\n    v_cvt_pk_bf16_f32 v{o+1}, v{o+2}, v{o+3}")
        a(f"    buffer_store_dwordx2 {vr(o, 2)}, v7, {ws}, s{B_T1 if t < 4 else B_T2} offen offset:{(t & 3)*1024} sc1")
    if flags:
        a(f"""    s_waitcnt vmcnt(0)
    s_lshl_b32 s{B_T1}, s{S_SEG}, 7
    s_add_u32 s{B_T1}, s{B_T1}, {F_O}
    s_mov_b64 exec, 1
    v_mov_b32 v120, 0
    v_mov_b32 v121, 1
    buffer_atomic_add v121, v120, {ws}, s{B_T1} offen sc1
    s_mov_b64 exec, -1""")
    a(f"""    s_add_u32 s{S_SEG}, s{S_SEG}, {nlanes}
    s_cmp_lt_u32 s{S_SEG}, 64
    s_cbranch_scc1 L_{name}_loop
    s_waitcnt vmcnt(0)""")

def oproj_role(a, name, nsets=4, flags=True):
    ws = f"s[{B_WS}:{B_WS+3}]"
    L = a.lds
    a(f"""    v_and_b32 v1, 63, v0
    v_and_b32 v2, 31, v1                ; c
    v_lshrrev_b32 v3, 5, v1             ; hi
    v_lshlrev_b32 v4, 4, v1             ; lane*16""")
    srd(a, B_W, 40, 0x400000)
    a(f"""    v_lshrrev_b32 v5, 2, v1
    v_lshlrev_b32 v5, 10, v5
    v_and_b32 v6, 3, v1
    v_lshlrev_b32 v6, 4, v6
    s_lshl_b32 s{B_T0}, s{B_INST}, 6
    s_lshl_b32 s{B_T1}, s{B_WV}, 20             ; w*1024 rows*1024B
    s_add_u32 s{B_T0}, s{B_T0}, s{B_T1}
    v_add3_u32 v5, v5, v6, s{B_T0}
    v_and_b32 v6, 15, v1
    v_lshrrev_b32 v7, 2, v6
    v_and_b32 v6, 3, v6
    v_lshlrev_b32 v8, 3, v3
    v_add_u32 v7, v7, v8
    v_lshlrev_b32 v7, 6, v7                     ; row*64
    v_bfe_u32 v8, v1, 4, 1
    v_lshlrev_b32 v8, 5, v8
    v_lshlrev_b32 v6, 3, v6
    v_add3_u32 v7, v7, v8, v6
    s_lshl_b32 s{B_T2}, s{B_WV}, 15
    v_add_u32 v7, s{B_T2}, v7""")
    def issue(ch):
        for i in range(16):
            a(f"""    s_add_u32 m0, s{B_T2}, {(ch & 1)*16384 + i*1024}
    s_mov_b32 s{B_T3}, {(ch*256 + i*16)*1024}
    buffer_load_dwordx4 v5, s[{B_W}:{B_W+3}], s{B_T3} offen lds""")
    issue(0); issue(1)
    for ch in range(4):
        a(f"    s_waitcnt vmcnt({16 if ch < 3 else 0})")
        for kq in range(16):
            kk = ch*16 + kq
            for hf in range(2):
                a(f"    ds_read_b64_tr_b16 {ar(kk*4 + 2*hf, 2)}, v7 offset:{(ch & 1)*16384 + (kq*16 + hf*4)*64}")
            if kq % 4 == 3: a("    s_waitcnt lgkmcnt(4)")
        a("    s_waitcnt lgkmcnt(0)")
        if ch + 2 < 4: issue(ch + 2)
    a("    s_barrier")
    srd(a, B_O, 128, 2048*4096)
    a(f"""    v_lshlrev_b32 v8, 14, v3
    v_lshlrev_b32 v9, 2, v2
    s_lshl_b32 s{B_T0}, s{B_INST}, 7
    s_lshl_b32 s{B_T1}, s{B_WV}, 15
    s_add_u32 s{B_T0}, s{B_T0}, s{B_T1}
    v_add3_u32 v8, v8, v9, s{B_T0}
    s_lshl_b32 s{B_T0}, s{B_WV}, 12
    v_add_u32 v9, s{B_T0}, v4
    s_lshl_b32 s{B_T0}, s{B_WV}, 10
    v_add_u32 v10, s{B_T0}, v4
    s_mov_b32 s{B_SEG}, s{B_SET}""")
    ACC = 16; AF = 32
    a(f"L_{name}_loop:")
    if flags:
        a(f"""    s_lshl_b32 s{B_T1}, s{B_SEG}, 7
    s_add_u32 s{B_T1}, s{B_T1}, {F_O}""")
        wait_flag(a, name + "_wo", B_T1, 64, sleep=4, far=63, farsleep=24)
    a(f"""    s_lshl_b32 s{B_T0}, s{B_SEG}, 18
    s_lshl_b32 s{B_T1}, s{B_WV}, 16             ; 8 heads * 8192
    s_add_u32 s{B_T0}, s{B_T0}, s{B_T1}
    s_add_u32 s{B_T0}, s{B_T0}, {WS_OF}""")
    def ld(kk):
        slot = kk % 48
        if kk % 4 == 0: a(f"    s_add_u32 s{B_T1}, s{B_T0}, {kk*1024}")
        a(f"    buffer_load_dwordx4 {vr(AF + 4*slot, 4)}, v4, {ws}, s{B_T1} offen offset:{(kk % 4)*1024} sc1")
    for kk in range(48): ld(kk)
    for kk in range(64):
        out = min(47, 63 - kk) if kk >= 16 else 47
        issued = 48 + min(kk, 16)
        a(f"    s_waitcnt vmcnt({issued - kk - 1})")
        c = "0" if kk == 0 else vr(ACC, 16)
        a(f"    v_mfma_f32_32x32x16_bf16 {vr(ACC, 16)}, {vr(AF + 4*(kk % 48), 4)}, {ar(kk*4, 4)}, {c}")
        if kk < 16: ld(48 + kk)
    a("    s_nop 15")
    for i in range(4): a(f"    ds_write_b128 v9, {vr(ACC + 4*i, 4)} offset:{i*1024}")
    a("    s_waitcnt lgkmcnt(0)\n    s_barrier")
    for w2 in range(4): a(f"    ds_read_b128 {vr(ACC + 4*w2, 4)}, v10 offset:{w2*4096}")
    a("    s_waitcnt lgkmcnt(0)\n    s_barrier")
    a(f"    s_lshl_b32 s{B_T0}, s{B_SEG}, 17")
    for r in range(4):
        a(f"""    v_add_f32 v{ACC+r}, v{ACC+r}, v{ACC+4+r}
    v_add_f32 v{ACC+8+r}, v{ACC+8+r}, v{ACC+12+r}
    v_add_f32 v{ACC+r}, v{ACC+r}, v{ACC+8+r}
    s_add_u32 s{B_T1}, s{B_T0}, {r*4096}
    buffer_store_dword v{ACC+r}, v8, s[{B_O}:{B_O+3}], s{B_T1} offen sc1""")
    a(f"""    s_add_u32 s{B_SEG}, s{B_SEG}, {nsets}
    s_cmp_lt_u32 s{B_SEG}, 64
    s_cbranch_scc1 L_{name}_loop
    s_waitcnt vmcnt(0)""")
```

```python
from asmlib import *

WS_P1   = 0x0100000
P1C = 8320
P1SLOT = 0x42000
WS_M    = 0x0080000
WS_FLAG = 0x0090000
WS_KF   = 0x1000000
WS_VF   = 0x2000000
WS_QF   = 0x3000000
WS_OF   = 0x4000000
WS_KM   = 0x5000000
WS_VM   = 0x5400000
WS_SIZE = 0x10000000
F_KV   = WS_FLAG + 0x000
F_CH   = WS_FLAG + 0x1000

L_M   = 0
L_KX  = 8192
L_Q   = 16384
L_K   = 18560
L_O   = 20736
L_ZERO= 22912
L_SEL = 23936
L_LB  = 24960
L_MISC= 25984
L_W   = 32768
L_WO = L_W

S_WS = 8
S_W  = 12
S_W2 = 48
S_STEP, S_H, S_WV = 16, 17, 18
S_P1W, S_P1W2, S_P1X = 20, 21, 22
S_P1W3, S_P1W4 = 42, 43
S_MWN = 19
S_MW, S_MW2, S_MX = 23, 24, 25
S_KN, S_VN = 26, 27
S_T0, S_T1, S_T2 = 28, 29, 44
S_HALF = 30
S_MEX = 32
S_C   = 36
S_RETRY = 37
S_KMP, S_VMP = 38, 39
S_KM0 = 45
S_PFW = 35
S_FLN = 40
S_FLT = 41
S_FCH = 7
S_PF = 34
S_TS = 46

V_IDX, V_L16, V_QW, V_QR, V_KR, V_AR, V_WO, V_WO2, V_P1S, V_P1R, V_MS, V_MP, V_VX, V_KM, V_NEG1 = range(1, 16)
V_TR = 0
V_VBX = 16
V_VBY = 24
R_AB  = 32
NAB   = 5
R_ACC = 52
R_QF  = 64
R_KF  = 80
R_KX  = 96
V_WV  = 128

def wk(t, ks): return ar(t*64 + 8*ks, 8)
def wv(t, ks): return ar(128 + t*64 + 8*ks, 8)
def wo(m, kp): return vr(128 + (m*4 + kp)*8, 8)

def chain_setup(a, name):
    a(f"""
    v_and_b32 v32, 63, v0               ; lane
    v_and_b32 v33, 15, v32              ; n = lane&15
    v_lshrrev_b32 v40, 4, v32           ; g
    v_lshlrev_b32 v{V_L16}, 4, v32      ; lane*16
    v_and_b32 v41, 1, v32
    v_mul_u32_u24 v41, 0xAAAA, v41
    v_add_u32 v{V_IDX}, 0x4444, v41
    ; QW = 2g*272 + w*64 + n*4
    v_mul_u32_u24 v41, 544, v40
    v_lshlrev_b32 v42, 2, v33
    s_lshl_b32 s{S_T0}, s{S_WV}, 6
    v_add3_u32 v{V_QW}, v41, v42, s{S_T0}
    ; QR = (n>>1)*272 + g*16
    v_lshrrev_b32 v41, 1, v33
    v_mul_u32_u24 v43, 272, v41
    v_lshlrev_b32 v42, 4, v40
    v_add_u32 v{V_QR}, v43, v42
    ; AR = (g>>1)*512 + (n>>1)*64 + (g&1)*32 + (n&1)*16
    v_lshlrev_b32 v43, 6, v41
    v_lshrrev_b32 v44, 1, v40
    v_lshlrev_b32 v44, 9, v44
    v_add_u32 v43, v43, v44
    v_and_b32 v44, 1, v40
    v_lshlrev_b32 v44, 5, v44
    v_add_u32 v43, v43, v44
    v_and_b32 v44, 1, v33
    v_lshlrev_b32 v44, 4, v44
    v_add_u32 v{V_AR}, v43, v44
    ; KR = (n&7)*272 + g*16
    v_and_b32 v41, 7, v33
    v_mul_u32_u24 v41, 272, v41
    v_add_u32 v{V_KR}, v41, v42
    s_lshl_b32 s{S_T0}, s{S_WV}, 12
    s_add_u32 s{S_T0}, s{S_T0}, {L_W}
    v_add_u32 v{V_WO}, s{S_T0}, v{V_L16}
    v_add_u32 v{V_WO2}, 0x10000, v{V_WO}
    v_mul_u32_u24 v41, {2*P1C}, v40
    v_lshlrev_b32 v42, 2, v33
    s_mul_i32 s{S_T0}, s{S_WV}, {8*P1C}
    s_lshl_b32 s{S_T1}, s{S_H}, 6
    s_add_u32 s{S_T0}, s{S_T0}, s{S_T1}
    v_add3_u32 v{V_P1S}, v41, v42, s{S_T0}
    s_mul_i32 s{S_T0}, s{S_H}, {P1C}
    s_lshl_b32 s{S_T1}, s{S_WV}, 11
    s_add_u32 s{S_T0}, s{S_T0}, s{S_T1}
    v_add_u32 v{V_P1R}, s{S_T0}, v{V_L16}
    s_lshr_b32 s{S_T0}, s{S_H}, 3
    s_lshl_b32 s{S_T0}, s{S_T0}, 2
    s_add_u32 s{S_T0}, s{S_T0}, s{S_WV}
    s_lshl_b32 s{S_T0}, s{S_T0}, 9
    s_and_b32 s{S_T1}, s{S_H}, 7
    s_lshl_b32 s{S_T1}, s{S_T1}, 6
    s_add_u32 s{S_T0}, s{S_T0}, s{S_T1}
    v_and_b32 v41, 3, v32
    v_lshlrev_b32 v41, 4, v41
    v_lshlrev_b32 v43, 2, v40
    v_add3_u32 v{V_MS}, v41, v43, s{S_T0}
    v_lshrrev_b32 v41, 5, v32
    v_lshlrev_b32 v41, 11, v41
    v_and_b32 v42, 31, v32
    v_lshlrev_b32 v42, 4, v42
    s_lshl_b32 s{S_T0}, s{S_WV}, 9
    v_add3_u32 v{V_MP}, v41, v42, s{S_T0}
    v_lshrrev_b32 v41, 1, v40
    v_lshlrev_b32 v41, 8, v41
    v_lshlrev_b32 v42, 4, v33
    v_and_b32 v43, 1, v40
    v_lshlrev_b32 v43, 3, v43
    v_add3_u32 v{V_VX}, v41, v42, v43
    v_lshlrev_b32 v41, 7, v40
    v_lshlrev_b32 v42, 2, v33
    v_add_u32 v{V_KM}, v41, v42
    v_mov_b32 v{V_NEG1}, -1
    v_lshrrev_b32 v43, 2, v33           ; delta
    v_and_b32 v42, 3, v33               ; r
    v_mov_b32 v44, 0x3f80
    v_mov_b32 v45, 0x3f800000
    v_cmp_eq_u32 vcc, 1, v42
    s_nop 1
    v_cndmask_b32 v44, v44, v45, vcc
    v_cmp_gt_u32 vcc, 2, v42
    s_nop 1
    v_cndmask_b32 v44, 0, v44, vcc      ; r>=2 -> 0
""")
    for d in range(4):
        a(f"""    v_cmp_eq_u32 vcc, {d}, v43
    s_nop 1
    v_cndmask_b32 v{48+d}, 0, v44, vcc""")
    a(f"""    ds_write_b128 v{V_L16}, v[48:51] offset:{L_SEL}
    v_mov_b32 v52, 0x3f803f80
    v_mov_b32 v54, 0x3f803f80
    v_mov_b32 v41, 0x3f003f00
    v_cmp_gt_u32 vcc, 2, v40
    s_nop 1
    v_cndmask_b32 v53, 0, v41, vcc
    v_cndmask_b32 v55, 0, v41, vcc
    ds_write_b128 v{V_L16}, v[52:55] offset:{L_LB}
""")
    for i in range(16):
        a(f"    v_mov_b32 v{V_VBX+i}, 0")
    a(f"""    ds_write_b128 v{V_L16}, v[{V_VBX}:{V_VBX+3}] offset:{L_ZERO}
    s_mov_b32 s{S_HALF}, 0xaaaaaaaa
    s_mov_b32 s{S_HALF+1}, 0xaaaaaaaa
    s_mov_b32 s{S_MEX}, 0x000f000f
    s_mov_b32 s{S_MEX+1}, 0x000f000f
    s_mov_b32 s{S_C}, {hex(f32bits((128 ** -0.5) * 1.4426950408889634))}
    s_mov_b32 s{S_RETRY}, 0
    s_lshl_b32 s{S_T0}, s{S_WV}, 11
    s_add_u32 s{S_KM0}, s{S_T0}, {L_KX}
    s_and_b32 s{S_T0}, s{S_WV}, 1
    s_lshl_b32 s{S_T0}, s{S_T0}, 12
    s_lshr_b32 s{S_T1}, s{S_WV}, 1
    s_mul_i32 s{S_T1}, s{S_T1}, {WS_VF - WS_KF}
    s_add_u32 s{S_PFW}, s{S_T0}, s{S_T1}
    s_add_u32 s{S_PFW}, s{S_PFW}, {WS_KF}
""")

def chain_init_comm(a, name):
    ws = f"s[{S_WS}:{S_WS+3}]"
    a(f"""    v_mov_b32 v40, -1
    v_mov_b32 v41, -1
    v_mov_b32 v42, -1
    v_mov_b32 v43, -1
    s_mov_b32 s{S_T0}, {WS_P1}
    s_mov_b32 s{S_T1}, {WS_P1 + P1SLOT}
    buffer_store_dwordx4 v[40:43], v{V_P1R}, {ws}, s{S_T0} offen
    buffer_store_dwordx4 v[40:43], v{V_P1R}, {ws}, s{S_T0} offen offset:1024
    buffer_store_dwordx4 v[40:43], v{V_P1R}, {ws}, s{S_T1} offen
    buffer_store_dwordx4 v[40:43], v{V_P1R}, {ws}, s{S_T1} offen offset:1024
    s_mov_b64 exec, s[{S_MEX}:{S_MEX+1}]
""")
    for sl in range(4):
        a(f"""    s_mov_b32 s{S_T0}, {WS_M + sl*8192}
    buffer_store_dword v40, v{V_MS}, {ws}, s{S_T0} offen""")
    a("    s_mov_b64 exec, -1")

def chain_load_weights(a, name, after_first=None, at_iter8=None, at_iter27=None):
    RING = L_W
    a(f"""
    v_and_b32 v32, 63, v0
    v_and_b32 v33, 15, v32
    v_lshrrev_b32 v40, 4, v32           ; g
    v_lshlrev_b32 v41, 13, v40          ; (lane>>4)*8192
    v_lshlrev_b32 v42, 4, v33
    s_lshl_b32 s{S_T0}, s{S_H}, 8
    s_lshl_b32 s{S_T1}, s{S_WV}, 17
    s_add_u32 s{S_T0}, s{S_T0}, s{S_T1}
    v_add3_u32 v46, v41, v42, s{S_T0}
    v_lshrrev_b32 v41, 1, v40
    v_lshlrev_b32 v41, 3, v41
    v_and_b32 v42, 1, v40
    v_lshlrev_b32 v42, 1, v42
    v_add_u32 v41, v41, v42
    v_lshrrev_b32 v42, 2, v33           ; r
    v_and_b32 v43, 1, v42
    v_lshlrev_b32 v43, 4, v43
    v_lshrrev_b32 v44, 1, v42
    v_lshlrev_b32 v44, 2, v44
    v_add3_u32 v41, v41, v43, v44       ; row
    v_lshlrev_b32 v41, 8, v41
    v_and_b32 v43, 3, v33
    v_lshlrev_b32 v43, 3, v43           ; c4*8
    s_lshl_b32 s{S_T0}, s{S_WV}, 6
    s_add_u32 s{S_T0}, s{S_T0}, {RING}
    v_add3_u32 v47, v41, v43, s{S_T0}
    v_add_u32 v48, 0x10000, v47
    v_lshrrev_b32 v41, 1, v40
    v_lshlrev_b32 v41, 2, v41
    v_and_b32 v44, 1, v40
    v_lshlrev_b32 v44, 1, v44
    v_add_u32 v41, v41, v44
    v_and_b32 v44, 1, v42
    v_lshlrev_b32 v44, 4, v44
    v_add_u32 v41, v41, v44
    v_lshlrev_b32 v41, 10, v41
    v_lshrrev_b32 v44, 1, v42
    v_lshlrev_b32 v44, 5, v44
    v_add3_u32 v41, v41, v44, v43
    s_lshl_b32 s{S_T0}, s{S_WV}, 8
    s_add_u32 s{S_T0}, s{S_T0}, {RING}
    v_add_u32 v49, s{S_T0}, v41
    v_add_u32 v50, 0x10000, v49
    s_lshl_b32 s{S_T2}, s{S_H}, 17
    s_lshl_b32 s{S_T1}, s{S_WV}, 12      ; w*4 rows*1024
    s_add_u32 s{S_T2}, s{S_T2}, s{S_T1}
""")
    ptr_off = {0: 24, 1: 32, 2: 40, 3: 16}
    chunks = [(m, ks) for m in range(4) for ks in range(8)]
    def issue(ci):
        m, ks = chunks[ci]
        slot = ci % 8
        if ks == 0:
            a(f"""    s_load_dwordx2 s[{S_W}:{S_W+1}], s[0:1], {ptr_off[m]}
    s_mov_b32 s{S_W+2}, 0x400000
    s_mov_b32 s{S_W+3}, 0x20000
    s_waitcnt lgkmcnt(0)""")
        for ii in range(4):
            a(f"""    s_lshl_b32 s{S_T0}, s{S_WV}, 12
    s_add_u32 m0, s{S_T0}, {RING + slot*16384 + ii*1024}""")
            if m == 2:
                a(f"""    s_add_u32 s{S_T1}, s{S_T2}, {ks*16384 + ii*1024}
    buffer_load_dwordx4 v{V_L16}, s[{S_W}:{S_W+3}], s{S_T1} offen lds""")
            else:
                a(f"""    s_mov_b32 s{S_T1}, {ks*524288 + ii*32768}
    buffer_load_dwordx4 v46, s[{S_W}:{S_W+3}], s{S_T1} offen lds""")
    steps = []
    for ci in range(32):
        m, ks = chunks[ci]
        if m == 2:
            if ks % 2 == 1: steps.append((ci, [ci-1, ci]))
        else: steps.append((ci, [ci]))
    issued = 0
    def issue_upto(limit):
        nonlocal issued
        while issued < min(limit, 32):
            issue(issued); issued += 1
    freed = set()
    issue_upto(8)
    if after_first: after_first()
    for (ci, fr) in steps:
        m, ks = chunks[ci]
        a(f"    s_waitcnt vmcnt({(issued - (ci+1))*4})")
        a("    s_barrier")
        if ci == 9 and at_iter8: at_iter8()
        if ci == 27 and at_iter27: at_iter27()
        while issued < 32 and (issued - 8) in freed: issue(issued); issued += 1
        slot = ci % 8
        if m in (0, 1, 3):
            base = "v47" if slot < 4 else "v48"
            so = (slot % 4) * 16384
            for t in range(2):
                for p in range(4):
                    off = so + (32*(p >> 1) + (p & 1))*256 + 32*t
                    if m == 0: dst = ar(t*64 + 8*ks + 2*p, 2)
                    elif m == 1: dst = ar(128 + t*64 + 8*ks + 2*p, 2)
                    else: dst = vr(56 + t*8 + 2*p, 2)
                    a(f"    ds_read_b64_tr_b16 {dst}, {base} offset:{chk(off, 65535)}")
            a("    s_waitcnt lgkmcnt(0)")
            if m == 3:
                a("    s_barrier")
                wb = f"v{V_WO}" if ks < 4 else f"v{V_WO2}"
                for t in range(2):
                    for hf in range(2):
                        a(f"    ds_write_b128 {wb}, {vr(56 + t*8 + 4*hf, 4)} offset:{(ks%4)*16384 + t*2048 + hf*1024}")
                a("    s_waitcnt lgkmcnt(0)")
        else:
            kp = ks // 2
            s0 = slot - 1
            base = "v49" if s0 < 4 else "v50"
            so = (s0 % 4) * 16384
            for m_ in range(4):
                for p in range(4):
                    off = so + (8*(p >> 1) + (p & 1))*1024 + 64*m_
                    a(f"    ds_read_b64_tr_b16 {vr(128 + (m_*4+kp)*8 + 2*p, 2)}, {base} offset:{chk(off, 65535)}")
            a("    s_waitcnt lgkmcnt(0)")
        for c in fr: freed.add(c)
    a("    s_barrier")

def chain_mem0_issue(a, name):
    a(f"""    s_load_dwordx2 s[{S_W2}:{S_W2+1}], s[0:1], 8
    s_mov_b32 s{S_W2+2}, 8192
    s_mov_b32 s{S_W2+3}, 0x20000
    v_lshrrev_b32 v72, 7, v0            ; t>>7
    v_lshlrev_b32 v72, 6, v72           ; *32 cols *2B
    v_bfe_u32 v73, v0, 4, 3
    v_lshlrev_b32 v73, 10, v73          ; token*1024
    v_and_b32 v74, 15, v0
    v_lshlrev_b32 v74, 1, v74
    v_add3_u32 v72, v72, v73, v74
    s_waitcnt lgkmcnt(0)
""")
    for i in range(8):
        a(f"    buffer_load_ushort v{56+2*i}, v72, s[{S_W2}:{S_W2+3}], 0 offen offset:{128*i}")
        a(f"    buffer_load_ushort v{57+2*i}, v72, s[{S_W2}:{S_W2+3}], 0 offen offset:{128*i+32}")
def chain_mem0_finish(a, name):
    a("    v_lshlrev_b32 v73, 2, v0")
    for i in range(8):
        a(f"    v_lshl_or_b32 v{56+2*i}, v{57+2*i}, 16, v{56+2*i}")
        a(f"    ds_write_b32 v73, v{56+2*i} offset:{L_M + 1024*i}")
    a("    s_waitcnt lgkmcnt(0)")
def chain_load_mem0(a, name):
    chain_mem0_issue(a, name)
    a("    s_waitcnt vmcnt(0)")
    chain_mem0_finish(a, name)

def delay(a, cyc):
    n = cyc // 4
    while n > 0:
        k = min(n, 16)
        a(f"    s_nop {k-1}")
        n -= k

def init_scalars(a):
    a(f"""    s_mov_b32 s{S_P1W}, {WS_P1}
    s_mov_b32 s{S_P1W2}, {WS_P1 + 4096}
    s_mov_b32 s{S_P1W3}, {WS_P1 + P1C}
    s_mov_b32 s{S_P1W4}, {WS_P1 + P1C + 4096}
    s_mov_b32 s{S_P1X}, {WS_P1 + P1SLOT}
    s_mov_b32 s{S_MW}, {WS_M + 8192}
    s_mov_b32 s{S_MW2}, {WS_M + 8192 + 4096}
    s_mov_b32 s{S_MX}, {WS_M + 3*8192}
    s_lshl_b32 s{S_T1}, s{S_H}, 11
    s_lshl_b32 s{S_T2}, s{S_WV}, 9
    s_add_u32 s{S_T1}, s{S_T1}, s{S_T2}
    s_add_u32 s{S_KMP}, s{S_T1}, {WS_KM}
    s_add_u32 s{S_VMP}, s{S_T1}, {WS_VM}
    s_add_u32 s{S_T0}, s{S_H}, 32
    s_lshl_b32 s{S_T0}, s{S_T0}, 13
    s_lshl_b32 s{S_T2}, s{S_WV}, 11
    s_add_u32 s{S_T0}, s{S_T0}, s{S_T2}
    s_add_u32 s{S_KN}, s{S_T0}, {WS_KF}
    s_add_u32 s{S_VN}, s{S_T0}, {WS_VF}
    s_add_u32 s{S_T0}, s{S_H}, 64
    s_lshl_b32 s{S_T0}, s{S_T0}, 13
    s_add_u32 s{S_PF}, s{S_T0}, s{S_PFW}
    s_lshl_b32 s{S_T0}, s{S_H}, 7
    s_add_u32 s{S_FCH}, s{S_T0}, {F_CH}""")

def chain_loop(a, name, opt):
    ws = f"s[{S_WS}:{S_WS+3}]"
    R_A = 32
    ACC = 64
    QX, QY, KX_, KY, VX, VY = [ACC + 4*i for i in range(6)]
    WB = [88, 96, 104, 112, 120]
    NWB = len(WB)
    A = lambda ks: vr(R_A + 4*ks, 4)
    stamp = opt.get('stamp')
    ntf = 'nt' if opt.get('nt') else ''
    pts = opt.get('pts', [])
    def ts(nm):
        if not stamp: return
        if nm == 0: a(f"    s_memtime s[{S_TS}:{S_TS+1}]")
        elif nm in pts:
            i = pts.index(nm) + 1
            a(f"    s_memtime s[{S_TS+2*i}:{S_TS+2*i+1}]")
    L = a.lds
    def z2(reg): a(f"    v_mov_b64 {vr(reg,2)}, 0")
    def rt(i):
        if opt.get('rt'): a(f"    s_memrealtime s[{S_TS+2*i}:{S_TS+2*i+1}]")
    def wq_read(i, hf):
        ks, t = i // 2, i % 2
        base = f"v{V_WO}" if ks < 4 else f"v{V_WO2}"
        a.ds(f"ds_read_b128 {vr(WB[i % NWB] + 4*hf, 4)}, {base} offset:{(ks%4)*16384 + t*2048 + hf*1024}", ('W', i, hf))
    a(f"    s_mov_b32 s{S_STEP}, 0")
    init_scalars(a)
    for i in range(12): z2(ACC + 2*i)
    L.reset()
    for i in range(NWB):
        wq_read(i, 0); wq_read(i, 1)
    a(f"L_step_{name}:")
    a("    s_waitcnt lgkmcnt(0)")
    a("    s_barrier")
    if opt.get('rawlog'):
        npt = len(pts)
        a(f"""    s_lshl_b32 s98, s{S_H}, 2
    s_add_u32 s98, s98, s{S_WV}
    s_lshl_b32 s98, s98, 12
    s_lshl_b32 s93, s{S_STEP}, 5
    s_add_u32 s98, s98, s93
    s_add_u32 s98, s98, {WS_FLAG + 0x40000}""")
        for i in range(8):
            a(f"    v_mov_b32 v{32+i}, s{S_TS + 2*i}" if i <= npt else f"    v_mov_b32 v{32+i}, 0")
        a(f"""    s_mov_b64 exec, 1
    buffer_store_dwordx4 v[32:35], off, {ws}, s98
    buffer_store_dwordx4 v[36:39], off, {ws}, s98 offset:16
    s_mov_b64 exec, -1""")
    if opt.get('steplog'):
        a(f"""    s_cmp_lg_u32 s{S_WV}, 0
    s_cbranch_scc1 L_nolog_{name}
    s_memrealtime s[94:95]
    s_memtime s[96:97]
    s_waitcnt lgkmcnt(0)
    s_lshl_b32 s98, s{S_H}, 10
    s_lshl_b32 s93, s{S_STEP}, 3
    s_add_u32 s98, s98, s93
    s_add_u32 s98, s98, {WS_FLAG + 0x20000}
    v_mov_b32 v32, s94
    v_mov_b32 v33, s96
    s_mov_b64 exec, 1
    buffer_store_dwordx2 v[32:33], off, {ws}, s98
    s_mov_b64 exec, -1
L_nolog_{name}:""")
    L.reset()
    for i in range(NWB):
        L.tags[('W', i, 0)] = 0; L.tags[('W', i, 1)] = 0
    ts(0)
    if opt.get('rt'):
        a(f"""    s_cmp_eq_u32 s{S_STEP}, {opt['rt']+1}
    s_cbranch_scc0 L_nort_{name}
    v_mov_b32 v32, s{S_TS}
    v_mov_b32 v33, s{S_TS+2}
    v_mov_b32 v34, s{S_TS+4}
    v_mov_b32 v35, s{S_TS+6}
    v_mov_b32 v36, s{S_TS+8}
    v_mov_b32 v37, s{S_TS+10}
    v_mov_b32 v38, 0
    v_mov_b32 v39, 0
    s_lshl_b32 s{S_T0}, s{S_H}, 2
    s_add_u32 s{S_T0}, s{S_T0}, s{S_WV}
    s_lshl_b32 s{S_T0}, s{S_T0}, 5
    s_add_u32 s{S_T0}, s{S_T0}, {WS_FLAG + 0x4000}
    v_mov_b32 v40, 0
    s_mov_b64 exec, 1
    buffer_store_dwordx4 v[32:35], v40, {ws}, s{S_T0} offen
    buffer_store_dwordx4 v[36:39], v40, {ws}, s{S_T0} offen offset:16
    s_mov_b64 exec, -1
    s_waitcnt vmcnt(0)
L_nort_{name}:""")
    rt(0)
    for ks in range(4): a.ds(f"ds_read_b128 {A(ks)}, v{V_AR} offset:{L_M + ks*1024}", ('A', ks))
    flags = opt.get('flags')
    if flags:
        a(f"""    v_readfirstlane_b32 s{S_T0}, v0
    s_cmp_ge_u32 s{S_T0}, s{S_FLT}
    s_cbranch_scc1 L_kvok_{name}
L_kvw_{name}:
    buffer_load_dword v0, off, {ws}, s{S_FLN} sc1
    s_waitcnt vmcnt(0)
    v_readfirstlane_b32 s{S_T0}, v0
    s_cmp_ge_u32 s{S_T0}, s{S_FLT}
    s_cbranch_scc1 L_kvok_{name}
    s_sleep 2
    s_add_u32 s{S_RETRY}, s{S_RETRY}, 1
    s_cmp_lt_u32 s{S_RETRY}, 1000000
    s_cbranch_scc1 L_kvw_{name}
    s_endpgm
L_kvok_{name}:""")
    wqueue = [(i, hf) for i in range(NWB, 16) for hf in range(2)]
    def nextw():
        if wqueue:
            i, hf = wqueue.pop(0); wq_read(i, hf)
    def st_reset1(): a.vmem(f"buffer_store_dword v{V_NEG1}, v{V_P1R}, {ws}, s{S_P1X} offen")
    def st_reset2(): a.vmem(f"buffer_store_dword v{V_NEG1}, v{V_P1R}, {ws}, s{S_P1X} offen offset:1024")
    def st_reset3():
        a(f"    s_mov_b64 exec, s[{S_MEX}:{S_MEX+1}]")
        a.vmem(f"buffer_store_dword v{V_NEG1}, v{V_MS}, {ws}, s{S_MX} offen")
        a(f"    s_mov_b64 exec, -1")
    def pf():
        a(f"    v_lshlrev_b32 v{V_TR}, 2, v{V_L16}")
        a.vmem(f"buffer_load_dword v{V_TR}, v{V_TR}, {ws}, s{S_PF} offen {ntf}")
        a(f"    s_add_u32 s{S_T0}, s{S_PF}, {0 if opt.get('samekv') else 32*8192}")
        a(f"    s_cmp_lt_u32 s{S_STEP}, 61")
        a(f"    s_cselect_b32 s{S_PF}, s{S_T0}, s{S_PF}")
        if flags:
            a(f"""    s_add_u32 s{S_T0}, s{S_STEP}, 3
    s_min_u32 s{S_T0}, s{S_T0}, 63
    s_lshr_b32 s{S_FLT}, s{S_T0}, 2
    s_add_u32 s{S_FLT}, s{S_FLT}, 1
    s_and_b32 s{S_T0}, s{S_T0}, 3
    s_lshl_b32 s{S_T0}, s{S_T0}, 5
    s_add_u32 s{S_T0}, s{S_T0}, s{S_H}
    s_lshl_b32 s{S_T0}, s{S_T0}, 2
    s_add_u32 s{S_FLN}, s{S_T0}, {F_KV}""")
            a.vmem(f"buffer_load_dword v0, off, {ws}, s{S_FLN} sc1")
    def upd_ring():
        pass
    def pubch():
        if not flags: return
        a(f"""    s_cmp_lg_u32 s{S_WV}, 0
    s_cbranch_scc1 L_nopub_{name}
    v_mov_b32 v0, s{S_STEP}
    s_mov_b64 exec, 1
    buffer_store_dword v0, off, {ws}, s{S_FCH} sc1
    s_mov_b64 exec, -1
L_nopub_{name}:""")
    extra = {1: lambda: (pubch(), pf()), 5: st_reset1, 6: st_reset2, 7: st_reset3}
    for ks in range(8):
        L.need(('A', ks), ('W', 2*ks, 1))
        a(f"    v_smfmac_f32_16x16x64_bf16 {vr(QX,4)}, {A(ks)}, {vr(WB[(2*ks) % NWB],8)}, v{V_IDX}")
        nextw()
        L.need(('W', 2*ks+1, 1))
        a(f"    v_smfmac_f32_16x16x64_bf16 {vr(QY,4)}, {A(ks)}, {vr(WB[(2*ks+1) % NWB],8)}, v{V_IDX}")
        nextw()
        a(f"    v_smfmac_f32_16x16x64_bf16 {vr(KX_,4)}, {A(ks)}, {wk(0,ks)}, v{V_IDX}")
        nextw()
        a(f"    v_smfmac_f32_16x16x64_bf16 {vr(KY,4)}, {A(ks)}, {wk(1,ks)}, v{V_IDX}")
        if ks == 0:
            a("    s_waitcnt vmcnt(0)")
            for k2 in range(4, 8): a.ds(f"ds_read_b128 {A(k2)}, v{V_AR} offset:{L_M + k2*1024}", ('A', k2))
        nextw()
        if ks in extra: extra[ks]()
        ts(f'k{ks}')
    ts('QK')
    KXF = 96
    QF = 64
    KF = R_A
    vs = []
    for ks in range(8):
        vs.append(f"    v_smfmac_f32_16x16x64_bf16 {vr(VX,4)}, {A(ks)}, {wv(0,ks)}, v{V_IDX}")
        vs.append(f"    v_smfmac_f32_16x16x64_bf16 {vr(VY,4)}, {A(ks)}, {wv(1,ks)}, v{V_IDX}")
    def kxr(i): a.ds(f"ds_read_b128 {vr(KXF + 4*i, 4)}, v{V_L16} offset:{L_KX + i*1024}", ('KX', i))
    for j in range(4):
        a(vs[j]); kxr(j)
    ts('v4')
    a(f"    v_add_f32 v{QX}, v{QX}, v{QX+1}")
    a(f"    v_add_f32 v{QX+2}, v{QX+2}, v{QX+3}")
    a(f"    v_add_f32 v{QY}, v{QY}, v{QY+1}")
    a(f"    v_add_f32 v{QY+2}, v{QY+2}, v{QY+3}")
    kxr(4)
    a(f"    v_cvt_pk_bf16_f32 v{QX}, v{QX}, v{QY}")
    a(f"    v_cvt_pk_bf16_f32 v{QX+2}, v{QX+2}, v{QY+2}")
    a(f"    v_add_f32 v{KX_}, v{KX_}, v{KX_+1}")
    a(f"    v_add_f32 v{KX_+2}, v{KX_+2}, v{KX_+3}")
    a.ds(f"ds_write_b32 v{V_QW}, v{QX} offset:{L_Q}")
    a.ds(f"ds_write_b32 v{V_QW}, v{QX+2} offset:{L_Q+272}")
    a(f"    v_add_f32 v{KY}, v{KY}, v{KY+1}")
    a(f"    v_add_f32 v{KY+2}, v{KY+2}, v{KY+3}")
    kxr(5)
    a(f"    v_cvt_pk_bf16_f32 v{KX_}, v{KX_}, v{KY}")
    a(f"    v_cvt_pk_bf16_f32 v{KX_+2}, v{KX_+2}, v{KY+2}")
    a.ds(f"ds_write_b32 v{V_QW}, v{KX_} offset:{L_K}")
    a.ds(f"ds_write_b32 v{V_QW}, v{KX_+2} offset:{L_K+272}", 'kw')
    ts('vpost')
    a(vs[4]); kxr(6)
    a(vs[5]); kxr(7)
    pubf = opt.get('pubflag', 'sc1')
    nopub = opt.get('nopub')
    a(vs[6])
    if not nopub: a.vmem(f"buffer_store_dword v{KX_}, v{V_KM}, {ws}, s{S_KMP} offen {pubf}")
    a(vs[7])
    if not nopub: a.vmem(f"buffer_store_dword v{KX_+2}, v{V_KM}, {ws}, s{S_KMP} offen offset:16 {pubf}")
    ts('preB2w')
    L.need('kw', ('KX', 7))
    ts('preB2')
    a("    s_barrier")
    ts('B2')
    a(f"    s_mov_b32 m0, s{S_KM0}")
    for ks in range(4):
        a.ds(f"ds_read_b128 {vr(QF + 4*ks, 4)}, v{V_QR} offset:{L_Q + ks*64}", ('QF', ks))
        a(vs[8 + ks])
        if ks == 0:
            a(f"    s_xor_b32 s{S_P1X}, s{S_P1X}, 0x40000\n    s_add_u32 s{S_MX}, s{S_MX}, 8192\n    s_and_b32 s{S_MX}, s{S_MX}, {hex(WS_M | 0x7fff)}")
        if ks == 2:
            a(f"    s_add_u32 s{S_KMP}, s{S_KMP}, 65536")
        if ks == 1: a.vmem(f"buffer_load_dwordx4 v{V_L16}, {ws}, s{S_KN} offen sc1 {ntf} lds")
    for ks in range(4):
        a.ds(f"ds_read_b128 {vr(KF + 4*ks, 4)}, v{V_KR} offset:{L_K + ks*64}", ('KF', ks))
        a(vs[12 + ks])
        if ks == 1: a.vmem(f"buffer_load_dwordx4 v{V_L16}, {ws}, s{S_KN} offen offset:1024 sc1 {ntf} lds")
        if ks == 2: a(f"    s_add_u32 s{S_KN}, s{S_KN}, {0 if opt.get('samekv') else 32*8192}")
    ts('V')
    ST0, ST1, ST2 = R_A + 16, R_A + 20, R_A + 24
    LBR, OX, OY, LL = 88, 92, 96, 100
    for ks in range(4):
        L.need(('QF', ks), ('KX', 4 + ks))
        c0 = "0" if ks == 0 else vr(ST0,4)
        c1 = "0" if ks == 0 else vr(ST1,4)
        a(f"    v_mfma_f32_16x16x32_bf16 {vr(ST0,4)}, {vr(KXF + 4*ks,4)}, {vr(QF+4*ks,4)}, {c0}")
        if ks == 0: a.ds(f"ds_read_b128 {vr(LBR,4)}, v{V_L16} offset:{L_LB}", 'LB')
        if ks == 1: z2(OX)
        if ks == 2: z2(OX+2)
        if ks == 3: a(f"    v_add_f32 v{VX}, v{VX}, v{VX+1}\n    v_add_f32 v{VX+2}, v{VX+2}, v{VX+3}")
        a(f"    v_mfma_f32_16x16x32_bf16 {vr(ST1,4)}, {vr(KXF + 16 + 4*ks,4)}, {vr(QF+4*ks,4)}, {c1}")
        if ks == 1: z2(OY)
        if ks == 2: z2(OY+2)
        if ks == 3: a(f"    v_add_f32 v{VY}, v{VY}, v{VY+1}\n    v_add_f32 v{VY+2}, v{VY+2}, v{VY+3}")
    ts('Sx')
    for ks in range(4):
        L.need(('KF', ks))
        c2 = "0" if ks == 0 else vr(ST2,4)
        a(f"    v_mfma_f32_16x16x32_bf16 {vr(ST2,4)}, {vr(KF + 4*ks,4)}, {vr(QF+4*ks,4)}, {c2}")
        if ks == 0:
            a(f"    v_cvt_pk_bf16_f32 v{V_VBX+2}, v{VX}, v{VX+2}\n    v_cvt_pk_bf16_f32 v{V_VBY+2}, v{VY}, v{VY+2}")
        if ks == 1:
            a(f"    v_lshrrev_b32 v{VX}, 2, v{V_L16}")
        if ks == 2 and not nopub:
            a.vmem(f"buffer_store_dword v{V_VBX+2}, v{VX}, {ws}, s{S_VMP} offen {pubf}")
        if ks == 3:
            if not nopub: a.vmem(f"buffer_store_dword v{V_VBY+2}, v{VX}, {ws}, s{S_VMP} offen offset:256 {pubf}")
            else: a("    s_nop 0")
    a(f"""    s_cmp_eq_u32 s{S_STEP}, {opt.get('nsteps',64)-1}
    s_cbranch_scc1 L_done_{name}""")
    ts('S')
    X = 64
    WACC = 104
    for r in range(4):
        a(f"    v_cndmask_b32 v{X+r}, v{ST0+r}, v{ST1+r}, s[{S_HALF}:{S_HALF+1}]")
    M_ = X + 4; T_ = X + 5
    a(f"    v_max3_f32 v{M_}, v{X}, v{X+1}, v{X+2}")
    a(f"    v_max3_f32 v{T_}, v{X+3}, v{ST2}, v{ST2+1}")
    a(f"    v_max3_f32 v{M_}, v{M_}, v{ST2+2}, v{ST2+3}")
    a(f"    v_max_f32 v{M_}, v{M_}, v{T_}")
    a("    s_nop 1")
    a(f"    v_max_f32_dpp v{M_}, v{M_}, v{M_} quad_perm:[1,0,3,2] row_mask:0xf bank_mask:0xf")
    a(f"    v_mov_b32 v{T_}, v{M_}")
    a("    s_nop 1")
    a(f"    v_permlane16_swap_b32 v{M_}, v{T_}")
    a(f"    v_max_f32 v{M_}, v{M_}, v{T_}")
    a(f"    v_mov_b32 v{T_}, v{M_}")
    a("    s_nop 1")
    a(f"    v_permlane32_swap_b32 v{M_}, v{T_}")
    a(f"    v_max_f32 v{M_}, v{M_}, v{T_}")
    a(f"    v_mul_f32 v{M_}, s{S_C}, v{M_}")
    ts('max')
    E = X + 6
    srcs = [X, X+1, ST2, ST2+1, X+2, X+3, ST2+2, ST2+3]
    for i, s_ in enumerate(srcs):
        a(f"    v_fma_f32 v{E+i}, v{s_}, s{S_C}, -v{M_}")
    for i in range(8):
        a(f"    v_exp_f32 v{E+i}, v{E+i}")
    P = ST0
    a(f"    v_cvt_pk_bf16_f32 v{P}, v{E}, v{E+1}")
    a(f"    v_cvt_pk_bf16_f32 v{P+1}, v{E+2}, v{E+3}")
    a(f"    v_cvt_pk_bf16_f32 v{P+2}, v{E+4}, v{E+5}")
    a(f"    v_cvt_pk_bf16_f32 v{P+3}, v{E+6}, v{E+7}")
    ts('smax')
    L.need('LB')
    a("    s_nop 1")
    a(f"    v_mfma_f32_16x16x32_bf16 {vr(LL,4)}, {vr(P,4)}, {vr(LBR,4)}, 0")
    a(f"    v_smfmac_f32_16x16x64_bf16 {vr(OX,4)}, {vr(P,4)}, {vr(V_VBX,8)}, v{V_IDX}")
    a(f"    v_smfmac_f32_16x16x64_bf16 {vr(OY,4)}, {vr(P,4)}, {vr(V_VBY,8)}, v{V_IDX}")
    ts('PV')
    a.vmem(f"buffer_load_dwordx2 {vr(V_VBX,2)}, v{V_VX}, {ws}, s{S_VN} offen sc1 {ntf}")
    for i in range(5): z2(WACC + 2*i)
    a(f"    v_add_f32 v{LL}, v{LL}, v{LL+1}")
    a(f"    v_add_f32 v{LL+2}, v{LL+2}, v{LL+3}")
    a(f"    v_rcp_f32 v{LL}, v{LL}")
    a(f"    v_rcp_f32 v{LL+2}, v{LL+2}")
    a(f"    v_add_f32 v{OX}, v{OX}, v{OX+1}")
    a(f"    v_add_f32 v{OX+2}, v{OX+2}, v{OX+3}")
    a(f"    v_add_f32 v{OY}, v{OY}, v{OY+1}")
    a(f"    v_add_f32 v{OY+2}, v{OY+2}, v{OY+3}")
    a.vmem(f"buffer_load_dwordx2 {vr(V_VBX+4,2)}, v{V_VX}, {ws}, s{S_VN} offen offset:512 sc1 {ntf}")
    a(f"    v_mul_f32 v{OX}, v{OX}, v{LL}")
    a(f"    v_mul_f32 v{OY}, v{OY}, v{LL}")
    a(f"    v_mul_f32 v{OX+2}, v{OX+2}, v{LL+2}")
    a(f"    v_mul_f32 v{OY+2}, v{OY+2}, v{LL+2}")
    a(f"    v_cvt_pk_bf16_f32 v{OX}, v{OX}, v{OY}")
    a(f"    v_cvt_pk_bf16_f32 v{OX+2}, v{OX+2}, v{OY+2}")
    ts('opost')
    a.ds(f"ds_write_b32 v{V_QW}, v{OX} offset:{L_O}")
    a.ds(f"ds_write_b32 v{V_QW}, v{OX+2} offset:{L_O+272}", 'ow')
    for i in range(5, 8): z2(WACC + 2*i)
    a.vmem(f"buffer_load_dwordx2 {vr(V_VBY,2)}, v{V_VX}, {ws}, s{S_VN} offen offset:1024 sc1 {ntf}")
    ts('preB3w')
    L.need('ow')
    ts('preB3')
    a("    s_barrier")
    ts('B3')
    rt(5)
    OA = 64
    for kp in range(4):
        a.ds(f"ds_read_b128 {vr(OA+4*kp,4)}, v{V_QR} offset:{L_O + kp*64}", ('O', kp))
    a.ds(f"ds_read_b128 {vr(R_A,4)}, v{V_L16} offset:{L_SEL}", 'SEL')
    a.vmem(f"buffer_load_dwordx2 {vr(V_VBY+4,2)}, v{V_VX}, {ws}, s{S_VN} offen offset:1536 sc1 {ntf}")
    ts('B3r')
    SELR = R_A; RD = R_A + 4
    G1A, G1B = R_A + 8, R_A + 16
    def shot(G, va, so, so2, off2):
        a(f"    buffer_load_dwordx4 {vr(G,4)}, v{va}, {ws}, s{so} offen sc1")
        a(f"    buffer_load_dwordx4 {vr(G+4,4)}, v{va}, {ws}, s{so2} offen offset:{off2} sc1")
    early = opt.get('early', {0: 1, 1: 2})
    for m_ in range(4):
        for kp in range(4):
            L.need(('O', kp))
            a(f"    v_smfmac_f32_16x16x64_bf16 {vr(WACC+4*m_,4)}, {vr(OA+4*kp,4)}, {wo(m_,kp)}, v{V_IDX}")
            if m_ == 0 and kp == 1:
                a(f"    s_add_u32 s{S_VMP}, s{S_VMP}, 65536\n    s_add_u32 s{S_VN}, s{S_VN}, {0 if opt.get('samekv') else 32*8192}\n    s_add_u32 s{S_STEP}, s{S_STEP}, 1")
            if kp == 0: ts(f'w{m_}')
            if m_ >= 1 and kp == 1:
                wo_post(a, WACC, m_ - 1, ws)
                for w_, pst in early.items():
                    if pst == m_ - 1:
                        a(f"    s_cmp_eq_u32 s{S_WV}, {w_}\n    s_cbranch_scc0 L_{name}_ns{w_}")
                        shot(G1A, V_P1R, S_P1W, S_P1W, 1024)
                        a(f"L_{name}_ns{w_}:")
    ts('wend')
    a("    s_nop 7")
    wo_post(a, WACC, 3, ws)
    ts('Wo')
    rt(1)
    def cons1(G):
        a(f"    v_mfma_f32_16x16x32_bf16 {vr(RD,4)}, {vr(SELR,4)}, {vr(G,4)}, 0")
        a(f"    v_mfma_f32_16x16x32_bf16 {vr(RD,4)}, {vr(SELR,4)}, {vr(G+4,4)}, {vr(RD,4)}")
    L.need('SEL')
    dw = opt.get('dw', {2: 40, 3: 140})
    gap1 = opt.get('gap1', 100)
    if opt.get('roll'):
        k1 = opt.get('k1', 3)
        a(f"""    s_cmp_eq_u32 s{S_WV}, 3
    s_cbranch_scc1 L_{name}_t3
    s_cmp_eq_u32 s{S_WV}, 2
    s_cbranch_scc1 L_{name}_t2
    s_cmp_eq_u32 s{S_WV}, 1
    s_cbranch_scc1 L_{name}_t1""")
        for w_ in range(4):
            if w_ > 0: a(f"L_{name}_t{w_}:")
            delay(a, dw[w_])
            if w_ < 3: a(f"    s_branch L_{name}_td")
        a(f"L_{name}_td:")
        pollr(a, name + "_p1", G1A, R_A + 24, V_P1R, S_P1W, S_P1W, 1024, ws, k1, gap1, None, (91 if opt.get('cnt') else None))
        cons1(G1A)
    else:
        a(f"""    s_cmp_eq_u32 s{S_WV}, 3
        s_cbranch_scc1 L_{name}_t3
        s_cmp_eq_u32 s{S_WV}, 2
        s_cbranch_scc1 L_{name}_t2
        s_cmp_eq_u32 s{S_WV}, 1
        s_cbranch_scc1 L_{name}_t1""")
        for w_ in range(4):
            if w_ > 0: a(f"L_{name}_t{w_}:")
            nm = f"{name}_p1w{w_}"
            if w_ in early:
                younger = 2 * (3 - early[w_])
                pollx(a, nm, G1A, G1B, R_A + 24, V_P1R, S_P1W, S_P1W, 1024, ws, True, younger, 0, gap1, cons1, f"L_{name}_p1j", (91 if opt.get('cnt') else None))
            else:
                pollx(a, nm, G1A, G1B, R_A + 24, V_P1R, S_P1W, S_P1W, 1024, ws, False, 0, dw[w_], gap1, cons1, f"L_{name}_p1j", (91 if opt.get('cnt') else None))
    a(f"L_{name}_p1j:")
    ts('p1ok')
    rt(2)
    a("    s_nop 7")
    a(f"    v_add_f32_dpp v{RD}, v{RD}, v{RD} row_ror:8 row_mask:0xf bank_mask:0xf")
    a(f"    v_add_f32_dpp v{RD+1}, v{RD+1}, v{RD+1} row_ror:8 row_mask:0xf bank_mask:0xf")
    a("    s_nop 0")
    a(f"    v_add_f32_dpp v{RD}, v{RD}, v{RD} row_ror:4 row_mask:0xf bank_mask:0xf")
    a(f"    v_add_f32_dpp v{RD+1}, v{RD+1}, v{RD+1} row_ror:4 row_mask:0xf bank_mask:0xf")
    a(f"    v_cvt_pk_bf16_f32 v{RD}, v{RD}, v{RD+1}")
    a(f"    s_mov_b64 exec, s[{S_MEX}:{S_MEX+1}]")
    a(f"    buffer_store_dword v{RD}, v{V_MS}, {ws}, s{S_MW} offen")
    a(f"    s_mov_b64 exec, -1")
    ts('Mst')
    rt(3)
    if opt.get('ackdiag2'):
        a("    s_waitcnt vmcnt(0)")
        ts('ack2')
    d2 = opt.get('d2', 160); gap2 = opt.get('gap2', 100)
    for i in range(NWB):
        wq_read(i, 0); wq_read(i, 1)
    a(f"""    s_xor_b32 s{S_P1W}, s{S_P1W}, 0x40000
    s_xor_b32 s{S_P1W2}, s{S_P1W2}, 0x40000
    s_xor_b32 s{S_P1W3}, s{S_P1W3}, 0x40000
    s_xor_b32 s{S_P1W4}, s{S_P1W4}, 0x40000""")
    wave_delay(a, name + "_h2", d2 - 160, opt.get('stag2', 0))
    def fill2a():
        for i in range(12): z2(ACC + 2*i)
        delay(a, gap2 - 48)
    G2A, G2B = R_A + 24, R_A + 16
    def cons2(G):
        ts('p2ok')
        a(f"    ds_write_b128 v{V_MP}, {vr(G,4)} offset:{L_M}")
        a(f"    ds_write_b128 v{V_MP}, {vr(G+4,4)} offset:{L_M+4096}")
    if opt.get('roll'):
        if opt.get('k2', 3) == 1:
            for i in range(12): z2(ACC + 2*i)
        pollr(a, name + "_p2", G2A, RD, V_MP, S_MW, S_MW2, 0, ws, opt.get('k2', 3), gap2, fill2a, (92 if opt.get('cnt') else None))
        cons2(G2A)
    else:
        poll2(a, name + "_p2", G2A, G2B, RD, V_MP, S_MW, S_MW2, 0, ws, fill2a, lambda: None, cons2, (92 if opt.get('cnt') else None), lambda: ts('shot2'))
    rt(4)
    a(f"""    s_add_u32 s{S_MW}, s{S_MW}, 8192
    s_and_b32 s{S_MW}, s{S_MW}, {hex(WS_M | 0x7fff)}
    s_add_u32 s{S_MW2}, s{S_MW}, 4096""")
    ts('Mwr')
    if stamp:
        a("    s_waitcnt lgkmcnt(0)")
        for i in range(1, len(pts)+1):
            a(f"    s_sub_u32 s{S_T0}, s{S_TS+2*i}, s{S_TS}\n    s_add_u32 s{79+i}, s{79+i}, s{S_T0}")
    a(f"""    s_branch L_step_{name}
L_done_{name}:""")
    if flags:
        a(f"""    s_waitcnt vmcnt(0)
    s_barrier
    s_cmp_lg_u32 s{S_WV}, 0
    s_cbranch_scc1 L_nopub2_{name}
    v_mov_b32 v0, 64
    s_mov_b64 exec, 1
    buffer_store_dword v0, off, {ws}, s{S_FCH} sc1
    s_mov_b64 exec, -1
L_nopub2_{name}:""")

def wo_post(a, WACC, m, ws):
    X = WACC + 4*m
    a(f"    v_cvt_pk_bf16_f32 v{X}, v{X}, v{X+1}")
    a(f"    v_cvt_pk_bf16_f32 v{X+2}, v{X+2}, v{X+3}")
    s0, s1 = (S_P1W, S_P1W3) if m < 2 else (S_P1W2, S_P1W4)
    a(f"    buffer_store_dword v{X}, v{V_P1S}, {ws}, s{s0} offen offset:{(m & 1)*2048}")
    a(f"    buffer_store_dword v{X+2}, v{V_P1S}, {ws}, s{s1} offen offset:{(m & 1)*2048}")

def wave_delay(a, nm, d, stag):
    if d <= 0: return
    if stag == 0:
        delay(a, d); return
    for w in range(3):
        dl = max(0, d - stag*(3-w))
        a(f"    s_cmp_eq_u32 s{S_WV}, {w}\n    s_cbranch_scc0 L_{nm}_w{w}")
        delay(a, dl)
        a(f"    s_branch L_{nm}_e\nL_{nm}_w{w}:")
    delay(a, d)
    a(f"L_{nm}_e:")

def poll(a, nm, G, vaddr, soff, soff2, off2, ws, T, filler=None, cnt=None):
    s2 = soff2 if soff2 is not None else soff
    def lds():
        a(f"    buffer_load_dwordx4 {vr(G,4)}, v{vaddr}, {ws}, s{soff} offen sc1")
        a(f"    buffer_load_dwordx4 {vr(G+4,4)}, v{vaddr}, {ws}, s{s2} offen offset:{off2} sc1")
    lds()
    if filler: filler()
    a(f"""    s_waitcnt vmcnt(0)
    v_max_u32 v{T}, v{G}, v{G+4}
    v_cmp_eq_u32 vcc, -1, v{T}
    s_cbranch_vccz L_{nm}_ok
    s_mov_b64 exec, vcc""")
    if cnt: a(f"    s_add_u32 s{cnt}, s{cnt}, 1")
    lds()
    a(f"L_{nm}_loop:")
    a("    s_nop 15")
    lds()
    a(f"""    s_waitcnt vmcnt(2)
    s_mov_b64 exec, -1
    v_max_u32 v{T}, v{G}, v{G+4}
    v_cmp_eq_u32 vcc, -1, v{T}
    s_cbranch_vccz L_{nm}_ok2
    s_mov_b64 exec, vcc
    s_add_u32 s{S_RETRY}, s{S_RETRY}, 1
    s_cmp_lt_u32 s{S_RETRY}, 1000000
    s_cbranch_scc1 L_{nm}_loop
    s_mov_b64 exec, -1
    s_endpgm
L_{nm}_ok2:
    s_waitcnt vmcnt(0)
L_{nm}_ok:""")


def poll2(a, nm, GA, GB, T, vaddr, soff, soff2, off2, ws, fillA, fillB, consume, cnt=None, tsA=None):
    s2 = soff2 if soff2 is not None else soff
    def lds(G):
        a(f"    buffer_load_dwordx4 {vr(G,4)}, v{vaddr}, {ws}, s{soff} offen sc1")
        a(f"    buffer_load_dwordx4 {vr(G+4,4)}, v{vaddr}, {ws}, s{s2} offen offset:{off2} sc1")
    lds(GA)
    fillA()
    lds(GB)
    fillB()
    a("    s_waitcnt vmcnt(2)")
    if tsA: tsA()
    a(f"""    v_max_u32 v{T}, v{GA}, v{GA+4}
    v_cmp_eq_u32 vcc, -1, v{T}
    s_cbranch_vccz L_{nm}_okA""")
    if cnt: a(f"    s_add_u32 s{cnt}, s{cnt}, 1")
    a(f"""    s_waitcnt vmcnt(0)
    v_max_u32 v{T}, v{GB}, v{GB+4}
    v_cmp_eq_u32 vcc, -1, v{T}
    s_cbranch_vccz L_{nm}_okB""")
    if cnt: a(f"    s_add_u32 s{cnt}, s{cnt}, 0x100")
    a("    s_mov_b64 exec, vcc")
    lds(GB)
    a(f"L_{nm}_loop:")
    a("    s_nop 15")
    lds(GB)
    a(f"""    s_waitcnt vmcnt(2)
    s_mov_b64 exec, -1
    v_max_u32 v{T}, v{GB}, v{GB+4}
    v_cmp_eq_u32 vcc, -1, v{T}
    s_cbranch_vccz L_{nm}_okB
    s_mov_b64 exec, vcc
    s_add_u32 s{S_RETRY}, s{S_RETRY}, 1
    s_cmp_lt_u32 s{S_RETRY}, 1000000
    s_cbranch_scc1 L_{nm}_loop
    s_mov_b64 exec, -1
    s_endpgm
L_{nm}_okB:""")
    consume(GB)
    a(f"    s_branch L_{nm}_join")
    a(f"L_{nm}_okA:")
    consume(GA)
    a(f"L_{nm}_join:")


def pollx(a, nm, GA, GB, T, vaddr, soff, soff2, off2, ws, issued, younger, d, gap, consume, join, cnt=None):
    def lds(G):
        a(f"    buffer_load_dwordx4 {vr(G,4)}, v{vaddr}, {ws}, s{soff} offen sc1")
        a(f"    buffer_load_dwordx4 {vr(G+4,4)}, v{vaddr}, {ws}, s{soff2} offen offset:{off2} sc1")
    if issued:
        a(f"    s_waitcnt vmcnt({younger})")
        a(f"""    v_max_u32 v{T}, v{GA}, v{GA+4}
    v_cmp_eq_u32 vcc, -1, v{T}
    s_cbranch_vccz L_{nm}_okA""")
        lds(GB)
    else:
        delay(a, d)
        lds(GA)
        delay(a, gap)
        lds(GB)
        a(f"""    s_waitcnt vmcnt(2)
    v_max_u32 v{T}, v{GA}, v{GA+4}
    v_cmp_eq_u32 vcc, -1, v{T}
    s_cbranch_vccz L_{nm}_okA""")
    if cnt: a(f"    s_add_u32 s{cnt}, s{cnt}, 1")
    a(f"""    s_waitcnt vmcnt(0)
    v_max_u32 v{T}, v{GB}, v{GB+4}
    v_cmp_eq_u32 vcc, -1, v{T}
    s_cbranch_vccz L_{nm}_okB""")
    if cnt: a(f"    s_add_u32 s{cnt}, s{cnt}, 0x100")
    a("    s_mov_b64 exec, vcc")
    lds(GB)
    a(f"L_{nm}_loop:")
    a("    s_nop 7")
    lds(GB)
    a(f"""    s_waitcnt vmcnt(2)
    s_mov_b64 exec, -1
    v_max_u32 v{T}, v{GB}, v{GB+4}
    v_cmp_eq_u32 vcc, -1, v{T}
    s_cbranch_vccz L_{nm}_okB
    s_mov_b64 exec, vcc
    s_add_u32 s{S_RETRY}, s{S_RETRY}, 1
    s_cmp_lt_u32 s{S_RETRY}, 1000000
    s_cbranch_scc1 L_{nm}_loop
    s_mov_b64 exec, -1
    s_endpgm
L_{nm}_okB:""")
    consume(GB)
    a(f"    s_branch {join}")
    a(f"L_{nm}_okA:")
    consume(GA)
    a(f"    s_branch {join}")


def pollr(a, nm, G, T, vaddr, soff, soff2, off2, ws, k, gap, fill=None, cnt=None):
    def lds():
        a(f"    buffer_load_dwordx4 {vr(G,4)}, v{vaddr}, {ws}, s{soff} offen sc1")
        a(f"    buffer_load_dwordx4 {vr(G+4,4)}, v{vaddr}, {ws}, s{soff2} offen offset:{off2} sc1")
    for i in range(k):
        lds()
        if i < k - 1:
            if i == 0 and fill: fill()
            else: delay(a, gap)
    a(f"L_{nm}_loop:")
    a(f"""    s_waitcnt vmcnt({2*(k-1)})
    s_mov_b64 exec, -1
    v_max_u32 v{T}, v{G}, v{G+4}
    v_cmp_eq_u32 vcc, -1, v{T}
    s_cbranch_vccz L_{nm}_ok
    s_mov_b64 exec, vcc""")
    lds()
    if cnt: a(f"    s_add_u32 s{cnt}, s{cnt}, 1")
    a(f"""    s_add_u32 s{S_RETRY}, s{S_RETRY}, 1
    s_cmp_lt_u32 s{S_RETRY}, 1000000
    s_cbranch_scc1 L_{nm}_loop
    s_mov_b64 exec, -1
    s_endpgm
L_{nm}_ok:""")
```

```python
from asmlib import *
from chain import *

S_LATE = 46
S_CNT1, S_CNT2 = 91, 92
S_FLTN, S_FLNN = 72, 73
S_Q0 = 12
S_TQ = 14
S_FCV = 74
S_W0 = 70

def chain_loop2(a, name, opt):
    ws = f"s[{S_WS}:{S_WS+3}]"
    flags = opt.get('flags')
    R_A = 32
    ACC = 64
    QX, QY, KX_, KY, VX, VY = [ACC + 4*i for i in range(6)]
    WB = [88, 96, 104, 112, 120]
    NWB = len(WB)
    EARLY = opt.get('earlyhalf', 1)
    KS = [0, 2, 4, 6, 1, 3, 5, 7] if EARLY else list(range(8))
    A = lambda j: vr(R_A + 4*j, 4)
    L = a.lds
    cnt1 = S_CNT1 if opt.get('cnt') else None
    cnt2 = S_CNT2 if opt.get('cnt') else None
    stamp = opt.get('stamp'); pts = opt.get('pts', [])
    S_TS = 48
    def ts(nm):
        if not stamp: return
        if nm == 0: a(f"    s_memtime s[{S_TS}:{S_TS+1}]")
        elif nm in pts:
            i = pts.index(nm) + 1
            a(f"    s_memtime s[{S_TS+2*i}:{S_TS+2*i+1}]")
    def z2(reg): a(f"    v_mov_b64 {vr(reg,2)}, 0")
    def wq_read(i, hf):
        ks, t = KS[i // 2], i % 2
        base = f"v{V_WO}" if ks < 4 else f"v{V_WO2}"
        a.ds(f"ds_read_b128 {vr(WB[i % NWB] + 4*hf, 4)}, {base} offset:{(ks%4)*16384 + t*2048 + hf*1024}", ('W', i, hf))
    def aread(j): a.ds(f"ds_read_b128 {A(j)}, v{V_AR} offset:{L_M + KS[j]*1024}", ('A', j))
    G2 = R_A + 16
    def mshot():
        a(f"    buffer_load_dwordx4 {vr(G2,4)}, v{V_MP}, {ws}, s{S_MW} offen sc1")
        a(f"    buffer_load_dwordx4 {vr(G2+4,4)}, v{V_MP}, {ws}, s{S_MW2} offen sc1")
    def check_loop(nm, G, T, reissue, cnt, qmask=False):
        a(f"""L_{nm}_chk:
    v_max_u32 v{T}, v{G}, v{G+4}
    v_cmp_eq_u32 vcc, -1, v{T}""")
        if qmask: a(f"    s_and_b64 vcc, vcc, s[{S_Q0}:{S_Q0+1}]")
        a(f"""    s_cbranch_vccnz L_{nm}_retry
L_{nm}_ok:""")
        def tail():
            a(f"L_{nm}_retry:")
            if qmask:
                a("    s_lshl_b64 s[{0}:{1}], vcc, 1\n    s_or_b64 vcc, vcc, s[{0}:{1}]\n    s_lshl_b64 s[{0}:{1}], vcc, 2\n    s_or_b64 vcc, vcc, s[{0}:{1}]".format(S_TQ, S_TQ+1))
            a("    s_mov_b64 exec, vcc")
            reissue()
            if cnt: a(f"    s_add_u32 s{cnt}, s{cnt}, 1")
            a(f"""    s_add_u32 s{S_RETRY}, s{S_RETRY}, 1
    s_cmp_lt_u32 s{S_RETRY}, 1000000
    s_cbranch_scc0 L_abort_{name}
    s_waitcnt vmcnt(0)
    s_mov_b64 exec, -1
    s_branch L_{nm}_chk""")
        tails.append(tail)
    tails = []

    a(f"    s_mov_b32 s{S_STEP}, 0")
    init_scalars(a)
    a(f"""    s_cmp_ge_u32 s{S_WV}, 2
    s_cselect_b64 s[{S_LATE}:{S_LATE+1}], -1, 0""")
    a(f"""    s_mov_b32 s{S_MWN}, s{S_MW}
    s_cmp_eq_u32 s{S_WV}, 0
    s_cselect_b32 s{S_W0}, 1, 0
    s_mov_b32 s{S_W0+1}, 0
    s_sub_u32 s{S_VN}, s{S_VN}, {32*8192}
    s_lshl_b32 s{S_FLNN}, s{S_H}, 2
    s_add_u32 s{S_FLNN}, s{S_FLNN}, {F_KV + 3*128}
    s_mov_b32 s{S_FLTN}, 1
    s_mov_b32 s{S_FCV}, 0
    s_mov_b32 s{S_Q0}, 0x11111111
    s_mov_b32 s{S_Q0+1}, 0x11111111""")
    for i in range(12): z2(ACC + 2*i)
    L.reset()
    for i in range(NWB):
        wq_read(i, 0); wq_read(i, 1)
    a(f"    ds_read_b128 {vr(G2,4)}, v{V_MP} offset:{L_M}")
    a(f"    ds_read_b128 {vr(G2+4,4)}, v{V_MP} offset:{L_M+4096}")
    if stamp:
        for i in range(0, len(pts)+1): a(f"    s_mov_b32 s{S_TS+2*i}, 0")
    a(f"L_step_{name}:")
    a("    s_waitcnt lgkmcnt(0)")
    a("    s_barrier")
    if opt.get('steplog'):
        a(f"""    s_lshl_b32 s98, s{S_H}, 10
    s_lshl_b32 s93, s{S_STEP}, 3
    s_add_u32 s98, s98, s93
    s_add_u32 s98, s98, {WS_FLAG + 0x20000}
    v_mov_b32 v32, s96
    v_mov_b32 v33, s96
    s_memtime s[96:97]
    s_mov_b64 exec, s[{S_W0}:{S_W0+1}]
    buffer_store_dwordx2 v[32:33], off, {ws}, s98
    s_mov_b64 exec, -1""")
    if opt.get('winlog'):
        a(f"    s_and_b32 s{S_T0}, s{S_STEP}, 7\n    s_cmp_lg_u32 s{S_T0}, 0\n    s_cbranch_scc1 L_nowin_{name}")
        for k in range(8):
            a(f"    s_cmp_eq_u32 s{S_STEP}, {8*k}\n    s_cbranch_scc0 L_win{k}_{name}\n    s_memtime s[{76+2*k}:{77+2*k}]\nL_win{k}_{name}:")
        a(f"L_nowin_{name}:")
    if opt.get('rawlog'):
        npt = len(pts)
        a(f"""    s_lshl_b32 s98, s{S_H}, 2
    s_add_u32 s98, s98, s{S_WV}
    s_lshl_b32 s98, s98, 12
    s_lshl_b32 s93, s{S_STEP}, 5
    s_add_u32 s98, s98, s93
    s_add_u32 s98, s98, {WS_FLAG + 0x40000}""")
        for i in range(8):
            a(f"    v_mov_b32 v{32+i}, s{S_TS + 2*i}" if i <= npt else f"    v_mov_b32 v{32+i}, 0")
        a(f"""    s_mov_b64 exec, 1
    buffer_store_dwordx4 v[32:35], off, {ws}, s98
    buffer_store_dwordx4 v[36:39], off, {ws}, s98 offset:16
    s_mov_b64 exec, -1""")
    if stamp:
        for i in range(1, len(pts)+1):
            a(f"    s_sub_u32 s{S_T0}, s{S_TS+2*i}, s{S_TS}\n    s_add_u32 s{79+i}, s{79+i}, s{S_T0}")
    L.reset()
    for i in range(NWB):
        L.tags[('W', i, 0)] = 0; L.tags[('W', i, 1)] = 0
    ts(0)
    KMT = R_A + 28
    for j in range(4): aread(j)
    a.ds(f"ds_read_b32 v{KMT}, v{V_QW} offset:{L_K}", 'km0')
    a.ds(f"ds_read_b32 v{KMT+1}, v{V_QW} offset:{L_K+272}", 'km1')
    a(f"    s_mov_b32 s{S_MW}, s{S_MWN}\n    s_add_u32 s{S_MW2}, s{S_MWN}, 4096")
    if flags and not opt.get('nofl'):
        a(f"""    v_readfirstlane_b32 s{S_T0}, v0
    s_cmp_lt_u32 s{S_T0}, s{S_FLT}
    s_cbranch_scc1 L_kvw_{name}
L_kvok_{name}:
    s_mov_b32 s{S_FLN}, s{S_FLNN}
    s_mov_b32 s{S_FLT}, s{S_FLTN}""")
        def kvtail():
            a(f"""L_kvw_{name}:
    buffer_load_dword v0, off, {ws}, s{S_FLN} sc1
    s_waitcnt vmcnt(0)
    v_readfirstlane_b32 s{S_T0}, v0
    s_cmp_ge_u32 s{S_T0}, s{S_FLT}
    s_cbranch_scc1 L_kvok_{name}
    s_sleep 2
    s_add_u32 s{S_RETRY}, s{S_RETRY}, 1
    s_cmp_lt_u32 s{S_RETRY}, 1000000
    s_cbranch_scc1 L_kvw_{name}
    s_branch L_abort_{name}""")
        tails.append(kvtail)
    wqueue = [(i, hf) for i in range(NWB, 16) for hf in range(2)]
    def nextw():
        if wqueue:
            i, hf = wqueue.pop(0); wq_read(i, hf)
    KXF = 96
    def kxr(i): a.ds(f"ds_read_b128 {vr(KXF + 4*i, 4)}, v{V_L16} offset:{L_KX + i*1024}", ('KX', i))
    vq = {}
    def at(slot, f): vq.setdefault(slot, []).append(f)
    def pubch():
        if not flags or opt.get('nofch'): return
        a(f"""    v_mov_b32 v0, s{S_FCV}
    s_mov_b64 exec, s[{S_W0}:{S_W0+1}]
    buffer_store_dword v0, off, {ws}, s{S_FCH} sc1
    s_mov_b64 exec, -1""")
    def pf():
        a(f"    v_lshlrev_b32 v{V_TR}, 2, v{V_L16}")
        a(f"    buffer_load_dword v{V_TR}, v{V_TR}, {ws}, s{S_PF} offen")
    def flagload():
        if flags and not opt.get('nofl'): a(f"    buffer_load_dword v0, off, {ws}, s{S_FLN} sc1")
    spec = opt.get('spec2') or opt.get('spec1')
    vx = [(V_VBX, 0), (V_VBX+4, 512), (V_VBY, 1024), (V_VBY+4, 1536)]
    def vxl(q): a(f"    buffer_load_dwordx2 {vr(vx[q][0],2)}, v{V_VX}, {ws}, s{S_VN} offen offset:{vx[q][1]} sc1")
    def reset3():
        a(f"    s_mov_b64 exec, s[{S_MEX}:{S_MEX+1}]")
        a(f"    buffer_store_dword v{V_NEG1}, v{V_MS}, {ws}, s{S_MX} offen")
        a(f"    s_mov_b64 exec, -1")
    NV0 = opt.get('nv0', 4)
    start = []; c = 0
    for j in range(8):
        start.append(c); c += 6 if j < NV0 else 4
    nslots = c
    consumed = {}
    for j in range(8): consumed[2*j] = start[j]; consumed[2*j+1] = start[j] + 1
    at(2, lambda: (a("    s_waitcnt vmcnt(0)") if spec else None, vxl(0)))
    at(4, lambda: aread(4)); at(5, lambda: aread(5)); at(10, lambda: aread(6))
    at(6, lambda: vxl(1)); at(10, lambda: vxl(2)); at(14, lambda: vxl(3))
    at(16, lambda: (a(f"    v_lshrrev_b32 v0, 2, v{V_L16}"), a(f"    buffer_store_dword v{V_VBX+2}, v0, {ws}, s{S_VMP} offen sc1")))
    at(17, lambda: a(f"    buffer_store_dword v{V_VBY+2}, v0, {ws}, s{S_VMP} offen offset:256 sc1"))
    at(11, lambda: (L.need('km1'), a("    s_nop 0")) if False else None)
    at(20, lambda: (L.need('km1'), a(f"    buffer_store_dword v{KMT}, v{V_KM}, {ws}, s{S_KMP} offen sc1")))
    at(21, lambda: (a(f"    buffer_store_dword v{KMT+1}, v{V_KM}, {ws}, s{S_KMP} offen offset:64 sc1"), aread(7)))
    at(22, pubch); at(23, pf); at(26, flagload)
    freeat = {0: consumed[11], 1: consumed[11], 2: consumed[12], 3: consumed[12], 4: consumed[13], 5: consumed[13], 6: consumed[14], 7: consumed[14]}
    kxq = list(range(8))
    slot = 0
    def after():
        nonlocal slot
        did = False
        if wqueue:
            i, hf = wqueue[0]
            if slot >= consumed[i - NWB]:
                wqueue.pop(0); wq_read(i, hf); did = True
        if not did and not wqueue and kxq and slot >= freeat[kxq[0]] and (8 - len(kxq)) < opt.get('kxn', 8):
            kxr(kxq.pop(0))
        for f in vq.get(slot, []): f()
        slot += 1
    vs = []
    for j in range(8):
        vs.append(f"    v_smfmac_f32_16x16x64_bf16 {vr(VX,4)}, {A(j)}, {wv(0,KS[j])}, v{V_IDX}")
        vs.append(f"    v_smfmac_f32_16x16x64_bf16 {vr(VY,4)}, {A(j)}, {wv(1,KS[j])}, v{V_IDX}")
    for j in range(8):
        ks = KS[j]
        if j in (1, 2, 4): ts(f'j{j}')
        L.need(('A', j), ('W', 2*j, 1), ('W', 2*j+1, 1))
        a(f"    v_smfmac_f32_16x16x64_bf16 {vr(QX,4)}, {A(j)}, {vr(WB[(2*j) % NWB],8)}, v{V_IDX}"); after()
        a(f"    v_smfmac_f32_16x16x64_bf16 {vr(QY,4)}, {A(j)}, {vr(WB[(2*j+1) % NWB],8)}, v{V_IDX}"); after()
        a(f"    v_smfmac_f32_16x16x64_bf16 {vr(KX_,4)}, {A(j)}, {wk(0,ks)}, v{V_IDX}"); after()
        a(f"    v_smfmac_f32_16x16x64_bf16 {vr(KY,4)}, {A(j)}, {wk(1,ks)}, v{V_IDX}"); after()
        if j < NV0:
            a(vs[2*j]); after()
            a(vs[2*j+1]); after()
    assert not wqueue, wqueue
    ts('QK')
    QF = 64; KF = R_A
    vr_ = vs[2*NV0:]
    def nv():
        if vr_: a(vr_.pop(0))
    nv()
    if kxq: kxr(kxq.pop(0))
    nv()
    if kxq: kxr(kxq.pop(0))
    a(f"    v_add_f32 v{QX}, v{QX}, v{QX+1}")
    a(f"    v_add_f32 v{QX+2}, v{QX+2}, v{QX+3}")
    a(f"    v_add_f32 v{QY}, v{QY}, v{QY+1}")
    a(f"    v_add_f32 v{QY+2}, v{QY+2}, v{QY+3}")
    a(f"    v_cvt_pk_bf16_f32 v{QX}, v{QX}, v{QY}")
    a(f"    v_cvt_pk_bf16_f32 v{QX+2}, v{QX+2}, v{QY+2}")
    a(f"    v_add_f32 v{KX_}, v{KX_}, v{KX_+1}")
    a.ds(f"ds_write_b32 v{V_QW}, v{QX} offset:{L_Q}")
    a(f"    v_add_f32 v{KX_+2}, v{KX_+2}, v{KX_+3}")
    a.ds(f"ds_write_b32 v{V_QW}, v{QX+2} offset:{L_Q+272}")
    a(f"    v_add_f32 v{KY}, v{KY}, v{KY+1}")
    a(f"    v_add_f32 v{KY+2}, v{KY+2}, v{KY+3}")
    a(f"    v_cvt_pk_bf16_f32 v{KX_}, v{KX_}, v{KY}")
    a(f"    v_cvt_pk_bf16_f32 v{KX_+2}, v{KX_+2}, v{KY+2}")
    a.ds(f"ds_write_b32 v{V_QW}, v{KX_} offset:{L_K}")
    a.ds(f"ds_write_b32 v{V_QW}, v{KX_+2} offset:{L_K+272}", 'kw')
    ts('vpost')
    kxmode = opt.get('kxmode', 0)
    if kxmode == 0:
        while kxq: kxr(kxq.pop(0))
    nv()
    if kxq: kxr(kxq.pop(0))
    if kxq: kxr(kxq.pop(0))
    a(f"    v_mad_u32_u24 v{QX+1}, v{V_L16}, 3, v{V_P1R}")
    a(f"    s_mov_b32 exec_hi, 0")
    a(f"    buffer_store_dword v{V_NEG1}, v{QX+1}, {ws}, s{S_P1X} offen")
    a(f"    s_mov_b32 exec_hi, -1")
    nv()
    if kxq: kxr(kxq.pop(0))
    if kxq: kxr(kxq.pop(0))
    nv()
    while kxq: kxr(kxq.pop(0))
    reset3()
    L.need('kw')
    a("    s_barrier")
    ts('B2')
    for ks in range(4):
        a.ds(f"ds_read_b128 {vr(QF + 4*ks, 4)}, v{V_QR} offset:{L_Q + ks*64}", ('QF', ks))
        nv()
    for ks in range(4):
        a.ds(f"ds_read_b128 {vr(KF + 4*ks, 4)}, v{V_KR} offset:{L_K + ks*64}", ('KF', ks))
        nv()
    while vr_: nv()
    ts('V')
    ST0, ST1, ST2 = R_A + 16, R_A + 20, R_A + 24
    LBR, OX, OY, LL = 88, 92, 96, 100
    WACC = 104
    for ks in range(4):
        L.need(('QF', ks), ('KX', ks), ('KX', 4 + ks))
        c0 = "0" if ks == 0 else vr(ST0,4)
        c1 = "0" if ks == 0 else vr(ST1,4)
        a(f"    v_mfma_f32_16x16x32_bf16 {vr(ST0,4)}, {vr(KXF + 4*ks,4)}, {vr(QF+4*ks,4)}, {c0}")
        if ks == 0: a.ds(f"ds_read_b128 {vr(LBR,4)}, v{V_L16} offset:{L_LB}", 'LB')
        if ks == 1: z2(OX); z2(OX+2)
        if ks == 2: a(f"    v_add_f32 v{VX}, v{VX}, v{VX+1}\n    v_add_f32 v{VX+2}, v{VX+2}, v{VX+3}")
        if ks == 3: a(f"    v_cvt_pk_bf16_f32 v{V_VBX+2}, v{VX}, v{VX+2}")
        a(f"    v_mfma_f32_16x16x32_bf16 {vr(ST1,4)}, {vr(KXF + 16 + 4*ks,4)}, {vr(QF+4*ks,4)}, {c1}")
        if ks == 1: z2(OY); z2(OY+2)
        if ks == 2: a(f"    v_add_f32 v{VY}, v{VY}, v{VY+1}\n    v_add_f32 v{VY+2}, v{VY+2}, v{VY+3}")
        if ks == 3: a(f"    v_cvt_pk_bf16_f32 v{V_VBY+2}, v{VY}, v{VY+2}")
    ts('Sx')
    X = 80
    X = R_A + 28
    for ks in range(4):
        L.need(('KF', ks))
        c2 = "0" if ks == 0 else vr(ST2,4)
        a(f"    v_mfma_f32_16x16x32_bf16 {vr(ST2,4)}, {vr(KF + 4*ks,4)}, {vr(QF+4*ks,4)}, {c2}")
        if ks == 1:
            a(f"    v_cndmask_b32 v{X}, v{ST0}, v{ST1}, s[{S_HALF}:{S_HALF+1}]")
            a(f"    v_cndmask_b32 v{X+1}, v{ST0+1}, v{ST1+1}, s[{S_HALF}:{S_HALF+1}]")
        if ks == 2:
            a(f"    v_cndmask_b32 v{X+2}, v{ST0+2}, v{ST1+2}, s[{S_HALF}:{S_HALF+1}]")
            a(f"    v_cndmask_b32 v{X+3}, v{ST0+3}, v{ST1+3}, s[{S_HALF}:{S_HALF+1}]")
        if ks == 3:
            a("    s_nop 0")
    M_, T_ = 64, 65
    a(f"    v_max3_f32 v{M_+16}, v{X}, v{X+1}, v{X+2}")
    a(f"""    s_cmp_eq_u32 s{S_STEP}, {opt.get('nsteps',64)-1}
    s_cbranch_scc1 L_done_{name}""")
    a(f"    v_max_f32 v{M_+16}, v{M_+16}, v{X+3}")
    z2(WACC); z2(WACC+2); z2(WACC+4)
    ts('S')
    M_ = 80; T_ = 81
    a(f"    v_max3_f32 v{T_}, v{ST2}, v{ST2+1}, v{ST2+2}")
    a(f"    v_max3_f32 v{M_}, v{M_}, v{T_}, v{ST2+3}")
    z2(WACC+6); z2(WACC+8)
    a(f"    v_max_f32_dpp v{M_}, v{M_}, v{M_} quad_perm:[1,0,3,2] row_mask:0xf bank_mask:0xf")
    a(f"    v_mov_b32 v{T_}, v{M_}")
    z2(WACC+10); z2(WACC+12)
    a(f"    v_permlane16_swap_b32 v{M_}, v{T_}")
    a(f"    v_max_f32 v{M_}, v{M_}, v{T_}")
    a(f"    v_mov_b32 v{T_}, v{M_}")
    z2(WACC+14)
    a("    s_nop 0")
    a(f"    v_permlane32_swap_b32 v{M_}, v{T_}")
    a(f"    v_max_f32 v{M_}, v{M_}, v{T_}")
    a(f"    v_mul_f32 v{M_}, s{S_C}, v{M_}")
    E = 64
    srcs = [X, X+1, ST2, ST2+1, X+2, X+3, ST2+2, ST2+3]
    for i, s_ in enumerate(srcs):
        a(f"    v_fma_f32 v{E+i}, v{s_}, s{S_C}, -v{M_}")
    for i in range(8):
        a(f"    v_exp_f32 v{E+i}, v{E+i}")
    P = ST0
    for d in range(4): a(f"    v_cvt_pk_bf16_f32 v{P+d}, v{E+2*d}, v{E+2*d+1}")
    ts('smax')
    ts('prePV')
    L.need('LB')
    nyoung = ((0 if opt.get('nofch') else 1) + (0 if opt.get('nofl') else 1) if flags else 0) + 1 + 2 + 2 + 2
    a(f"    s_waitcnt vmcnt({nyoung})")
    ts('vxok')
    a("    s_nop 0")
    a(f"    v_mfma_f32_16x16x32_bf16 {vr(LL,4)}, {vr(P,4)}, {vr(LBR,4)}, 0")
    a(f"    v_smfmac_f32_16x16x64_bf16 {vr(OX,4)}, {vr(P,4)}, {vr(V_VBX,8)}, v{V_IDX}")
    a(f"    v_smfmac_f32_16x16x64_bf16 {vr(OY,4)}, {vr(P,4)}, {vr(V_VBY,8)}, v{V_IDX}")
    ts('PV')
    a("    s_nop 0")
    a(f"    v_add_f32 v{LL}, v{LL}, v{LL+1}")
    a(f"    v_add_f32 v{LL+2}, v{LL+2}, v{LL+3}")
    a(f"    v_rcp_f32 v{LL}, v{LL}")
    a(f"    v_rcp_f32 v{LL+2}, v{LL+2}")
    a("    s_nop 0")
    a(f"    v_add_f32 v{OX}, v{OX}, v{OX+1}")
    a(f"    v_add_f32 v{OX+2}, v{OX+2}, v{OX+3}")
    a(f"    v_add_f32 v{OY}, v{OY}, v{OY+1}")
    a(f"    v_add_f32 v{OY+2}, v{OY+2}, v{OY+3}")
    a(f"    v_mul_f32 v{OX}, v{OX}, v{LL}")
    a(f"    v_mul_f32 v{OY}, v{OY}, v{LL}")
    a(f"    v_mul_f32 v{OX+2}, v{OX+2}, v{LL+2}")
    a(f"    v_mul_f32 v{OY+2}, v{OY+2}, v{LL+2}")
    a(f"    v_cvt_pk_bf16_f32 v{OX}, v{OX}, v{OY}")
    a(f"    v_cvt_pk_bf16_f32 v{OX+2}, v{OX+2}, v{OY+2}")
    ts('opost')
    a.ds(f"ds_write_b32 v{V_QW}, v{OX} offset:{L_O}")
    a.ds(f"ds_write_b32 v{V_QW}, v{OX+2} offset:{L_O+272}", 'ow')
    L.need('ow')
    a("    s_barrier")
    ts('B3')
    OA = 64
    for kp in range(4):
        a.ds(f"ds_read_b128 {vr(OA+4*kp,4)}, v{V_QR} offset:{L_O + kp*64}", ('O', kp))
    SELR = R_A; RD = R_A + 4; G1 = R_A + 8
    a.ds(f"ds_read_b128 {vr(SELR,4)}, v{V_L16} offset:{L_SEL}", 'SEL')
    def pshot():
        a(f"    buffer_load_dwordx4 {vr(G1,4)}, v{V_P1R}, {ws}, s{S_P1W} offen sc1")
        a(f"    buffer_load_dwordx4 {vr(G1+4,4)}, v{V_P1R}, {ws}, s{S_P1W} offen offset:1024 sc1")
    def cvA(m): x = WACC + 4*m; a(f"    v_cvt_pk_bf16_f32 v{x}, v{x}, v{x+1}")
    def cvB(m): x = WACC + 4*m; a(f"    v_cvt_pk_bf16_f32 v{x+2}, v{x+2}, v{x+3}")
    def stA(m): a(f"    buffer_store_dword v{WACC+4*m}, v{V_P1S}, {ws}, s{S_P1W if m < 2 else S_P1W2} offen offset:{(m & 1)*2048}")
    def stB(m): a(f"    buffer_store_dword v{WACC+4*m+2}, v{V_P1S}, {ws}, s{S_P1W3 if m < 2 else S_P1W4} offen offset:{(m & 1)*2048}")
    for m_ in range(4):
        for kp in range(4):
            L.need(('O', kp))
            a(f"    v_smfmac_f32_16x16x64_bf16 {vr(WACC+4*m_,4)}, {vr(OA+4*kp,4)}, {wo(m_,kp)}, v{V_IDX}")
            if kp == 0: ts(f'w{m_}')
            if m_ == 0 and kp == 1: a(f"    s_mov_b32 m0, s{S_KM0}")
            if m_ >= 1 and kp == 1: cvA(m_ - 1)
            if m_ >= 1 and kp == 2: cvB(m_ - 1)
            if m_ >= 1 and kp == 3: stA(m_ - 1)
            if m_ >= 2 and kp == 0: stB(m_ - 2)
    stB(2)
    a("    s_nop 5")
    cvA(3); cvB(3); stA(3); stB(3)
    ts('Wo')
    if opt.get('ackdiag'):
        a("    s_waitcnt vmcnt(14)")
        ts('km')
        a("    s_waitcnt vmcnt(13)")
        ts('fch')
        a("    s_waitcnt vmcnt(12)")
        ts('pf')
        a("    s_waitcnt vmcnt(11)")
        ts('flag')
        a("    s_waitcnt vmcnt(8)")
        ts('old')
        a("    s_waitcnt vmcnt(0)")
        ts('ack')
    L.need('SEL')
    dw = opt.get('dw', (0, 40, 100, 180))
    a(f"""    s_cmp_eq_u32 s{S_WV}, 3
    s_cbranch_scc1 L_{name}_t3
    s_cmp_eq_u32 s{S_WV}, 2
    s_cbranch_scc1 L_{name}_t2
    s_cmp_eq_u32 s{S_WV}, 1
    s_cbranch_scc1 L_{name}_t1""")
    for w_ in range(4):
        if w_ > 0: a(f"L_{name}_t{w_}:")
        delay(a, dw[w_])
        if w_ < 3: a(f"    s_branch L_{name}_td")
    a(f"L_{name}_td:")
    pshot()
    if opt.get('spec1'):
        delay(a, opt['spec1'])
        pshot()
        a(f"""    s_waitcnt vmcnt(2)
    v_max_u32 v{R_A+24}, v{G1}, v{G1+4}
    v_cmp_eq_u32 vcc, -1, v{R_A+24}
    s_and_b64 vcc, vcc, s[{S_Q0}:{S_Q0+1}]
    s_cbranch_vccz L_{name}_p1_ok
    s_waitcnt vmcnt(0)""")
    else:
        a("    s_waitcnt vmcnt(0)")
    check_loop(name + "_p1", G1, R_A + 24, pshot, cnt1, qmask=True)
    ts('p1ok')
    a(f"    v_mfma_f32_16x16x32_bf16 {vr(RD,4)}, {vr(SELR,4)}, {vr(G1,4)}, 0")
    a(f"    v_mfma_f32_16x16x32_bf16 {vr(RD,4)}, {vr(SELR,4)}, {vr(G1+4,4)}, {vr(RD,4)}")
    a("    s_nop 7")
    a(f"    v_add_f32_dpp v{RD}, v{RD}, v{RD} row_ror:8 row_mask:0xf bank_mask:0xf")
    a(f"    v_add_f32_dpp v{RD+1}, v{RD+1}, v{RD+1} row_ror:8 row_mask:0xf bank_mask:0xf")
    a("    s_nop 0")
    a(f"    v_add_f32_dpp v{RD}, v{RD}, v{RD} row_ror:4 row_mask:0xf bank_mask:0xf")
    a(f"    v_add_f32_dpp v{RD+1}, v{RD+1}, v{RD+1} row_ror:4 row_mask:0xf bank_mask:0xf")
    a(f"    v_cvt_pk_bf16_f32 v{RD}, v{RD}, v{RD+1}")
    a(f"    s_mov_b64 exec, s[{S_MEX}:{S_MEX+1}]")
    a(f"    buffer_store_dword v{RD}, v{V_MS}, {ws}, s{S_MW} offen")
    a(f"    s_mov_b64 exec, -1")
    ts('Mst')
    a(f"    buffer_load_dwordx4 v{V_L16}, {ws}, s{S_KN} offen sc1 lds")
    a(f"    buffer_load_dwordx4 v{V_L16}, {ws}, s{S_KN} offen offset:1024 sc1 lds")
    a(f"    s_add_u32 s{S_KN}, s{S_KN}, {32*8192}")
    if opt.get('ackdiag2'):
        a("    s_waitcnt vmcnt(2)")
        ts('mack')
        a("    s_waitcnt vmcnt(0)")
        ts('dma')
    def fillers():
        L.reset()
        for i in range(NWB):
            wq_read(i, 0); wq_read(i, 1)
        a(f"""    s_mov_b32 s{S_T0}, s{S_P1W}
    s_mov_b32 s{S_P1W}, s{S_P1X}
    s_mov_b32 s{S_P1X}, s{S_T0}
    s_add_u32 s{S_P1W2}, s{S_P1W}, 4096
    s_add_u32 s{S_P1W3}, s{S_P1W}, {P1C}
    s_add_u32 s{S_P1W4}, s{S_P1W}, {P1C + 4096}
    s_add_u32 s{S_MX}, s{S_MX}, 8192
    s_and_b32 s{S_MX}, s{S_MX}, {hex(WS_M | 0x7fff)}
    s_add_u32 s{S_KMP}, s{S_KMP}, 65536
    s_add_u32 s{S_VMP}, s{S_VMP}, 65536
    s_add_u32 s{S_VN}, s{S_VN}, {32*8192}
    s_add_u32 s{S_T0}, s{S_PF}, {32*8192}
    s_cmp_lt_u32 s{S_STEP}, 61
    s_cselect_b32 s{S_PF}, s{S_T0}, s{S_PF}
    s_mov_b32 s{S_FCV}, s{S_STEP}
    s_add_u32 s{S_STEP}, s{S_STEP}, 1
    s_add_u32 s{S_MWN}, s{S_MW}, 8192
    s_and_b32 s{S_MWN}, s{S_MWN}, {hex(WS_M | 0x7fff)}""")
        if flags:
            a(f"""    s_add_u32 s{S_T1}, s{S_STEP}, 3
    s_min_u32 s{S_T1}, s{S_T1}, 63
    s_lshr_b32 s{S_FLTN}, s{S_T1}, 2
    s_add_u32 s{S_FLTN}, s{S_FLTN}, 1
    s_and_b32 s{S_T1}, s{S_T1}, 3
    s_lshl_b32 s{S_T1}, s{S_T1}, 5
    s_add_u32 s{S_T1}, s{S_T1}, s{S_H}
    s_lshl_b32 s{S_T1}, s{S_T1}, 2
    s_add_u32 s{S_FLNN}, s{S_T1}, {F_KV}""")
        for i in range(12): z2(ACC + 2*i)
    if EARLY or not opt.get('fillafter'): fillers()
    d2e, d2l = opt.get('d2', (0, 0))
    if EARLY: a(f"    s_cmp_ge_u32 s{S_WV}, 2\n    s_cbranch_scc1 L_{name}_late")
    delay(a, d2e)
    mshot()
    if opt.get('fillafter') and not opt.get('spec2'): fillers()
    if opt.get('spec2'):
        if opt.get('fillafter'): fillers()
        else: delay(a, opt['spec2'])
        mshot()
        a(f"""    s_waitcnt vmcnt(2)
    v_max_u32 v{R_A+24}, v{G2}, v{G2+4}
    v_cmp_eq_u32 vcc, -1, v{R_A+24}
    s_cbranch_vccz L_{name}_m2e_ok
    s_waitcnt vmcnt(0)""")
    else:
        a("    s_waitcnt vmcnt(0)")
    check_loop(name + "_m2e", G2, R_A + 24, mshot, cnt2)
    ts('p2ok')
    a(f"    ds_write_b128 v{V_MP}, {vr(G2,4)} offset:{L_M}")
    a(f"    ds_write_b128 v{V_MP}, {vr(G2+4,4)} offset:{L_M+4096}")
    a(f"    s_branch L_step_{name}")
    if EARLY:
        a(f"L_{name}_late:")
        delay(a, d2l)
        mshot()
        a(f"    s_branch L_step_{name}")
    for t in tails: t()
    a(f"L_abort_{name}:\n    s_mov_b64 exec, -1\n    s_endpgm")
    a(f"L_done_{name}:")
    a(f"""    ds_read_b32 v60, v{V_QW} offset:{L_K}
    ds_read_b32 v61, v{V_QW} offset:{L_K+272}
    v_lshrrev_b32 v62, 2, v{V_L16}
    s_add_u32 s{S_KMP}, s{S_KMP}, 65536
    s_add_u32 s{S_VMP}, s{S_VMP}, 65536
    buffer_store_dword v{V_VBX+2}, v62, {ws}, s{S_VMP} offen sc1
    buffer_store_dword v{V_VBY+2}, v62, {ws}, s{S_VMP} offen offset:256 sc1
    s_waitcnt lgkmcnt(0)
    buffer_store_dword v60, v{V_KM}, {ws}, s{S_KMP} offen sc1
    buffer_store_dword v61, v{V_KM}, {ws}, s{S_KMP} offen offset:64 sc1""")
    if flags:
        a(f"""    s_waitcnt vmcnt(0)
    s_barrier
    s_cmp_lg_u32 s{S_WV}, 0
    s_cbranch_scc1 L_nopub2_{name}
    v_mov_b32 v62, 64
    s_mov_b64 exec, 1
    buffer_store_dword v62, off, {ws}, s{S_FCH} sc1
    s_mov_b64 exec, -1
L_nopub2_{name}:""")
```

```python
import sys
from asmlib import *
import chain as C
import bulk as B
from chain import *
from chain2 import chain_loop2
from bulk import B_WS, B_WV, B_T0, B_T1, B_T2, B_T3, B_SET, B_INST, B_RET, B_FLG, proj_role, scan_role, y_role, attn_role, oproj_role, wait_flag

NAME = "concat_heads__memory_aug_recurrent_mem_tr__ssm_conv_s5__prompt_kernel"
HEADER = open('concat_heads__memory_aug_recurrent_mem_tr__ssm_conv_s5__prompt.s.ref').read().split("; Override launch geometry")[0]

def gen(opt):
    name = NAME
    DIAG = opt.get('diag')
    def stamp(a, idx, treg0, vt):
        if not DIAG: return
        a(f"""    s_memrealtime s[{treg0}:{treg0+1}]
    s_waitcnt lgkmcnt(0)
    v_mov_b32 v{vt or 250}, s{treg0}
    s_mov_b64 exec, 1
    buffer_store_dword v{vt or 250}, off, s[8:11], s99 offset:{idx*4}
    s_mov_b64 exec, -1""")
    n = "m"
    a = Asm()
    ws = f"s[{S_WS}:{S_WS+3}]"
    a(f""".globl {name}
.p2align 8
.type {name},@function
{name}:
    s_cmp_ge_u32 s2, 256
    s_cbranch_scc1 L_exit
    s_load_dwordx2 s[4:5], s[0:1], 136      ; debug
    s_load_dwordx2 s[{S_WS}:{S_WS+1}], s[0:1], 144      ; ws
    s_getreg_b32 s3, hwreg(HW_REG_XCC_ID, 0, 4)
    s_mov_b32 s{S_WS+2}, {WS_SIZE}
    s_mov_b32 s{S_WS+3}, 0x20000
    s_waitcnt lgkmcnt(0)
    s_lshl_b32 s6, s3, 2
    v_mov_b32 v1, s6
    v_mov_b32 v2, 1
    v_cmp_eq_u32 vcc, 0, v0
    s_and_saveexec_b64 s[6:7], vcc
    global_atomic_add v3, v1, v2, s[4:5] sc0
    s_waitcnt vmcnt(0)
    v_mov_b32 v4, {L_MISC}
    ds_write_b32 v4, v3
    s_waitcnt lgkmcnt(0)
    s_mov_b64 exec, s[6:7]
    s_cmp_lg_u32 s2, 0
    s_cbranch_scc1 L_noz
    v_mov_b32 v8, 0
    v_mov_b32 v9, 0
    v_mov_b32 v10, 0
    v_mov_b32 v11, 0
    v_lshlrev_b32 v5, 4, v0
    s_mov_b32 s6, {WS_FLAG}
    buffer_store_dwordx4 v[8:11], v5, {ws}, s6 offen sc1
    s_add_u32 s6, s6, 4096
    buffer_store_dwordx4 v[8:11], v5, {ws}, s6 offen sc1
    s_add_u32 s6, s6, 4096
    buffer_store_dwordx4 v[8:11], v5, {ws}, s6 offen sc1
    s_add_u32 s6, s6, 4096
    buffer_store_dwordx4 v[8:11], v5, {ws}, s6 offen sc1
    s_waitcnt vmcnt(0)
    s_barrier
    v_mov_b32 v5, 36
    v_mov_b32 v6, 1
    v_cmp_eq_u32 vcc, 0, v0
    s_and_saveexec_b64 s[12:13], vcc
    global_atomic_add v5, v6, s[4:5]
    s_mov_b64 exec, s[12:13]
L_noz:
    s_barrier
    v_mov_b32 v4, {L_MISC}
    ds_read_b32 v3, v4
    s_waitcnt lgkmcnt(0)
    v_readfirstlane_b32 s{S_H}, v3
    v_readfirstlane_b32 s{S_WV}, v0
    s_lshr_b32 s{S_WV}, s{S_WV}, 6
    s_cmp_ge_u32 s{S_H}, 32
    s_cbranch_scc1 L_exit
""")
    if DIAG:
        a(f"""    s_lshl_b32 s99, s3, 5
    s_add_u32 s99, s99, s{S_H}
    s_lshl_b32 s99, s99, 2
    s_add_u32 s99, s99, s{S_WV}
    s_lshl_b32 s99, s99, 5
    s_add_u32 s99, s99, {WS_FLAG + 0x8000}""")
    stamp(a, 0, 96, 0)
    a("""    s_cmp_lg_u32 s3, 0
    s_cbranch_scc1 L_bulk
""")
    if opt.get('nochain'): a("    s_endpgm")
    chain_setup(a, n)
    def after_first():
        chain_init_comm(a, n)
        chain_mem0_issue(a, n)
    def at_iter8():
        chain_mem0_finish(a, n)
        a(f"""    v_mov_b32 v40, 32
    v_mov_b32 v41, 1
    v_cmp_eq_u32 vcc, 0, v0
    s_and_saveexec_b64 s[6:7], vcc
    global_atomic_add v40, v41, s[4:5]
    s_mov_b64 exec, s[6:7]""")
    def at_iter27():
        a(f"""    v_mov_b32 v40, 32
    global_load_dwordx2 v[42:43], v40, s[4:5] sc1
    s_lshl_b32 s{S_FLN}, s{S_H}, 2
    s_add_u32 s{S_T1}, s{S_FLN}, {F_KV}
    buffer_load_dword v44, off, {ws}, s{S_T1} sc1
    s_add_u32 s{S_T1}, s{S_FLN}, {F_KV + 128}
    buffer_load_dword v45, off, {ws}, s{S_T1} sc1
    s_add_u32 s{S_FLN}, s{S_FLN}, {F_KV + 2*128}
    buffer_load_dword v51, off, {ws}, s{S_FLN} sc1""")
    chain_load_weights(a, n, after_first, at_iter8, at_iter27)
    a(f"""    v_mov_b32 v40, 40
    v_mov_b32 v41, 1
    v_cmp_eq_u32 vcc, 0, v0
    s_and_saveexec_b64 s[6:7], vcc
    global_atomic_add v40, v41, s[4:5]
    s_mov_b64 exec, s[6:7]""")
    stamp(a, 1, 96, 40)
    a(f"""    v_readfirstlane_b32 s{S_T0}, v42
    v_readfirstlane_b32 s{S_T1}, v43
    v_readfirstlane_b32 s{S_T2}, v44
    s_cmp_ge_u32 s{S_T0}, 32
    s_cselect_b32 s{S_T0}, s{S_T1}, 0
    s_min_u32 s{S_T0}, s{S_T0}, s{S_T2}
    v_readfirstlane_b32 s{S_T2}, v45
    s_min_u32 s{S_T0}, s{S_T0}, s{S_T2}
    v_mov_b32 v0, v51
    s_mov_b32 s{S_FLT}, 1
    s_cmp_ge_u32 s{S_T0}, 1
    s_cbranch_scc1 L_fast0
    v_mov_b32 v40, 32
L_initw:
    global_load_dwordx2 v[42:43], v40, s[4:5] sc1
    s_waitcnt vmcnt(0)
    v_readfirstlane_b32 s{S_T0}, v42
    v_readfirstlane_b32 s{S_T1}, v43
    s_cmp_ge_u32 s{S_T0}, 32
    s_cselect_b32 s{S_T0}, 1, 0
    s_and_b32 s{S_T0}, s{S_T0}, s{S_T1}
    s_cmp_lg_u32 s{S_T0}, 0
    s_cbranch_scc1 L_initd
    s_add_u32 s{S_RETRY}, s{S_RETRY}, 1
    s_cmp_lt_u32 s{S_RETRY}, 1000000
    s_cbranch_scc1 L_initw
    s_endpgm
L_initd:
""")
    for sg in range(2):
        a(f"""    s_lshl_b32 s{S_T1}, s{S_H}, 2
    s_add_u32 s{S_T1}, s{S_T1}, {F_KV + sg*128}
L_kv0_{sg}:
    buffer_load_dword v42, off, {ws}, s{S_T1} sc1
    s_waitcnt vmcnt(0)
    v_readfirstlane_b32 s{S_T0}, v42
    s_cmp_ge_u32 s{S_T0}, 1
    s_cbranch_scc1 L_kv0d_{sg}
    s_sleep 2
    s_add_u32 s{S_RETRY}, s{S_RETRY}, 1
    s_cmp_lt_u32 s{S_RETRY}, 1000000
    s_cbranch_scc1 L_kv0_{sg}
    s_endpgm
L_kv0d_{sg}:""")
    a(f"""    buffer_load_dword v0, off, {ws}, s{S_FLN} sc1
L_fast0:
    s_lshl_b32 s{S_T1}, s{S_H}, 13
    s_lshl_b32 s{S_T0}, s{S_WV}, 11
    s_add_u32 s{S_T1}, s{S_T1}, s{S_T0}
    s_add_u32 s{S_T1}, s{S_T1}, {WS_KF}
    s_mov_b32 m0, s{S_KM0}
    s_nop 0
    buffer_load_dwordx4 v{V_L16}, {ws}, s{S_T1} offen sc1 lds
    buffer_load_dwordx4 v{V_L16}, {ws}, s{S_T1} offen offset:1024 sc1 lds
    s_waitcnt vmcnt(0)
""")
    copt = dict(opt.get('chain', {})); copt['flags'] = 0 if opt.get('noflags') else 1
    if DIAG and opt.get('steplog'): copt['steplog'] = 1
    stamp(a, 2, 96, 40)
    if DIAG:
        copt['cnt'] = 1
        if opt.get('winlog'): copt['winlog'] = 1; copt['cnt'] = 0
        a("    s_mov_b32 s91, 0\n    s_mov_b32 s92, 0")
        if opt.get('pts'):
            copt['stamp'] = 1; copt['pts'] = opt['pts']
            for i in range(1, 12): a(f"    s_mov_b32 s{79+i}, 0")
    chain_loop2(a, n, copt)
    stamp(a, 3, 96, 40)
    if DIAG:
        a(f"""    v_mov_b32 v40, s91
    v_mov_b32 v41, s92
    s_mov_b64 exec, 1
    buffer_store_dwordx2 v[40:41], off, s[8:11], s99 offset:16
    s_mov_b64 exec, -1""")
        if opt.get('winlog'):
            a("    s_memtime s[92:93]\n    s_waitcnt lgkmcnt(0)")
            for k in range(8): a(f"    v_mov_b32 v{40+k}, s{76+2*k}")
            a("    v_mov_b32 v48, s92")
            a(f"""    s_lshl_b32 s98, s{S_H}, 2
    s_add_u32 s98, s98, s{S_WV}
    s_lshl_b32 s98, s98, 6
    s_add_u32 s98, s98, {WS_FLAG + 0x30000}
    s_mov_b64 exec, 1
    buffer_store_dwordx4 v[40:43], off, s[8:11], s98
    buffer_store_dwordx4 v[44:47], off, s[8:11], s98 offset:16
    buffer_store_dwordx4 v[48:51], off, s[8:11], s98 offset:32
    s_mov_b64 exec, -1""")
        if opt.get('pts'):
            a(f"""    s_lshl_b32 s98, s{S_H}, 2
    s_add_u32 s98, s98, s{S_WV}
    s_lshl_b32 s98, s98, 6
    s_add_u32 s98, s98, {WS_FLAG + 0x30000}""")
            for i in range(12): a(f"    v_mov_b32 v{40+i}, s{80+i}")
            a(f"""    s_mov_b64 exec, 1
    buffer_store_dwordx4 v[40:43], off, s[8:11], s98
    buffer_store_dwordx4 v[44:47], off, s[8:11], s98 offset:16
    buffer_store_dwordx4 v[48:51], off, s[8:11], s98 offset:32
    s_mov_b64 exec, -1""")
    a("    s_waitcnt vmcnt(0)\n    s_endpgm")
    a("L_bulk:")
    if opt.get('nobulk'): a("    s_endpgm")
    a(f"""    s_sub_u32 s{B_T0}, s3, 1
    s_lshl_b32 s{B_T0}, s{B_T0}, 5
    s_add_u32 s60, s{B_T0}, s{S_H}              ; b
    s_mov_b32 s{B_WV}, s{S_WV}
    s_mov_b32 s{B_RET}, 0
    s_cmp_ge_u32 s60, 224
    s_cbranch_scc1 L_exit
""")
    if not opt.get('nowarm'):
        a(f"""    s_lshl_b32 s64, s60, 2
    s_add_u32 s64, s64, s{B_WV}
    v_and_b32 v44, 63, v0
    v_lshlrev_b32 v44, 6, v44                   ; lane*64""")
        for i, (mi, poff) in enumerate(((0, 24), (1, 32), (2, 40), (3, 16))):
            a(f"""    s_load_dwordx2 s[12:13], s[0:1], {poff}
    s_mov_b32 s14, 0x400000
    s_mov_b32 s15, 0x20000
    s_lshl_b32 s65, s64, 12
    s_waitcnt lgkmcnt(0)
    buffer_load_dword v45, v44, s[12:15], s65 offen
    s_add_u32 s65, s65, {896*4096}
    buffer_load_dword v45, v44, s[12:15], s65 offen""")
    a(f"""    ; wait flag init (debug[9])
    v_mov_b32 v40, 36
L_bfw:
    global_load_dword v42, v40, s[4:5] sc1
    s_waitcnt vmcnt(0)
    v_readfirstlane_b32 s{B_T0}, v42
    s_cmp_ge_u32 s{B_T0}, 1
    s_cbranch_scc1 L_bfd
    s_add_u32 s{B_RET}, s{B_RET}, 1
    s_cmp_lt_u32 s{B_RET}, 1000000
    s_cbranch_scc1 L_bfw
    s_endpgm
""")
    CW = 32 if opt.get('delay') else 0
    DQ = opt.get('dq', 0)
    a(f"""L_bfd:
    s_and_b32 s{B_SET}, s60, 3
    s_cmp_lt_u32 s60, 128
    s_cbranch_scc1 L_p_kv
    v_mov_b32 v40, 40
L_cww:
    global_load_dword v42, v40, s[4:5] sc1
    s_waitcnt vmcnt(0)
    v_readfirstlane_b32 s{B_T0}, v42
    s_cmp_ge_u32 s{B_T0}, {CW}
    s_cbranch_scc1 L_cwd
    s_sleep 8
    s_add_u32 s{B_RET}, s{B_RET}, 1
    s_cmp_lt_u32 s{B_RET}, 1000000
    s_cbranch_scc1 L_cww
    s_endpgm
L_cwd:
    s_cmp_ge_u32 s60, 208
    s_cbranch_scc1 L_spare
    v_mov_b32 v40, 44
L_dqw:
    global_load_dword v42, v40, s[4:5] sc1
    s_waitcnt vmcnt(0)
    v_readfirstlane_b32 s{B_T0}, v42
    s_cmp_ge_u32 s{B_T0}, {DQ}
    s_cbranch_scc1 L_dqd
    s_sleep 16
    s_add_u32 s{B_RET}, s{B_RET}, 1
    s_cmp_lt_u32 s{B_RET}, 1000000
    s_cbranch_scc1 L_dqw
    s_endpgm
L_dqd:
    s_cmp_ge_u32 s60, 208
    s_cbranch_scc1 L_spare
    s_cmp_lt_u32 s60, 192
    s_cbranch_scc1 L_p_q
    s_sub_u32 s{B_INST}, s60, 192
    s_lshr_b32 s{B_INST}, s{B_INST}, 2
""")
    if opt.get('nossm'): a("    s_endpgm")
    proj_role(a, "pu", 'U')
    a(f"    s_branch L_phase2\nL_p_q:\n    s_sub_u32 s{B_INST}, s60, 128\n    s_lshr_b32 s{B_INST}, s{B_INST}, 2")
    if opt.get('noq'): a("    s_endpgm")
    proj_role(a, "pq", 'Q')
    a(f"    s_branch L_phase2\nL_p_kv:\n    s_lshr_b32 s{B_INST}, s60, 2")
    proj_role(a, "pk", 'KV')
    a(f"""    v_mov_b32 v40, 44
    v_mov_b32 v41, 1
    v_cmp_eq_u32 vcc, 0, v0
    s_and_saveexec_b64 s[6:7], vcc
    global_atomic_add v40, v41, s[4:5]
    s_mov_b64 exec, s[6:7]""")
    a("L_phase2:")
    stamp(a, 1, 96, 0)
    if opt.get('nophase2'): a("    s_endpgm")
    a(f"""    s_barrier
    s_cmp_ge_u32 s60, 176
    s_cbranch_scc1 L_scan
    s_cmp_lt_u32 s60, 112
    s_cbranch_scc1 L_t4a
    s_sub_u32 s{B_T0}, s60, 112                 ; 0..63
    s_lshl_b32 s{B_T0}, s{B_T0}, 2
    s_add_u32 s{B_T0}, s{B_T0}, s{B_WV}
    s_and_b32 s{B_INST}, s{B_T0}, 63
    s_lshr_b32 s{B_SET}, s{B_T0}, 6
""")
    if opt.get('not3'): a("    s_endpgm")
    attn_role(a, "t3", 4)
    stamp(a, 3, 96, 0)
    a("    s_waitcnt vmcnt(0)")
    a(f"""    s_endpgm
L_t4a:
    s_lshr_b32 s{B_SET}, s60, 4                 ; 0..6
    s_and_b32 s{B_INST}, s60, 15
    s_branch L_t4
L_spare:""")
    if opt.get('nophase2'): a("    s_endpgm")
    a(f"""    s_mov_b32 s{B_SET}, 7
    s_sub_u32 s{B_INST}, s60, 208
L_t4:
""")
    if opt.get('not3'): a("    s_endpgm")
    oproj_role(a, "t4", 8)
    stamp(a, 3, 96, 0)
    a("    s_waitcnt vmcnt(0)")
    a(f"""    s_endpgm
L_scan:
    s_sub_u32 s63, s60, 176                     ; task 0..31
    s_mov_b32 s{B_INST}, s63
""")
    if opt.get('nossm'): a("    s_endpgm")
    scan_role(a, "sc")
    stamp(a, 2, 96, 0)
    a(f"""    s_barrier
    s_lshr_b32 s{B_SET}, s63, 2
    s_and_b32 s{B_INST}, s63, 3
""")
    y_role(a, "yy")
    stamp(a, 3, 96, 0)
    a("    s_waitcnt vmcnt(0)")
    a("L_exit:\n    s_endpgm")
    text = HEADER + "; @launch grid=(256,1,1) block=(256,1,1) lds=163840\n"
    text += '.amdgcn_target "amdgcn-amd-amdhsa--gfx950"\n.text\n' + a.text()
    text += '.section .rodata,"a"\n.p2align 6\n' + kdesc(name)
    return text

if __name__ == '__main__':
    opt = dict(chain=dict(v2=1, earlyhalf=0, dw=(32,80,128,176), d2=(140,0), spec1=100, spec2=120, fillafter=1, nv0=0))
    for x in sys.argv[2:]:
        if '=' in x:
            k_, v_ = x.split('=', 1)
            if k_ == 'pts': opt['pts'] = v_.split(',')
            elif k_.startswith('c.'): opt['chain'][k_[2:]] = eval(v_)
            else: opt[k_] = eval(v_)
        else: opt[x] = 1
    t = gen(opt)
    out = sys.argv[1] if len(sys.argv) > 1 else 'concat_heads__memory_aug_recurrent_mem_tr__ssm_conv_s5__prompt.s'
    open(out, 'w').write(t)
    print("written", out, len(t), "bytes")
```

```python
from asmlib import *

WS_P1   = 0x0100000
P1C = 8320
P1SLOT = 0x42000
WS_M    = 0x0080000
WS_FLAG = 0x0090000
WS_KF   = 0x1000000
WS_VF   = 0x2000000
WS_QF   = 0x3000000
WS_OF   = 0x4000000
WS_KM   = 0x5000000
WS_VM   = 0x5400000
WS_SIZE = 0x10000000
F_KV   = WS_FLAG + 0x000
F_CH   = WS_FLAG + 0x1000

L_M   = 0
L_KX  = 8192
L_Q   = 16384
L_K   = 18560
L_O   = 20736
L_ZERO= 22912
L_SEL = 23936
L_LB  = 24960
L_MISC= 25984
L_W   = 32768
L_WO = L_W

S_WS = 8
S_W  = 12
S_W2 = 48
S_STEP, S_H, S_WV = 16, 17, 18
S_P1W, S_P1W2, S_P1X = 20, 21, 22
S_P1W3, S_P1W4 = 42, 43
S_MWN = 19
S_MW, S_MW2, S_MX = 23, 24, 25
S_KN, S_VN = 26, 27
S_T0, S_T1, S_T2 = 28, 29, 44
S_HALF = 30
S_MEX = 32
S_C   = 36
S_RETRY = 37
S_KMP, S_VMP = 38, 39
S_KM0 = 45
S_PFW = 35
S_FLN = 40
S_FLT = 41
S_FCH = 7
S_PF = 34
S_TS = 46

V_IDX, V_L16, V_QW, V_QR, V_KR, V_AR, V_WO, V_WO2, V_P1S, V_P1R, V_MS, V_MP, V_VX, V_KM, V_NEG1 = range(1, 16)
V_TR = 0
V_VBX = 16
V_VBY = 24
R_AB  = 32
NAB   = 5
R_ACC = 52
R_QF  = 64
R_KF  = 80
R_KX  = 96
V_WV  = 128

def wk(t, ks): return ar(t*64 + 8*ks, 8)
def wv(t, ks): return ar(128 + t*64 + 8*ks, 8)
def wo(m, kp): return vr(128 + (m*4 + kp)*8, 8)

def chain_setup(a, name):
    a(f"""
    v_and_b32 v32, 63, v0               ; lane
    v_and_b32 v33, 15, v32              ; n = lane&15
    v_lshrrev_b32 v40, 4, v32           ; g
    v_lshlrev_b32 v{V_L16}, 4, v32      ; lane*16
    v_and_b32 v41, 1, v32
    v_mul_u32_u24 v41, 0xAAAA, v41
    v_add_u32 v{V_IDX}, 0x4444, v41
    ; QW = 2g*272 + w*64 + n*4
    v_mul_u32_u24 v41, 544, v40
    v_lshlrev_b32 v42, 2, v33
    s_lshl_b32 s{S_T0}, s{S_WV}, 6
    v_add3_u32 v{V_QW}, v41, v42, s{S_T0}
    ; QR = (n>>1)*272 + g*16
    v_lshrrev_b32 v41, 1, v33
    v_mul_u32_u24 v43, 272, v41
    v_lshlrev_b32 v42, 4, v40
    v_add_u32 v{V_QR}, v43, v42
    ; AR = (g>>1)*512 + (n>>1)*64 + (g&1)*32 + (n&1)*16
    v_lshlrev_b32 v43, 6, v41
    v_lshrrev_b32 v44, 1, v40
    v_lshlrev_b32 v44, 9, v44
    v_add_u32 v43, v43, v44
    v_and_b32 v44, 1, v40
    v_lshlrev_b32 v44, 5, v44
    v_add_u32 v43, v43, v44
    v_and_b32 v44, 1, v33
    v_lshlrev_b32 v44, 4, v44
    v_add_u32 v{V_AR}, v43, v44
    ; KR = (n&7)*272 + g*16
    v_and_b32 v41, 7, v33
    v_mul_u32_u24 v41, 272, v41
    v_add_u32 v{V_KR}, v41, v42
    s_lshl_b32 s{S_T0}, s{S_WV}, 12
    s_add_u32 s{S_T0}, s{S_T0}, {L_W}
    v_add_u32 v{V_WO}, s{S_T0}, v{V_L16}
    v_add_u32 v{V_WO2}, 0x10000, v{V_WO}
    v_mul_u32_u24 v41, {2*P1C}, v40
    v_lshlrev_b32 v42, 2, v33
    s_mul_i32 s{S_T0}, s{S_WV}, {8*P1C}
    s_lshl_b32 s{S_T1}, s{S_H}, 6
    s_add_u32 s{S_T0}, s{S_T0}, s{S_T1}
    v_add3_u32 v{V_P1S}, v41, v42, s{S_T0}
    s_mul_i32 s{S_T0}, s{S_H}, {P1C}
    s_lshl_b32 s{S_T1}, s{S_WV}, 11
    s_add_u32 s{S_T0}, s{S_T0}, s{S_T1}
    v_add_u32 v{V_P1R}, s{S_T0}, v{V_L16}
    s_lshr_b32 s{S_T0}, s{S_H}, 3
    s_lshl_b32 s{S_T0}, s{S_T0}, 2
    s_add_u32 s{S_T0}, s{S_T0}, s{S_WV}
    s_lshl_b32 s{S_T0}, s{S_T0}, 9
    s_and_b32 s{S_T1}, s{S_H}, 7
    s_lshl_b32 s{S_T1}, s{S_T1}, 6
    s_add_u32 s{S_T0}, s{S_T0}, s{S_T1}
    v_and_b32 v41, 3, v32
    v_lshlrev_b32 v41, 4, v41
    v_lshlrev_b32 v43, 2, v40
    v_add3_u32 v{V_MS}, v41, v43, s{S_T0}
    v_lshrrev_b32 v41, 5, v32
    v_lshlrev_b32 v41, 11, v41
    v_and_b32 v42, 31, v32
    v_lshlrev_b32 v42, 4, v42
    s_lshl_b32 s{S_T0}, s{S_WV}, 9
    v_add3_u32 v{V_MP}, v41, v42, s{S_T0}
    v_lshrrev_b32 v41, 1, v40
    v_lshlrev_b32 v41, 8, v41
    v_lshlrev_b32 v42, 4, v33
    v_and_b32 v43, 1, v40
    v_lshlrev_b32 v43, 3, v43
    v_add3_u32 v{V_VX}, v41, v42, v43
    v_lshlrev_b32 v41, 7, v40
    v_lshlrev_b32 v42, 2, v33
    v_add_u32 v{V_KM}, v41, v42
    v_mov_b32 v{V_NEG1}, -1
    v_lshrrev_b32 v43, 2, v33           ; delta
    v_and_b32 v42, 3, v33               ; r
    v_mov_b32 v44, 0x3f80
    v_mov_b32 v45, 0x3f800000
    v_cmp_eq_u32 vcc, 1, v42
    s_nop 1
    v_cndmask_b32 v44, v44, v45, vcc
    v_cmp_gt_u32 vcc, 2, v42
    s_nop 1
    v_cndmask_b32 v44, 0, v44, vcc      ; r>=2 -> 0
""")
    for d in range(4):
        a(f"""    v_cmp_eq_u32 vcc, {d}, v43
    s_nop 1
    v_cndmask_b32 v{48+d}, 0, v44, vcc""")
    a(f"""    ds_write_b128 v{V_L16}, v[48:51] offset:{L_SEL}
    v_mov_b32 v52, 0x3f803f80
    v_mov_b32 v54, 0x3f803f80
    v_mov_b32 v41, 0x3f003f00
    v_cmp_gt_u32 vcc, 2, v40
    s_nop 1
    v_cndmask_b32 v53, 0, v41, vcc
    v_cndmask_b32 v55, 0, v41, vcc
    ds_write_b128 v{V_L16}, v[52:55] offset:{L_LB}
""")
    for i in range(16):
        a(f"    v_mov_b32 v{V_VBX+i}, 0")
    a(f"""    ds_write_b128 v{V_L16}, v[{V_VBX}:{V_VBX+3}] offset:{L_ZERO}
    s_mov_b32 s{S_HALF}, 0xaaaaaaaa
    s_mov_b32 s{S_HALF+1}, 0xaaaaaaaa
    s_mov_b32 s{S_MEX}, 0x000f000f
    s_mov_b32 s{S_MEX+1}, 0x000f000f
    s_mov_b32 s{S_C}, {hex(f32bits((128 ** -0.5) * 1.4426950408889634))}
    s_mov_b32 s{S_RETRY}, 0
    s_lshl_b32 s{S_T0}, s{S_WV}, 11
    s_add_u32 s{S_KM0}, s{S_T0}, {L_KX}
    s_and_b32 s{S_T0}, s{S_WV}, 1
    s_lshl_b32 s{S_T0}, s{S_T0}, 12
    s_lshr_b32 s{S_T1}, s{S_WV}, 1
    s_mul_i32 s{S_T1}, s{S_T1}, {WS_VF - WS_KF}
    s_add_u32 s{S_PFW}, s{S_T0}, s{S_T1}
    s_add_u32 s{S_PFW}, s{S_PFW}, {WS_KF}
""")

def chain_init_comm(a, name):
    ws = f"s[{S_WS}:{S_WS+3}]"
    a(f"""    v_mov_b32 v40, -1
    v_mov_b32 v41, -1
    v_mov_b32 v42, -1
    v_mov_b32 v43, -1
    s_mov_b32 s{S_T0}, {WS_P1}
    s_mov_b32 s{S_T1}, {WS_P1 + P1SLOT}
    buffer_store_dwordx4 v[40:43], v{V_P1R}, {ws}, s{S_T0} offen
    buffer_store_dwordx4 v[40:43], v{V_P1R}, {ws}, s{S_T0} offen offset:1024
    buffer_store_dwordx4 v[40:43], v{V_P1R}, {ws}, s{S_T1} offen
    buffer_store_dwordx4 v[40:43], v{V_P1R}, {ws}, s{S_T1} offen offset:1024
    s_mov_b64 exec, s[{S_MEX}:{S_MEX+1}]
""")
    for sl in range(4):
        a(f"""    s_mov_b32 s{S_T0}, {WS_M + sl*8192}
    buffer_store_dword v40, v{V_MS}, {ws}, s{S_T0} offen""")
    a("    s_mov_b64 exec, -1")

PROLOG_STAMPS = False
def chain_load_weights(a, name, after_first=None, at_iter8=None, at_iter27=None):
    RING = L_W
    a(f"""
    v_and_b32 v32, 63, v0
    v_and_b32 v33, 15, v32
    v_lshrrev_b32 v40, 4, v32           ; g
    v_lshlrev_b32 v41, 13, v40          ; (lane>>4)*8192
    v_lshlrev_b32 v42, 4, v33
    s_lshl_b32 s{S_T0}, s{S_H}, 8
    s_lshl_b32 s{S_T1}, s{S_WV}, 17
    s_add_u32 s{S_T0}, s{S_T0}, s{S_T1}
    v_add3_u32 v46, v41, v42, s{S_T0}
    v_lshrrev_b32 v41, 1, v40
    v_lshlrev_b32 v41, 3, v41
    v_and_b32 v42, 1, v40
    v_lshlrev_b32 v42, 1, v42
    v_add_u32 v41, v41, v42
    v_lshrrev_b32 v42, 2, v33           ; r
    v_and_b32 v43, 1, v42
    v_lshlrev_b32 v43, 4, v43
    v_lshrrev_b32 v44, 1, v42
    v_lshlrev_b32 v44, 2, v44
    v_add3_u32 v41, v41, v43, v44       ; row
    v_lshlrev_b32 v41, 8, v41
    v_and_b32 v43, 3, v33
    v_lshlrev_b32 v43, 3, v43           ; c4*8
    s_lshl_b32 s{S_T0}, s{S_WV}, 6
    s_add_u32 s{S_T0}, s{S_T0}, {RING}
    v_add3_u32 v47, v41, v43, s{S_T0}
    v_add_u32 v48, 0x10000, v47
    v_lshrrev_b32 v41, 1, v40
    v_lshlrev_b32 v41, 2, v41
    v_and_b32 v44, 1, v40
    v_lshlrev_b32 v44, 1, v44
    v_add_u32 v41, v41, v44
    v_and_b32 v44, 1, v42
    v_lshlrev_b32 v44, 4, v44
    v_add_u32 v41, v41, v44
    v_lshlrev_b32 v41, 10, v41
    v_lshrrev_b32 v44, 1, v42
    v_lshlrev_b32 v44, 5, v44
    v_add3_u32 v41, v41, v44, v43
    s_lshl_b32 s{S_T0}, s{S_WV}, 8
    s_add_u32 s{S_T0}, s{S_T0}, {RING}
    v_add_u32 v49, s{S_T0}, v41
    v_add_u32 v50, 0x10000, v49
    s_lshl_b32 s{S_T2}, s{S_H}, 17
    s_lshl_b32 s{S_T1}, s{S_WV}, 12      ; w*4 rows*1024
    s_add_u32 s{S_T2}, s{S_T2}, s{S_T1}
""")
    ptr_off = {0: 24, 1: 32, 2: 40, 3: 16}
    chunks = [(m, ks) for m in range(4) for ks in range(8)]
    def issue(ci):
        m, ks = chunks[ci]
        slot = ci % 8
        if ks == 0:
            a(f"""    s_load_dwordx2 s[{S_W}:{S_W+1}], s[0:1], {ptr_off[m]}
    s_mov_b32 s{S_W+2}, 0x400000
    s_mov_b32 s{S_W+3}, 0x20000
    s_waitcnt lgkmcnt(0)""")
        for ii in range(4):
            a(f"""    s_lshl_b32 s{S_T0}, s{S_WV}, 12
    s_add_u32 m0, s{S_T0}, {RING + slot*16384 + ii*1024}""")
            if m == 2:
                a(f"""    s_add_u32 s{S_T1}, s{S_T2}, {ks*16384 + ii*1024}
    buffer_load_dwordx4 v{V_L16}, s[{S_W}:{S_W+3}], s{S_T1} offen lds""")
            else:
                a(f"""    s_mov_b32 s{S_T1}, {ks*524288 + ii*32768}
    buffer_load_dwordx4 v46, s[{S_W}:{S_W+3}], s{S_T1} offen lds""")
    steps = []
    for ci in range(32):
        m, ks = chunks[ci]
        if m == 2:
            if ks % 2 == 1: steps.append((ci, [ci-1, ci]))
        else: steps.append((ci, [ci]))
    issued = 0
    def issue_upto(limit):
        nonlocal issued
        while issued < min(limit, 32):
            issue(issued); issued += 1
    freed = set()
    issue_upto(8)
    if after_first: after_first()
    for (ci, fr) in steps:
        m, ks = chunks[ci]
        a(f"    s_waitcnt vmcnt({(issued - (ci+1))*4})")
        a("    s_barrier")
        if ci == 9 and at_iter8: at_iter8()
        if ci == 27 and at_iter27: at_iter27()
        if PROLOG_STAMPS and ci in (0, 7, 15, 23, 27, 31):
            a(f"    s_memtime s[{76 + 2*[0,7,15,23,27,31].index(ci)}:{77 + 2*[0,7,15,23,27,31].index(ci)}]")
        while issued < 32 and (issued - 8) in freed: issue(issued); issued += 1
        slot = ci % 8
        if m in (0, 1, 3):
            base = "v47" if slot < 4 else "v48"
            so = (slot % 4) * 16384
            for t in range(2):
                for p in range(4):
                    off = so + (32*(p >> 1) + (p & 1))*256 + 32*t
                    if m == 0: dst = ar(t*64 + 8*ks + 2*p, 2)
                    elif m == 1: dst = ar(128 + t*64 + 8*ks + 2*p, 2)
                    else: dst = vr(56 + 16*(ks & 1) + t*8 + 2*p, 2)
                    a(f"    ds_read_b64_tr_b16 {dst}, {base} offset:{chk(off, 65535)}")
            if m == 3 and ks >= 1:
                pk = ks - 1
                wb = f"v{V_WO}" if pk < 4 else f"v{V_WO2}"
                for t in range(2):
                    for hf in range(2):
                        a(f"    ds_write_b128 {wb}, {vr(56 + 16*(pk & 1) + t*8 + 4*hf, 4)} offset:{(pk%4)*16384 + t*2048 + hf*1024}")
            a("    s_waitcnt lgkmcnt(0)")
            if m == 3 and ks == 7:
                a("    s_barrier")
                for t in range(2):
                    for hf in range(2):
                        a(f"    ds_write_b128 v{V_WO2}, {vr(56 + 16 + t*8 + 4*hf, 4)} offset:{3*16384 + t*2048 + hf*1024}")
                a("    s_waitcnt lgkmcnt(0)")
        else:
            kp = ks // 2
            s0 = slot - 1
            base = "v49" if s0 < 4 else "v50"
            so = (s0 % 4) * 16384
            for m_ in range(4):
                for p in range(4):
                    off = so + (8*(p >> 1) + (p & 1))*1024 + 64*m_
                    a(f"    ds_read_b64_tr_b16 {vr(128 + (m_*4+kp)*8 + 2*p, 2)}, {base} offset:{chk(off, 65535)}")
            a("    s_waitcnt lgkmcnt(0)")
        for c in fr: freed.add(c)
    a("    s_barrier")

def chain_mem0_issue(a, name):
    a(f"""    s_load_dwordx2 s[{S_W2}:{S_W2+1}], s[0:1], 8
    s_mov_b32 s{S_W2+2}, 8192
    s_mov_b32 s{S_W2+3}, 0x20000
    v_lshrrev_b32 v72, 7, v0            ; t>>7
    v_lshlrev_b32 v72, 6, v72           ; *32 cols *2B
    v_bfe_u32 v73, v0, 4, 3
    v_lshlrev_b32 v73, 10, v73          ; token*1024
    v_and_b32 v74, 15, v0
    v_lshlrev_b32 v74, 1, v74
    v_add3_u32 v72, v72, v73, v74
    s_waitcnt lgkmcnt(0)
""")
    for i in range(8):
        a(f"    buffer_load_ushort v{56+2*i}, v72, s[{S_W2}:{S_W2+3}], 0 offen offset:{128*i}")
        a(f"    buffer_load_ushort v{57+2*i}, v72, s[{S_W2}:{S_W2+3}], 0 offen offset:{128*i+32}")
def chain_mem0_finish(a, name):
    a("    v_lshlrev_b32 v73, 2, v0")
    for i in range(8):
        a(f"    v_lshl_or_b32 v{56+2*i}, v{57+2*i}, 16, v{56+2*i}")
        a(f"    ds_write_b32 v73, v{56+2*i} offset:{L_M + 1024*i}")
    a("    s_waitcnt lgkmcnt(0)")
def chain_load_mem0(a, name):
    chain_mem0_issue(a, name)
    a("    s_waitcnt vmcnt(0)")
    chain_mem0_finish(a, name)

def delay(a, cyc):
    n = cyc // 4
    while n > 0:
        k = min(n, 16)
        a(f"    s_nop {k-1}")
        n -= k

def init_scalars(a):
    a(f"""    s_mov_b32 s{S_P1W}, {WS_P1}
    s_mov_b32 s{S_P1W2}, {WS_P1 + 4096}
    s_mov_b32 s{S_P1W3}, {WS_P1 + P1C}
    s_mov_b32 s{S_P1W4}, {WS_P1 + P1C + 4096}
    s_mov_b32 s{S_P1X}, {WS_P1 + P1SLOT}
    s_mov_b32 s{S_MW}, {WS_M + 8192}
    s_mov_b32 s{S_MW2}, {WS_M + 8192 + 4096}
    s_mov_b32 s{S_MX}, {WS_M + 3*8192}
    s_lshl_b32 s{S_T1}, s{S_H}, 11
    s_lshl_b32 s{S_T2}, s{S_WV}, 9
    s_add_u32 s{S_T1}, s{S_T1}, s{S_T2}
    s_add_u32 s{S_KMP}, s{S_T1}, {WS_KM}
    s_add_u32 s{S_VMP}, s{S_T1}, {WS_VM}
    s_add_u32 s{S_T0}, s{S_H}, 32
    s_lshl_b32 s{S_T0}, s{S_T0}, 13
    s_lshl_b32 s{S_T2}, s{S_WV}, 11
    s_add_u32 s{S_T0}, s{S_T0}, s{S_T2}
    s_add_u32 s{S_KN}, s{S_T0}, {WS_KF}
    s_add_u32 s{S_VN}, s{S_T0}, {WS_VF}
    s_add_u32 s{S_T0}, s{S_H}, 64
    s_lshl_b32 s{S_T0}, s{S_T0}, 13
    s_add_u32 s{S_PF}, s{S_T0}, s{S_PFW}
    s_lshl_b32 s{S_T0}, s{S_H}, 7
    s_add_u32 s{S_FCH}, s{S_T0}, {F_CH}""")

def chain_loop(a, name, opt):
    ws = f"s[{S_WS}:{S_WS+3}]"
    R_A = 32
    ACC = 64
    QX, QY, KX_, KY, VX, VY = [ACC + 4*i for i in range(6)]
    WB = [88, 96, 104, 112, 120]
    NWB = len(WB)
    A = lambda ks: vr(R_A + 4*ks, 4)
    stamp = opt.get('stamp')
    ntf = 'nt' if opt.get('nt') else ''
    pts = opt.get('pts', [])
    def ts(nm):
        if not stamp: return
        if nm == 0: a(f"    s_memtime s[{S_TS}:{S_TS+1}]")
        elif nm in pts:
            i = pts.index(nm) + 1
            a(f"    s_memtime s[{S_TS+2*i}:{S_TS+2*i+1}]")
    L = a.lds
    def z2(reg): a(f"    v_mov_b64 {vr(reg,2)}, 0")
    def rt(i):
        if opt.get('rt'): a(f"    s_memrealtime s[{S_TS+2*i}:{S_TS+2*i+1}]")
    def wq_read(i, hf):
        ks, t = i // 2, i % 2
        base = f"v{V_WO}" if ks < 4 else f"v{V_WO2}"
        a.ds(f"ds_read_b128 {vr(WB[i % NWB] + 4*hf, 4)}, {base} offset:{(ks%4)*16384 + t*2048 + hf*1024}", ('W', i, hf))
    a(f"    s_mov_b32 s{S_STEP}, 0")
    init_scalars(a)
    for i in range(12): z2(ACC + 2*i)
    L.reset()
    for i in range(NWB):
        wq_read(i, 0); wq_read(i, 1)
    a(f"L_step_{name}:")
    a("    s_waitcnt lgkmcnt(0)")
    a("    s_barrier")
    if opt.get('rawlog'):
        npt = len(pts)
        a(f"""    s_lshl_b32 s98, s{S_H}, 2
    s_add_u32 s98, s98, s{S_WV}
    s_lshl_b32 s98, s98, 12
    s_lshl_b32 s93, s{S_STEP}, 5
    s_add_u32 s98, s98, s93
    s_add_u32 s98, s98, {WS_FLAG + 0x40000}""")
        for i in range(8):
            a(f"    v_mov_b32 v{32+i}, s{S_TS + 2*i}" if i <= npt else f"    v_mov_b32 v{32+i}, 0")
        a(f"""    s_mov_b64 exec, 1
    buffer_store_dwordx4 v[32:35], off, {ws}, s98
    buffer_store_dwordx4 v[36:39], off, {ws}, s98 offset:16
    s_mov_b64 exec, -1""")
    if opt.get('steplog'):
        a(f"""    s_cmp_lg_u32 s{S_WV}, 0
    s_cbranch_scc1 L_nolog_{name}
    s_memrealtime s[94:95]
    s_memtime s[96:97]
    s_waitcnt lgkmcnt(0)
    s_lshl_b32 s98, s{S_H}, 10
    s_lshl_b32 s93, s{S_STEP}, 3
    s_add_u32 s98, s98, s93
    s_add_u32 s98, s98, {WS_FLAG + 0x20000}
    v_mov_b32 v32, s94
    v_mov_b32 v33, s96
    s_mov_b64 exec, 1
    buffer_store_dwordx2 v[32:33], off, {ws}, s98
    s_mov_b64 exec, -1
L_nolog_{name}:""")
    L.reset()
    for i in range(NWB):
        L.tags[('W', i, 0)] = 0; L.tags[('W', i, 1)] = 0
    ts(0)
    if opt.get('rt'):
        a(f"""    s_cmp_eq_u32 s{S_STEP}, {opt['rt']+1}
    s_cbranch_scc0 L_nort_{name}
    v_mov_b32 v32, s{S_TS}
    v_mov_b32 v33, s{S_TS+2}
    v_mov_b32 v34, s{S_TS+4}
    v_mov_b32 v35, s{S_TS+6}
    v_mov_b32 v36, s{S_TS+8}
    v_mov_b32 v37, s{S_TS+10}
    v_mov_b32 v38, 0
    v_mov_b32 v39, 0
    s_lshl_b32 s{S_T0}, s{S_H}, 2
    s_add_u32 s{S_T0}, s{S_T0}, s{S_WV}
    s_lshl_b32 s{S_T0}, s{S_T0}, 5
    s_add_u32 s{S_T0}, s{S_T0}, {WS_FLAG + 0x4000}
    v_mov_b32 v40, 0
    s_mov_b64 exec, 1
    buffer_store_dwordx4 v[32:35], v40, {ws}, s{S_T0} offen
    buffer_store_dwordx4 v[36:39], v40, {ws}, s{S_T0} offen offset:16
    s_mov_b64 exec, -1
    s_waitcnt vmcnt(0)
L_nort_{name}:""")
    rt(0)
    for ks in range(4): a.ds(f"ds_read_b128 {A(ks)}, v{V_AR} offset:{L_M + ks*1024}", ('A', ks))
    flags = opt.get('flags')
    if flags:
        a(f"""    v_readfirstlane_b32 s{S_T0}, v0
    s_cmp_ge_u32 s{S_T0}, s{S_FLT}
    s_cbranch_scc1 L_kvok_{name}
L_kvw_{name}:
    buffer_load_dword v0, off, {ws}, s{S_FLN} sc1
    s_waitcnt vmcnt(0)
    v_readfirstlane_b32 s{S_T0}, v0
    s_cmp_ge_u32 s{S_T0}, s{S_FLT}
    s_cbranch_scc1 L_kvok_{name}
    s_sleep 2
    s_add_u32 s{S_RETRY}, s{S_RETRY}, 1
    s_cmp_lt_u32 s{S_RETRY}, 1000000
    s_cbranch_scc1 L_kvw_{name}
    s_endpgm
L_kvok_{name}:""")
    wqueue = [(i, hf) for i in range(NWB, 16) for hf in range(2)]
    def nextw():
        if wqueue:
            i, hf = wqueue.pop(0); wq_read(i, hf)
    def st_reset1(): a.vmem(f"buffer_store_dword v{V_NEG1}, v{V_P1R}, {ws}, s{S_P1X} offen")
    def st_reset2(): a.vmem(f"buffer_store_dword v{V_NEG1}, v{V_P1R}, {ws}, s{S_P1X} offen offset:1024")
    def st_reset3():
        a(f"    s_mov_b64 exec, s[{S_MEX}:{S_MEX+1}]")
        a.vmem(f"buffer_store_dword v{V_NEG1}, v{V_MS}, {ws}, s{S_MX} offen")
        a(f"    s_mov_b64 exec, -1")
    def pf():
        a(f"    v_lshlrev_b32 v{V_TR}, 2, v{V_L16}")
        a.vmem(f"buffer_load_dword v{V_TR}, v{V_TR}, {ws}, s{S_PF} offen {ntf}")
        a(f"    s_add_u32 s{S_T0}, s{S_PF}, {0 if opt.get('samekv') else 32*8192}")
        a(f"    s_cmp_lt_u32 s{S_STEP}, 61")
        a(f"    s_cselect_b32 s{S_PF}, s{S_T0}, s{S_PF}")
        if flags:
            a(f"""    s_add_u32 s{S_T0}, s{S_STEP}, 3
    s_min_u32 s{S_T0}, s{S_T0}, 63
    s_lshr_b32 s{S_FLT}, s{S_T0}, 2
    s_add_u32 s{S_FLT}, s{S_FLT}, 1
    s_and_b32 s{S_T0}, s{S_T0}, 3
    s_lshl_b32 s{S_T0}, s{S_T0}, 5
    s_add_u32 s{S_T0}, s{S_T0}, s{S_H}
    s_lshl_b32 s{S_T0}, s{S_T0}, 2
    s_add_u32 s{S_FLN}, s{S_T0}, {F_KV}""")
            a.vmem(f"buffer_load_dword v0, off, {ws}, s{S_FLN} sc1")
    def upd_ring():
        pass
    def pubch():
        if not flags: return
        a(f"""    s_cmp_lg_u32 s{S_WV}, 0
    s_cbranch_scc1 L_nopub_{name}
    v_mov_b32 v0, s{S_STEP}
    s_mov_b64 exec, 1
    buffer_store_dword v0, off, {ws}, s{S_FCH} sc1
    s_mov_b64 exec, -1
L_nopub_{name}:""")
    extra = {1: lambda: (pubch(), pf()), 5: st_reset1, 6: st_reset2, 7: st_reset3}
    for ks in range(8):
        L.need(('A', ks), ('W', 2*ks, 1))
        a(f"    v_smfmac_f32_16x16x64_bf16 {vr(QX,4)}, {A(ks)}, {vr(WB[(2*ks) % NWB],8)}, v{V_IDX}")
        nextw()
        L.need(('W', 2*ks+1, 1))
        a(f"    v_smfmac_f32_16x16x64_bf16 {vr(QY,4)}, {A(ks)}, {vr(WB[(2*ks+1) % NWB],8)}, v{V_IDX}")
        nextw()
        a(f"    v_smfmac_f32_16x16x64_bf16 {vr(KX_,4)}, {A(ks)}, {wk(0,ks)}, v{V_IDX}")
        nextw()
        a(f"    v_smfmac_f32_16x16x64_bf16 {vr(KY,4)}, {A(ks)}, {wk(1,ks)}, v{V_IDX}")
        if ks == 0:
            a("    s_waitcnt vmcnt(0)")
            for k2 in range(4, 8): a.ds(f"ds_read_b128 {A(k2)}, v{V_AR} offset:{L_M + k2*1024}", ('A', k2))
        nextw()
        if ks in extra: extra[ks]()
        ts(f'k{ks}')
    ts('QK')
    KXF = 96
    QF = 64
    KF = R_A
    vs = []
    for ks in range(8):
        vs.append(f"    v_smfmac_f32_16x16x64_bf16 {vr(VX,4)}, {A(ks)}, {wv(0,ks)}, v{V_IDX}")
        vs.append(f"    v_smfmac_f32_16x16x64_bf16 {vr(VY,4)}, {A(ks)}, {wv(1,ks)}, v{V_IDX}")
    def kxr(i): a.ds(f"ds_read_b128 {vr(KXF + 4*i, 4)}, v{V_L16} offset:{L_KX + i*1024}", ('KX', i))
    for j in range(4):
        a(vs[j]); kxr(j)
    ts('v4')
    a(f"    v_add_f32 v{QX}, v{QX}, v{QX+1}")
    a(f"    v_add_f32 v{QX+2}, v{QX+2}, v{QX+3}")
    a(f"    v_add_f32 v{QY}, v{QY}, v{QY+1}")
    a(f"    v_add_f32 v{QY+2}, v{QY+2}, v{QY+3}")
    kxr(4)
    a(f"    v_cvt_pk_bf16_f32 v{QX}, v{QX}, v{QY}")
    a(f"    v_cvt_pk_bf16_f32 v{QX+2}, v{QX+2}, v{QY+2}")
    a(f"    v_add_f32 v{KX_}, v{KX_}, v{KX_+1}")
    a(f"    v_add_f32 v{KX_+2}, v{KX_+2}, v{KX_+3}")
    a.ds(f"ds_write_b32 v{V_QW}, v{QX} offset:{L_Q}")
    a.ds(f"ds_write_b32 v{V_QW}, v{QX+2} offset:{L_Q+272}")
    a(f"    v_add_f32 v{KY}, v{KY}, v{KY+1}")
    a(f"    v_add_f32 v{KY+2}, v{KY+2}, v{KY+3}")
    kxr(5)
    a(f"    v_cvt_pk_bf16_f32 v{KX_}, v{KX_}, v{KY}")
    a(f"    v_cvt_pk_bf16_f32 v{KX_+2}, v{KX_+2}, v{KY+2}")
    a.ds(f"ds_write_b32 v{V_QW}, v{KX_} offset:{L_K}")
    a.ds(f"ds_write_b32 v{V_QW}, v{KX_+2} offset:{L_K+272}", 'kw')
    ts('vpost')
    a(vs[4]); kxr(6)
    a(vs[5]); kxr(7)
    pubf = opt.get('pubflag', 'sc1')
    nopub = opt.get('nopub')
    a(vs[6])
    if not nopub: a.vmem(f"buffer_store_dword v{KX_}, v{V_KM}, {ws}, s{S_KMP} offen {pubf}")
    a(vs[7])
    if not nopub: a.vmem(f"buffer_store_dword v{KX_+2}, v{V_KM}, {ws}, s{S_KMP} offen offset:16 {pubf}")
    ts('preB2w')
    L.need('kw', ('KX', 7))
    ts('preB2')
    a("    s_barrier")
    ts('B2')
    a(f"    s_mov_b32 m0, s{S_KM0}")
    for ks in range(4):
        a.ds(f"ds_read_b128 {vr(QF + 4*ks, 4)}, v{V_QR} offset:{L_Q + ks*64}", ('QF', ks))
        a(vs[8 + ks])
        if ks == 0:
            a(f"    s_xor_b32 s{S_P1X}, s{S_P1X}, 0x40000\n    s_add_u32 s{S_MX}, s{S_MX}, 8192\n    s_and_b32 s{S_MX}, s{S_MX}, {hex(WS_M | 0x7fff)}")
        if ks == 2:
            a(f"    s_add_u32 s{S_KMP}, s{S_KMP}, 65536")
        if ks == 1: a.vmem(f"buffer_load_dwordx4 v{V_L16}, {ws}, s{S_KN} offen sc1 {ntf} lds")
    for ks in range(4):
        a.ds(f"ds_read_b128 {vr(KF + 4*ks, 4)}, v{V_KR} offset:{L_K + ks*64}", ('KF', ks))
        a(vs[12 + ks])
        if ks == 1: a.vmem(f"buffer_load_dwordx4 v{V_L16}, {ws}, s{S_KN} offen offset:1024 sc1 {ntf} lds")
        if ks == 2: a(f"    s_add_u32 s{S_KN}, s{S_KN}, {0 if opt.get('samekv') else 32*8192}")
    ts('V')
    ST0, ST1, ST2 = R_A + 16, R_A + 20, R_A + 24
    LBR, OX, OY, LL = 88, 92, 96, 100
    for ks in range(4):
        L.need(('QF', ks), ('KX', 4 + ks))
        c0 = "0" if ks == 0 else vr(ST0,4)
        c1 = "0" if ks == 0 else vr(ST1,4)
        a(f"    v_mfma_f32_16x16x32_bf16 {vr(ST0,4)}, {vr(KXF + 4*ks,4)}, {vr(QF+4*ks,4)}, {c0}")
        if ks == 0: a.ds(f"ds_read_b128 {vr(LBR,4)}, v{V_L16} offset:{L_LB}", 'LB')
        if ks == 1: z2(OX)
        if ks == 2: z2(OX+2)
        if ks == 3: a(f"    v_add_f32 v{VX}, v{VX}, v{VX+1}\n    v_add_f32 v{VX+2}, v{VX+2}, v{VX+3}")
        a(f"    v_mfma_f32_16x16x32_bf16 {vr(ST1,4)}, {vr(KXF + 16 + 4*ks,4)}, {vr(QF+4*ks,4)}, {c1}")
        if ks == 1: z2(OY)
        if ks == 2: z2(OY+2)
        if ks == 3: a(f"    v_add_f32 v{VY}, v{VY}, v{VY+1}\n    v_add_f32 v{VY+2}, v{VY+2}, v{VY+3}")
    ts('Sx')
    for ks in range(4):
        L.need(('KF', ks))
        c2 = "0" if ks == 0 else vr(ST2,4)
        a(f"    v_mfma_f32_16x16x32_bf16 {vr(ST2,4)}, {vr(KF + 4*ks,4)}, {vr(QF+4*ks,4)}, {c2}")
        if ks == 0:
            a(f"    v_cvt_pk_bf16_f32 v{V_VBX+2}, v{VX}, v{VX+2}\n    v_cvt_pk_bf16_f32 v{V_VBY+2}, v{VY}, v{VY+2}")
        if ks == 1:
            a(f"    v_lshrrev_b32 v{VX}, 2, v{V_L16}")
        if ks == 2 and not nopub:
            a.vmem(f"buffer_store_dword v{V_VBX+2}, v{VX}, {ws}, s{S_VMP} offen {pubf}")
        if ks == 3:
            if not nopub: a.vmem(f"buffer_store_dword v{V_VBY+2}, v{VX}, {ws}, s{S_VMP} offen offset:256 {pubf}")
            else: a("    s_nop 0")
    a(f"""    s_cmp_eq_u32 s{S_STEP}, {opt.get('nsteps',64)-1}
    s_cbranch_scc1 L_done_{name}""")
    ts('S')
    X = 64
    WACC = 104
    for r in range(4):
        a(f"    v_cndmask_b32 v{X+r}, v{ST0+r}, v{ST1+r}, s[{S_HALF}:{S_HALF+1}]")
    M_ = X + 4; T_ = X + 5
    a(f"    v_max3_f32 v{M_}, v{X}, v{X+1}, v{X+2}")
    a(f"    v_max3_f32 v{T_}, v{X+3}, v{ST2}, v{ST2+1}")
    a(f"    v_max3_f32 v{M_}, v{M_}, v{ST2+2}, v{ST2+3}")
    a(f"    v_max_f32 v{M_}, v{M_}, v{T_}")
    a("    s_nop 1")
    a(f"    v_max_f32_dpp v{M_}, v{M_}, v{M_} quad_perm:[1,0,3,2] row_mask:0xf bank_mask:0xf")
    a(f"    v_mov_b32 v{T_}, v{M_}")
    a("    s_nop 1")
    a(f"    v_permlane16_swap_b32 v{M_}, v{T_}")
    a(f"    v_max_f32 v{M_}, v{M_}, v{T_}")
    a(f"    v_mov_b32 v{T_}, v{M_}")
    a("    s_nop 1")
    a(f"    v_permlane32_swap_b32 v{M_}, v{T_}")
    a(f"    v_max_f32 v{M_}, v{M_}, v{T_}")
    a(f"    v_mul_f32 v{M_}, s{S_C}, v{M_}")
    ts('max')
    E = X + 6
    srcs = [X, X+1, ST2, ST2+1, X+2, X+3, ST2+2, ST2+3]
    for i, s_ in enumerate(srcs):
        a(f"    v_fma_f32 v{E+i}, v{s_}, s{S_C}, -v{M_}")
    for i in range(8):
        a(f"    v_exp_f32 v{E+i}, v{E+i}")
    P = ST0
    a(f"    v_cvt_pk_bf16_f32 v{P}, v{E}, v{E+1}")
    a(f"    v_cvt_pk_bf16_f32 v{P+1}, v{E+2}, v{E+3}")
    a(f"    v_cvt_pk_bf16_f32 v{P+2}, v{E+4}, v{E+5}")
    a(f"    v_cvt_pk_bf16_f32 v{P+3}, v{E+6}, v{E+7}")
    ts('smax')
    L.need('LB')
    a("    s_nop 1")
    a(f"    v_mfma_f32_16x16x32_bf16 {vr(LL,4)}, {vr(P,4)}, {vr(LBR,4)}, 0")
    a(f"    v_smfmac_f32_16x16x64_bf16 {vr(OX,4)}, {vr(P,4)}, {vr(V_VBX,8)}, v{V_IDX}")
    a(f"    v_smfmac_f32_16x16x64_bf16 {vr(OY,4)}, {vr(P,4)}, {vr(V_VBY,8)}, v{V_IDX}")
    ts('PV')
    a.vmem(f"buffer_load_dwordx2 {vr(V_VBX,2)}, v{V_VX}, {ws}, s{S_VN} offen sc1 {ntf}")
    for i in range(5): z2(WACC + 2*i)
    a(f"    v_add_f32 v{LL}, v{LL}, v{LL+1}")
    a(f"    v_add_f32 v{LL+2}, v{LL+2}, v{LL+3}")
    a(f"    v_rcp_f32 v{LL}, v{LL}")
    a(f"    v_rcp_f32 v{LL+2}, v{LL+2}")
    a(f"    v_add_f32 v{OX}, v{OX}, v{OX+1}")
    a(f"    v_add_f32 v{OX+2}, v{OX+2}, v{OX+3}")
    a(f"    v_add_f32 v{OY}, v{OY}, v{OY+1}")
    a(f"    v_add_f32 v{OY+2}, v{OY+2}, v{OY+3}")
    a.vmem(f"buffer_load_dwordx2 {vr(V_VBX+4,2)}, v{V_VX}, {ws}, s{S_VN} offen offset:512 sc1 {ntf}")
    a(f"    v_mul_f32 v{OX}, v{OX}, v{LL}")
    a(f"    v_mul_f32 v{OY}, v{OY}, v{LL}")
    a(f"    v_mul_f32 v{OX+2}, v{OX+2}, v{LL+2}")
    a(f"    v_mul_f32 v{OY+2}, v{OY+2}, v{LL+2}")
    a(f"    v_cvt_pk_bf16_f32 v{OX}, v{OX}, v{OY}")
    a(f"    v_cvt_pk_bf16_f32 v{OX+2}, v{OX+2}, v{OY+2}")
    ts('opost')
    a.ds(f"ds_write_b32 v{V_QW}, v{OX} offset:{L_O}")
    a.ds(f"ds_write_b32 v{V_QW}, v{OX+2} offset:{L_O+272}", 'ow')
    for i in range(5, 8): z2(WACC + 2*i)
    a.vmem(f"buffer_load_dwordx2 {vr(V_VBY,2)}, v{V_VX}, {ws}, s{S_VN} offen offset:1024 sc1 {ntf}")
    ts('preB3w')
    L.need('ow')
    ts('preB3')
    a("    s_barrier")
    ts('B3')
    rt(5)
    OA = 64
    for kp in range(4):
        a.ds(f"ds_read_b128 {vr(OA+4*kp,4)}, v{V_QR} offset:{L_O + kp*64}", ('O', kp))
    a.ds(f"ds_read_b128 {vr(R_A,4)}, v{V_L16} offset:{L_SEL}", 'SEL')
    a.vmem(f"buffer_load_dwordx2 {vr(V_VBY+4,2)}, v{V_VX}, {ws}, s{S_VN} offen offset:1536 sc1 {ntf}")
    ts('B3r')
    SELR = R_A; RD = R_A + 4
    G1A, G1B = R_A + 8, R_A + 16
    def shot(G, va, so, so2, off2):
        a(f"    buffer_load_dwordx4 {vr(G,4)}, v{va}, {ws}, s{so} offen sc1")
        a(f"    buffer_load_dwordx4 {vr(G+4,4)}, v{va}, {ws}, s{so2} offen offset:{off2} sc1")
    early = opt.get('early', {0: 1, 1: 2})
    for m_ in range(4):
        for kp in range(4):
            L.need(('O', kp))
            a(f"    v_smfmac_f32_16x16x64_bf16 {vr(WACC+4*m_,4)}, {vr(OA+4*kp,4)}, {wo(m_,kp)}, v{V_IDX}")
            if m_ == 0 and kp == 1:
                a(f"    s_add_u32 s{S_VMP}, s{S_VMP}, 65536\n    s_add_u32 s{S_VN}, s{S_VN}, {0 if opt.get('samekv') else 32*8192}\n    s_add_u32 s{S_STEP}, s{S_STEP}, 1")
            if kp == 0: ts(f'w{m_}')
            if m_ >= 1 and kp == 1:
                wo_post(a, WACC, m_ - 1, ws)
                for w_, pst in early.items():
                    if pst == m_ - 1:
                        a(f"    s_cmp_eq_u32 s{S_WV}, {w_}\n    s_cbranch_scc0 L_{name}_ns{w_}")
                        shot(G1A, V_P1R, S_P1W, S_P1W, 1024)
                        a(f"L_{name}_ns{w_}:")
    ts('wend')
    a("    s_nop 7")
    wo_post(a, WACC, 3, ws)
    ts('Wo')
    rt(1)
    def cons1(G):
        a(f"    v_mfma_f32_16x16x32_bf16 {vr(RD,4)}, {vr(SELR,4)}, {vr(G,4)}, 0")
        a(f"    v_mfma_f32_16x16x32_bf16 {vr(RD,4)}, {vr(SELR,4)}, {vr(G+4,4)}, {vr(RD,4)}")
    L.need('SEL')
    dw = opt.get('dw', {2: 40, 3: 140})
    gap1 = opt.get('gap1', 100)
    if opt.get('roll'):
        k1 = opt.get('k1', 3)
        a(f"""    s_cmp_eq_u32 s{S_WV}, 3
    s_cbranch_scc1 L_{name}_t3
    s_cmp_eq_u32 s{S_WV}, 2
    s_cbranch_scc1 L_{name}_t2
    s_cmp_eq_u32 s{S_WV}, 1
    s_cbranch_scc1 L_{name}_t1""")
        for w_ in range(4):
            if w_ > 0: a(f"L_{name}_t{w_}:")
            delay(a, dw[w_])
            if w_ < 3: a(f"    s_branch L_{name}_td")
        a(f"L_{name}_td:")
        pollr(a, name + "_p1", G1A, R_A + 24, V_P1R, S_P1W, S_P1W, 1024, ws, k1, gap1, None, (91 if opt.get('cnt') else None))
        cons1(G1A)
    else:
        a(f"""    s_cmp_eq_u32 s{S_WV}, 3
        s_cbranch_scc1 L_{name}_t3
        s_cmp_eq_u32 s{S_WV}, 2
        s_cbranch_scc1 L_{name}_t2
        s_cmp_eq_u32 s{S_WV}, 1
        s_cbranch_scc1 L_{name}_t1""")
        for w_ in range(4):
            if w_ > 0: a(f"L_{name}_t{w_}:")
            nm = f"{name}_p1w{w_}"
            if w_ in early:
                younger = 2 * (3 - early[w_])
                pollx(a, nm, G1A, G1B, R_A + 24, V_P1R, S_P1W, S_P1W, 1024, ws, True, younger, 0, gap1, cons1, f"L_{name}_p1j", (91 if opt.get('cnt') else None))
            else:
                pollx(a, nm, G1A, G1B, R_A + 24, V_P1R, S_P1W, S_P1W, 1024, ws, False, 0, dw[w_], gap1, cons1, f"L_{name}_p1j", (91 if opt.get('cnt') else None))
    a(f"L_{name}_p1j:")
    ts('p1ok')
    rt(2)
    a("    s_nop 7")
    a(f"    v_add_f32_dpp v{RD}, v{RD}, v{RD} row_ror:8 row_mask:0xf bank_mask:0xf")
    a(f"    v_add_f32_dpp v{RD+1}, v{RD+1}, v{RD+1} row_ror:8 row_mask:0xf bank_mask:0xf")
    a("    s_nop 0")
    a(f"    v_add_f32_dpp v{RD}, v{RD}, v{RD} row_ror:4 row_mask:0xf bank_mask:0xf")
    a(f"    v_add_f32_dpp v{RD+1}, v{RD+1}, v{RD+1} row_ror:4 row_mask:0xf bank_mask:0xf")
    a(f"    v_cvt_pk_bf16_f32 v{RD}, v{RD}, v{RD+1}")
    a(f"    s_mov_b64 exec, s[{S_MEX}:{S_MEX+1}]")
    a(f"    buffer_store_dword v{RD}, v{V_MS}, {ws}, s{S_MW} offen")
    a(f"    s_mov_b64 exec, -1")
    ts('Mst')
    rt(3)
    if opt.get('ackdiag2'):
        a("    s_waitcnt vmcnt(0)")
        ts('ack2')
    d2 = opt.get('d2', 160); gap2 = opt.get('gap2', 100)
    for i in range(NWB):
        wq_read(i, 0); wq_read(i, 1)
    a(f"""    s_xor_b32 s{S_P1W}, s{S_P1W}, 0x40000
    s_xor_b32 s{S_P1W2}, s{S_P1W2}, 0x40000
    s_xor_b32 s{S_P1W3}, s{S_P1W3}, 0x40000
    s_xor_b32 s{S_P1W4}, s{S_P1W4}, 0x40000""")
    wave_delay(a, name + "_h2", d2 - 160, opt.get('stag2', 0))
    def fill2a():
        for i in range(12): z2(ACC + 2*i)
        delay(a, gap2 - 48)
    G2A, G2B = R_A + 24, R_A + 16
    def cons2(G):
        ts('p2ok')
        a(f"    ds_write_b128 v{V_MP}, {vr(G,4)} offset:{L_M}")
        a(f"    ds_write_b128 v{V_MP}, {vr(G+4,4)} offset:{L_M+4096}")
    if opt.get('roll'):
        if opt.get('k2', 3) == 1:
            for i in range(12): z2(ACC + 2*i)
        pollr(a, name + "_p2", G2A, RD, V_MP, S_MW, S_MW2, 0, ws, opt.get('k2', 3), gap2, fill2a, (92 if opt.get('cnt') else None))
        cons2(G2A)
    else:
        poll2(a, name + "_p2", G2A, G2B, RD, V_MP, S_MW, S_MW2, 0, ws, fill2a, lambda: None, cons2, (92 if opt.get('cnt') else None), lambda: ts('shot2'))
    rt(4)
    a(f"""    s_add_u32 s{S_MW}, s{S_MW}, 8192
    s_and_b32 s{S_MW}, s{S_MW}, {hex(WS_M | 0x7fff)}
    s_add_u32 s{S_MW2}, s{S_MW}, 4096""")
    ts('Mwr')
    if stamp:
        a("    s_waitcnt lgkmcnt(0)")
        for i in range(1, len(pts)+1):
            a(f"    s_sub_u32 s{S_T0}, s{S_TS+2*i}, s{S_TS}\n    s_add_u32 s{79+i}, s{79+i}, s{S_T0}")
    a(f"""    s_branch L_step_{name}
L_done_{name}:""")
    if flags:
        a(f"""    s_waitcnt vmcnt(0)
    s_barrier
    s_cmp_lg_u32 s{S_WV}, 0
    s_cbranch_scc1 L_nopub2_{name}
    v_mov_b32 v0, 64
    s_mov_b64 exec, 1
    buffer_store_dword v0, off, {ws}, s{S_FCH} sc1
    s_mov_b64 exec, -1
L_nopub2_{name}:""")

def wo_post(a, WACC, m, ws):
    X = WACC + 4*m
    a(f"    v_cvt_pk_bf16_f32 v{X}, v{X}, v{X+1}")
    a(f"    v_cvt_pk_bf16_f32 v{X+2}, v{X+2}, v{X+3}")
    s0, s1 = (S_P1W, S_P1W3) if m < 2 else (S_P1W2, S_P1W4)
    a(f"    buffer_store_dword v{X}, v{V_P1S}, {ws}, s{s0} offen offset:{(m & 1)*2048}")
    a(f"    buffer_store_dword v{X+2}, v{V_P1S}, {ws}, s{s1} offen offset:{(m & 1)*2048}")

def wave_delay(a, nm, d, stag):
    if d <= 0: return
    if stag == 0:
        delay(a, d); return
    for w in range(3):
        dl = max(0, d - stag*(3-w))
        a(f"    s_cmp_eq_u32 s{S_WV}, {w}\n    s_cbranch_scc0 L_{nm}_w{w}")
        delay(a, dl)
        a(f"    s_branch L_{nm}_e\nL_{nm}_w{w}:")
    delay(a, d)
    a(f"L_{nm}_e:")

def poll(a, nm, G, vaddr, soff, soff2, off2, ws, T, filler=None, cnt=None):
    s2 = soff2 if soff2 is not None else soff
    def lds():
        a(f"    buffer_load_dwordx4 {vr(G,4)}, v{vaddr}, {ws}, s{soff} offen sc1")
        a(f"    buffer_load_dwordx4 {vr(G+4,4)}, v{vaddr}, {ws}, s{s2} offen offset:{off2} sc1")
    lds()
    if filler: filler()
    a(f"""    s_waitcnt vmcnt(0)
    v_max_u32 v{T}, v{G}, v{G+4}
    v_cmp_eq_u32 vcc, -1, v{T}
    s_cbranch_vccz L_{nm}_ok
    s_mov_b64 exec, vcc""")
    if cnt: a(f"    s_add_u32 s{cnt}, s{cnt}, 1")
    lds()
    a(f"L_{nm}_loop:")
    a("    s_nop 15")
    lds()
    a(f"""    s_waitcnt vmcnt(2)
    s_mov_b64 exec, -1
    v_max_u32 v{T}, v{G}, v{G+4}
    v_cmp_eq_u32 vcc, -1, v{T}
    s_cbranch_vccz L_{nm}_ok2
    s_mov_b64 exec, vcc
    s_add_u32 s{S_RETRY}, s{S_RETRY}, 1
    s_cmp_lt_u32 s{S_RETRY}, 1000000
    s_cbranch_scc1 L_{nm}_loop
    s_mov_b64 exec, -1
    s_endpgm
L_{nm}_ok2:
    s_waitcnt vmcnt(0)
L_{nm}_ok:""")


def poll2(a, nm, GA, GB, T, vaddr, soff, soff2, off2, ws, fillA, fillB, consume, cnt=None, tsA=None):
    s2 = soff2 if soff2 is not None else soff
    def lds(G):
        a(f"    buffer_load_dwordx4 {vr(G,4)}, v{vaddr}, {ws}, s{soff} offen sc1")
        a(f"    buffer_load_dwordx4 {vr(G+4,4)}, v{vaddr}, {ws}, s{s2} offen offset:{off2} sc1")
    lds(GA)
    fillA()
    lds(GB)
    fillB()
    a("    s_waitcnt vmcnt(2)")
    if tsA: tsA()
    a(f"""    v_max_u32 v{T}, v{GA}, v{GA+4}
    v_cmp_eq_u32 vcc, -1, v{T}
    s_cbranch_vccz L_{nm}_okA""")
    if cnt: a(f"    s_add_u32 s{cnt}, s{cnt}, 1")
    a(f"""    s_waitcnt vmcnt(0)
    v_max_u32 v{T}, v{GB}, v{GB+4}
    v_cmp_eq_u32 vcc, -1, v{T}
    s_cbranch_vccz L_{nm}_okB""")
    if cnt: a(f"    s_add_u32 s{cnt}, s{cnt}, 0x100")
    a("    s_mov_b64 exec, vcc")
    lds(GB)
    a(f"L_{nm}_loop:")
    a("    s_nop 15")
    lds(GB)
    a(f"""    s_waitcnt vmcnt(2)
    s_mov_b64 exec, -1
    v_max_u32 v{T}, v{GB}, v{GB+4}
    v_cmp_eq_u32 vcc, -1, v{T}
    s_cbranch_vccz L_{nm}_okB
    s_mov_b64 exec, vcc
    s_add_u32 s{S_RETRY}, s{S_RETRY}, 1
    s_cmp_lt_u32 s{S_RETRY}, 1000000
    s_cbranch_scc1 L_{nm}_loop
    s_mov_b64 exec, -1
    s_endpgm
L_{nm}_okB:""")
    consume(GB)
    a(f"    s_branch L_{nm}_join")
    a(f"L_{nm}_okA:")
    consume(GA)
    a(f"L_{nm}_join:")


def pollx(a, nm, GA, GB, T, vaddr, soff, soff2, off2, ws, issued, younger, d, gap, consume, join, cnt=None):
    def lds(G):
        a(f"    buffer_load_dwordx4 {vr(G,4)}, v{vaddr}, {ws}, s{soff} offen sc1")
        a(f"    buffer_load_dwordx4 {vr(G+4,4)}, v{vaddr}, {ws}, s{soff2} offen offset:{off2} sc1")
    if issued:
        a(f"    s_waitcnt vmcnt({younger})")
        a(f"""    v_max_u32 v{T}, v{GA}, v{GA+4}
    v_cmp_eq_u32 vcc, -1, v{T}
    s_cbranch_vccz L_{nm}_okA""")
        lds(GB)
    else:
        delay(a, d)
        lds(GA)
        delay(a, gap)
        lds(GB)
        a(f"""    s_waitcnt vmcnt(2)
    v_max_u32 v{T}, v{GA}, v{GA+4}
    v_cmp_eq_u32 vcc, -1, v{T}
    s_cbranch_vccz L_{nm}_okA""")
    if cnt: a(f"    s_add_u32 s{cnt}, s{cnt}, 1")
    a(f"""    s_waitcnt vmcnt(0)
    v_max_u32 v{T}, v{GB}, v{GB+4}
    v_cmp_eq_u32 vcc, -1, v{T}
    s_cbranch_vccz L_{nm}_okB""")
    if cnt: a(f"    s_add_u32 s{cnt}, s{cnt}, 0x100")
    a("    s_mov_b64 exec, vcc")
    lds(GB)
    a(f"L_{nm}_loop:")
    a("    s_nop 7")
    lds(GB)
    a(f"""    s_waitcnt vmcnt(2)
    s_mov_b64 exec, -1
    v_max_u32 v{T}, v{GB}, v{GB+4}
    v_cmp_eq_u32 vcc, -1, v{T}
    s_cbranch_vccz L_{nm}_okB
    s_mov_b64 exec, vcc
    s_add_u32 s{S_RETRY}, s{S_RETRY}, 1
    s_cmp_lt_u32 s{S_RETRY}, 1000000
    s_cbranch_scc1 L_{nm}_loop
    s_mov_b64 exec, -1
    s_endpgm
L_{nm}_okB:""")
    consume(GB)
    a(f"    s_branch {join}")
    a(f"L_{nm}_okA:")
    consume(GA)
    a(f"    s_branch {join}")


def pollr(a, nm, G, T, vaddr, soff, soff2, off2, ws, k, gap, fill=None, cnt=None):
    def lds():
        a(f"    buffer_load_dwordx4 {vr(G,4)}, v{vaddr}, {ws}, s{soff} offen sc1")
        a(f"    buffer_load_dwordx4 {vr(G+4,4)}, v{vaddr}, {ws}, s{soff2} offen offset:{off2} sc1")
    for i in range(k):
        lds()
        if i < k - 1:
            if i == 0 and fill: fill()
            else: delay(a, gap)
    a(f"L_{nm}_loop:")
    a(f"""    s_waitcnt vmcnt({2*(k-1)})
    s_mov_b64 exec, -1
    v_max_u32 v{T}, v{G}, v{G+4}
    v_cmp_eq_u32 vcc, -1, v{T}
    s_cbranch_vccz L_{nm}_ok
    s_mov_b64 exec, vcc""")
    lds()
    if cnt: a(f"    s_add_u32 s{cnt}, s{cnt}, 1")
    a(f"""    s_add_u32 s{S_RETRY}, s{S_RETRY}, 1
    s_cmp_lt_u32 s{S_RETRY}, 1000000
    s_cbranch_scc1 L_{nm}_loop
    s_mov_b64 exec, -1
    s_endpgm
L_{nm}_ok:""")
```

```python
from asmlib import *
from chain import *

S_LATE = 46
S_CNT1, S_CNT2 = 91, 92
S_FLTN, S_FLNN = 72, 73
S_Q0 = 12
S_TQ = 14
S_FCV = 74
S_W0 = 70

def chain_loop2(a, name, opt):
    ws = f"s[{S_WS}:{S_WS+3}]"
    flags = opt.get('flags')
    R_A = 32
    ACC = 64
    QX, QY, KX_, KY, VX, VY = [ACC + 4*i for i in range(6)]
    WB = [88, 96, 104, 112, 120]
    NWB = len(WB)
    EARLY = opt.get('earlyhalf', 1)
    KS = [0, 2, 4, 6, 1, 3, 5, 7] if EARLY else list(range(8))
    A = lambda j: vr(R_A + 4*j, 4)
    L = a.lds
    cnt1 = S_CNT1 if opt.get('cnt') else None
    cnt2 = S_CNT2 if opt.get('cnt') else None
    stamp = opt.get('stamp'); pts = opt.get('pts', [])
    S_TS = 48
    def ts(nm):
        if not stamp: return
        if nm == 0: a(f"    s_memtime s[{S_TS}:{S_TS+1}]")
        elif nm in pts:
            i = pts.index(nm) + 1
            a(f"    s_memtime s[{S_TS+2*i}:{S_TS+2*i+1}]")
    def z2(reg): a(f"    v_mov_b64 {vr(reg,2)}, 0")
    def wq_read(i, hf):
        ks, t = KS[i // 2], i % 2
        base = f"v{V_WO}" if ks < 4 else f"v{V_WO2}"
        a.ds(f"ds_read_b128 {vr(WB[i % NWB] + 4*hf, 4)}, {base} offset:{(ks%4)*16384 + t*2048 + hf*1024}", ('W', i, hf))
    def aread(j): a.ds(f"ds_read_b128 {A(j)}, v{V_AR} offset:{L_M + KS[j]*1024}", ('A', j))
    G2 = R_A + 16
    def mshot():
        a(f"    buffer_load_dwordx4 {vr(G2,4)}, v{V_MP}, {ws}, s{S_MW} offen sc1")
        a(f"    buffer_load_dwordx4 {vr(G2+4,4)}, v{V_MP}, {ws}, s{S_MW2} offen sc1")
    def check_loop(nm, G, T, reissue, cnt, qmask=False):
        a(f"""L_{nm}_chk:
    v_max_u32 v{T}, v{G}, v{G+4}
    v_cmp_eq_u32 vcc, -1, v{T}""")
        if qmask: a(f"    s_and_b64 vcc, vcc, s[{S_Q0}:{S_Q0+1}]")
        a(f"""    s_cbranch_vccnz L_{nm}_retry
L_{nm}_ok:""")
        def tail():
            a(f"L_{nm}_retry:")
            if qmask:
                a("    s_lshl_b64 s[{0}:{1}], vcc, 1\n    s_or_b64 vcc, vcc, s[{0}:{1}]\n    s_lshl_b64 s[{0}:{1}], vcc, 2\n    s_or_b64 vcc, vcc, s[{0}:{1}]".format(S_TQ, S_TQ+1))
            a("    s_mov_b64 exec, vcc")
            reissue()
            if cnt: a(f"    s_add_u32 s{cnt}, s{cnt}, 1")
            a(f"""    s_add_u32 s{S_RETRY}, s{S_RETRY}, 1
    s_cmp_lt_u32 s{S_RETRY}, 1000000
    s_cbranch_scc0 L_abort_{name}
    s_waitcnt vmcnt(0)
    s_mov_b64 exec, -1
    s_branch L_{nm}_chk""")
        tails.append(tail)
    tails = []

    a(f"    s_mov_b32 s{S_STEP}, 0")
    init_scalars(a)
    a(f"""    s_cmp_ge_u32 s{S_WV}, 2
    s_cselect_b64 s[{S_LATE}:{S_LATE+1}], -1, 0""")
    a(f"""    s_mov_b32 s{S_MWN}, s{S_MW}
    s_cmp_eq_u32 s{S_WV}, 0
    s_cselect_b32 s{S_W0}, 1, 0
    s_mov_b32 s{S_W0+1}, 0
    s_sub_u32 s{S_VN}, s{S_VN}, {32*8192}
    s_lshl_b32 s{S_FLNN}, s{S_H}, 2
    s_add_u32 s{S_FLNN}, s{S_FLNN}, {F_KV + 3*128}
    s_mov_b32 s{S_FLTN}, 1
    s_mov_b32 s{S_FCV}, 0
    s_mov_b32 s{S_Q0}, 0x11111111
    s_mov_b32 s{S_Q0+1}, 0x11111111""")
    for i in range(12): z2(ACC + 2*i)
    L.reset()
    for i in range(NWB):
        wq_read(i, 0); wq_read(i, 1)
    a(f"    ds_read_b128 {vr(G2,4)}, v{V_MP} offset:{L_M}")
    a(f"    ds_read_b128 {vr(G2+4,4)}, v{V_MP} offset:{L_M+4096}")
    if stamp:
        for i in range(0, len(pts)+1): a(f"    s_mov_b32 s{S_TS+2*i}, 0")
    a(f"L_step_{name}:")
    a("    s_waitcnt lgkmcnt(0)")
    a("    s_barrier")
    if opt.get('steplog'):
        a(f"""    s_lshl_b32 s98, s{S_H}, 10
    s_lshl_b32 s93, s{S_STEP}, 3
    s_add_u32 s98, s98, s93
    s_add_u32 s98, s98, {WS_FLAG + 0x20000}
    v_mov_b32 v32, s96
    v_mov_b32 v33, s96
    s_memtime s[96:97]
    s_mov_b64 exec, s[{S_W0}:{S_W0+1}]
    buffer_store_dwordx2 v[32:33], off, {ws}, s98
    s_mov_b64 exec, -1""")
    if opt.get('winlog'):
        a(f"    s_and_b32 s{S_T0}, s{S_STEP}, 7\n    s_cmp_lg_u32 s{S_T0}, 0\n    s_cbranch_scc1 L_nowin_{name}")
        for k in range(8):
            a(f"    s_cmp_eq_u32 s{S_STEP}, {8*k}\n    s_cbranch_scc0 L_win{k}_{name}\n    s_memtime s[{76+2*k}:{77+2*k}]\nL_win{k}_{name}:")
        a(f"L_nowin_{name}:")
    if opt.get('rawlog'):
        npt = len(pts)
        a(f"""    s_lshl_b32 s98, s{S_H}, 2
    s_add_u32 s98, s98, s{S_WV}
    s_lshl_b32 s98, s98, 12
    s_lshl_b32 s93, s{S_STEP}, 5
    s_add_u32 s98, s98, s93
    s_add_u32 s98, s98, {WS_FLAG + 0x40000}""")
        for i in range(8):
            a(f"    v_mov_b32 v{32+i}, s{S_TS + 2*i}" if i <= npt else f"    v_mov_b32 v{32+i}, 0")
        a(f"""    s_mov_b64 exec, 1
    buffer_store_dwordx4 v[32:35], off, {ws}, s98
    buffer_store_dwordx4 v[36:39], off, {ws}, s98 offset:16
    s_mov_b64 exec, -1""")
    if stamp:
        for i in range(1, len(pts)+1):
            a(f"    s_sub_u32 s{S_T0}, s{S_TS+2*i}, s{S_TS}\n    s_add_u32 s{79+i}, s{79+i}, s{S_T0}")
    L.reset()
    for i in range(NWB):
        L.tags[('W', i, 0)] = 0; L.tags[('W', i, 1)] = 0
    ts(0)
    KMT = R_A + 28
    for j in range(4): aread(j)
    a.ds(f"ds_read_b32 v{KMT}, v{V_QW} offset:{L_K}", 'km0')
    a.ds(f"ds_read_b32 v{KMT+1}, v{V_QW} offset:{L_K+272}", 'km1')
    if not EARLY: a(f"    s_mov_b32 s{S_MW}, s{S_MWN}\n    s_add_u32 s{S_MW2}, s{S_MWN}, 4096")
    if flags and not opt.get('nofl'):
        a(f"""    v_readfirstlane_b32 s{S_T0}, v0
    s_cmp_lt_u32 s{S_T0}, s{S_FLT}
    s_cbranch_scc1 L_kvw_{name}
L_kvok_{name}:
    s_mov_b32 s{S_FLN}, s{S_FLNN}
    s_mov_b32 s{S_FLT}, s{S_FLTN}""")
        def kvtail():
            a(f"""L_kvw_{name}:
    buffer_load_dword v0, off, {ws}, s{S_FLN} sc1
    s_waitcnt vmcnt(0)
    v_readfirstlane_b32 s{S_T0}, v0
    s_cmp_ge_u32 s{S_T0}, s{S_FLT}
    s_cbranch_scc1 L_kvok_{name}
    s_sleep 2
    s_add_u32 s{S_RETRY}, s{S_RETRY}, 1
    s_cmp_lt_u32 s{S_RETRY}, 1000000
    s_cbranch_scc1 L_kvw_{name}
    s_branch L_abort_{name}""")
        tails.append(kvtail)
    wqueue = [(i, hf) for i in range(NWB, 16) for hf in range(2)]
    def nextw():
        if wqueue:
            i, hf = wqueue.pop(0); wq_read(i, hf)
    KXF = 96
    def kxr(i): a.ds(f"ds_read_b128 {vr(KXF + 4*i, 4)}, v{V_L16} offset:{L_KX + i*1024}", ('KX', i))
    vq = {}
    def at(slot, f): vq.setdefault(slot, []).append(f)
    def pubch():
        if not flags or opt.get('nofch'): return
        a(f"""    v_mov_b32 v0, s{S_FCV}
    s_mov_b64 exec, s[{S_W0}:{S_W0+1}]
    buffer_store_dword v0, off, {ws}, s{S_FCH} sc1
    s_mov_b64 exec, -1""")
    def pf():
        a(f"    v_lshlrev_b32 v{V_TR}, 2, v{V_L16}")
        a(f"    buffer_load_dword v{V_TR}, v{V_TR}, {ws}, s{S_PF} offen")
    def flagload():
        if flags and not opt.get('nofl'): a(f"    buffer_load_dword v0, off, {ws}, s{S_FLN} sc1")
    spec = opt.get('spec2') or opt.get('spec1')
    vx = [(V_VBX, 0), (V_VBX+4, 512), (V_VBY, 1024), (V_VBY+4, 1536)]
    def vxl(q): a(f"    buffer_load_dwordx2 {vr(vx[q][0],2)}, v{V_VX}, {ws}, s{S_VN} offen offset:{vx[q][1]} sc1")
    def reset3():
        a(f"    s_mov_b64 exec, s[{S_MEX}:{S_MEX+1}]")
        a(f"    buffer_store_dword v{V_NEG1}, v{V_MS}, {ws}, s{S_MX} offen")
        a(f"    s_mov_b64 exec, -1")
    NV0 = opt.get('nv0', 4)
    start = []; c = 0
    for j in range(8):
        start.append(c); c += 6 if j < NV0 else 4
    nslots = c
    consumed = {}
    for j in range(8): consumed[2*j] = start[j]; consumed[2*j+1] = start[j] + 1
    if not EARLY:
        at(2, lambda: (a("    s_waitcnt vmcnt(0)") if spec else None, vxl(0)))
        at(4, lambda: aread(4)); at(5, lambda: aread(5)); at(10, lambda: aread(6))
        at(6, lambda: vxl(1)); at(10, lambda: vxl(2)); at(14, lambda: vxl(3))
    else:
        lc = opt.get('lc', 5); b1b = opt.get('b1b', 11)
        def latecheck():
            nm = name + "_m2l"
            T = R_A + 24
            a(f"""    s_waitcnt vmcnt(2)
    v_max_u32 v{T}, v{G2}, v{G2+4}
    v_cmp_eq_u32 vcc, -1, v{T}
    s_cbranch_vccz L_{nm}_ok
    s_waitcnt vmcnt(0)""")
            check_loop(nm, G2, T, mshot, cnt2)
            a(f"    s_mov_b64 exec, s[{S_LATE}:{S_LATE+1}]")
            a.ds(f"ds_write_b128 v{V_MP}, {vr(G2,4)} offset:{L_M}")
            a.ds(f"ds_write_b128 v{V_MP}, {vr(G2+4,4)} offset:{L_M+4096}", 'mw')
            a("    s_mov_b64 exec, -1")
            a(f"    s_mov_b32 s{S_MW}, s{S_MWN}\n    s_add_u32 s{S_MW2}, s{S_MWN}, 4096")
        at(lc, latecheck)
        vsl = opt.get('vsl', (lc + 1, lc + 4, 13, 16))
        nbefore = sum(1 for x in vsl if x < b1b)
        def bar1b():
            L.need('mw')
            a(f"    s_waitcnt vmcnt({nbefore})")
            a("    s_barrier")
            aread(4); aread(5)
        at(b1b, bar1b)
        at(b1b + 1, lambda: aread(6))
        for q in range(4): at(vsl[q], lambda q=q: vxl(q))
    at(17, lambda: (a(f"    v_lshrrev_b32 v0, 2, v{V_L16}"), a(f"    buffer_store_dword v{V_VBX+2}, v0, {ws}, s{S_VMP} offen sc1")))
    at(18, lambda: a(f"    buffer_store_dword v{V_VBY+2}, v0, {ws}, s{S_VMP} offen offset:256 sc1"))
    at(11, lambda: (L.need('km1'), a("    s_nop 0")) if False else None)
    at(20, lambda: (L.need('km1'), a(f"    buffer_store_dword v{KMT}, v{V_KM}, {ws}, s{S_KMP} offen sc1")))
    at(21, lambda: (a(f"    buffer_store_dword v{KMT+1}, v{V_KM}, {ws}, s{S_KMP} offen offset:64 sc1"), aread(7)))
    at(22, pubch); at(23, pf); at(26, flagload)
    freeat = {0: consumed[11], 1: consumed[11], 2: consumed[12], 3: consumed[12], 4: consumed[13], 5: consumed[13], 6: consumed[14], 7: consumed[14]}
    kxq = list(range(8))
    slot = 0
    def after():
        nonlocal slot
        did = False
        if wqueue:
            i, hf = wqueue[0]
            if slot >= consumed[i - NWB]:
                wqueue.pop(0); wq_read(i, hf); did = True
        if not did and not wqueue and kxq and slot >= freeat[kxq[0]] and (8 - len(kxq)) < opt.get('kxn', 8):
            kxr(kxq.pop(0))
        for f in vq.get(slot, []): f()
        slot += 1
    vs = []
    for j in range(8):
        vs.append(f"    v_smfmac_f32_16x16x64_bf16 {vr(VX,4)}, {A(j)}, {wv(0,KS[j])}, v{V_IDX}")
        vs.append(f"    v_smfmac_f32_16x16x64_bf16 {vr(VY,4)}, {A(j)}, {wv(1,KS[j])}, v{V_IDX}")
    for j in range(8):
        ks = KS[j]
        if j in (1, 2, 4): ts(f'j{j}')
        L.need(('A', j), ('W', 2*j, 1), ('W', 2*j+1, 1))
        a(f"    v_smfmac_f32_16x16x64_bf16 {vr(QX,4)}, {A(j)}, {vr(WB[(2*j) % NWB],8)}, v{V_IDX}"); after()
        a(f"    v_smfmac_f32_16x16x64_bf16 {vr(QY,4)}, {A(j)}, {vr(WB[(2*j+1) % NWB],8)}, v{V_IDX}"); after()
        a(f"    v_smfmac_f32_16x16x64_bf16 {vr(KX_,4)}, {A(j)}, {wk(0,ks)}, v{V_IDX}"); after()
        a(f"    v_smfmac_f32_16x16x64_bf16 {vr(KY,4)}, {A(j)}, {wk(1,ks)}, v{V_IDX}"); after()
        if j < NV0:
            a(vs[2*j]); after()
            a(vs[2*j+1]); after()
    assert not wqueue, wqueue
    ts('QK')
    QF = 64; KF = R_A
    vr_ = vs[2*NV0:]
    def nv():
        if vr_: a(vr_.pop(0))
    nv()
    if kxq: kxr(kxq.pop(0))
    nv()
    if kxq: kxr(kxq.pop(0))
    a(f"    v_add_f32 v{QX}, v{QX}, v{QX+1}")
    a(f"    v_add_f32 v{QX+2}, v{QX+2}, v{QX+3}")
    a(f"    v_add_f32 v{QY}, v{QY}, v{QY+1}")
    a(f"    v_add_f32 v{QY+2}, v{QY+2}, v{QY+3}")
    a(f"    v_cvt_pk_bf16_f32 v{QX}, v{QX}, v{QY}")
    a(f"    v_cvt_pk_bf16_f32 v{QX+2}, v{QX+2}, v{QY+2}")
    a(f"    v_add_f32 v{KX_}, v{KX_}, v{KX_+1}")
    a.ds(f"ds_write_b32 v{V_QW}, v{QX} offset:{L_Q}")
    a(f"    v_add_f32 v{KX_+2}, v{KX_+2}, v{KX_+3}")
    a.ds(f"ds_write_b32 v{V_QW}, v{QX+2} offset:{L_Q+272}")
    a(f"    v_add_f32 v{KY}, v{KY}, v{KY+1}")
    a(f"    v_add_f32 v{KY+2}, v{KY+2}, v{KY+3}")
    a(f"    v_cvt_pk_bf16_f32 v{KX_}, v{KX_}, v{KY}")
    a(f"    v_cvt_pk_bf16_f32 v{KX_+2}, v{KX_+2}, v{KY+2}")
    a.ds(f"ds_write_b32 v{V_QW}, v{KX_} offset:{L_K}")
    a.ds(f"ds_write_b32 v{V_QW}, v{KX_+2} offset:{L_K+272}", 'kw')
    ts('vpost')
    kxmode = opt.get('kxmode', 0)
    if kxmode == 0:
        while kxq: kxr(kxq.pop(0))
    nv()
    if kxq: kxr(kxq.pop(0))
    if kxq: kxr(kxq.pop(0))
    a(f"    v_mad_u32_u24 v{QX+1}, v{V_L16}, 3, v{V_P1R}")
    a(f"    s_mov_b32 exec_hi, 0")
    a(f"    buffer_store_dword v{V_NEG1}, v{QX+1}, {ws}, s{S_P1X} offen")
    a(f"    s_mov_b32 exec_hi, -1")
    nv()
    if kxq: kxr(kxq.pop(0))
    if kxq: kxr(kxq.pop(0))
    nv()
    while kxq: kxr(kxq.pop(0))
    reset3()
    L.need('kw')
    a("    s_barrier")
    ts('B2')
    for ks in range(4):
        a.ds(f"ds_read_b128 {vr(QF + 4*ks, 4)}, v{V_QR} offset:{L_Q + ks*64}", ('QF', ks))
        nv()
    for ks in range(4):
        a.ds(f"ds_read_b128 {vr(KF + 4*ks, 4)}, v{V_KR} offset:{L_K + ks*64}", ('KF', ks))
        nv()
    while vr_: nv()
    ts('V')
    ST0, ST1, ST2 = R_A + 16, R_A + 20, R_A + 24
    LBR, OX, OY, LL = 88, 92, 96, 100
    WACC = 104
    for ks in range(4):
        L.need(('QF', ks), ('KX', ks), ('KX', 4 + ks))
        c0 = "0" if ks == 0 else vr(ST0,4)
        c1 = "0" if ks == 0 else vr(ST1,4)
        a(f"    v_mfma_f32_16x16x32_bf16 {vr(ST0,4)}, {vr(KXF + 4*ks,4)}, {vr(QF+4*ks,4)}, {c0}")
        if ks == 0: a.ds(f"ds_read_b128 {vr(LBR,4)}, v{V_L16} offset:{L_LB}", 'LB')
        if ks == 1: z2(OX); z2(OX+2)
        if ks == 2: a(f"    v_add_f32 v{VX}, v{VX}, v{VX+1}\n    v_add_f32 v{VX+2}, v{VX+2}, v{VX+3}")
        if ks == 3: a(f"    v_cvt_pk_bf16_f32 v{V_VBX+2}, v{VX}, v{VX+2}")
        a(f"    v_mfma_f32_16x16x32_bf16 {vr(ST1,4)}, {vr(KXF + 16 + 4*ks,4)}, {vr(QF+4*ks,4)}, {c1}")
        if ks == 1: z2(OY); z2(OY+2)
        if ks == 2: a(f"    v_add_f32 v{VY}, v{VY}, v{VY+1}\n    v_add_f32 v{VY+2}, v{VY+2}, v{VY+3}")
        if ks == 3: a(f"    v_cvt_pk_bf16_f32 v{V_VBY+2}, v{VY}, v{VY+2}")
    ts('Sx')
    X = 80
    X = R_A + 28
    for ks in range(4):
        L.need(('KF', ks))
        c2 = "0" if ks == 0 else vr(ST2,4)
        a(f"    v_mfma_f32_16x16x32_bf16 {vr(ST2,4)}, {vr(KF + 4*ks,4)}, {vr(QF+4*ks,4)}, {c2}")
        if ks == 1:
            a(f"    v_cndmask_b32 v{X}, v{ST0}, v{ST1}, s[{S_HALF}:{S_HALF+1}]")
            a(f"    v_cndmask_b32 v{X+1}, v{ST0+1}, v{ST1+1}, s[{S_HALF}:{S_HALF+1}]")
        if ks == 2:
            a(f"    v_cndmask_b32 v{X+2}, v{ST0+2}, v{ST1+2}, s[{S_HALF}:{S_HALF+1}]")
            a(f"    v_cndmask_b32 v{X+3}, v{ST0+3}, v{ST1+3}, s[{S_HALF}:{S_HALF+1}]")
        if ks == 3:
            a("    s_nop 0")
    M_, T_ = 64, 65
    a(f"    v_max3_f32 v{M_+16}, v{X}, v{X+1}, v{X+2}")
    a(f"""    s_cmp_eq_u32 s{S_STEP}, {opt.get('nsteps',64)-1}
    s_cbranch_scc1 L_done_{name}""")
    a(f"    v_max_f32 v{M_+16}, v{M_+16}, v{X+3}")
    z2(WACC); z2(WACC+2); z2(WACC+4)
    ts('S')
    M_ = 80; T_ = 81
    a(f"    v_max3_f32 v{T_}, v{ST2}, v{ST2+1}, v{ST2+2}")
    a(f"    v_max3_f32 v{M_}, v{M_}, v{T_}, v{ST2+3}")
    z2(WACC+6); z2(WACC+8)
    a(f"    v_max_f32_dpp v{M_}, v{M_}, v{M_} quad_perm:[1,0,3,2] row_mask:0xf bank_mask:0xf")
    a(f"    v_mov_b32 v{T_}, v{M_}")
    z2(WACC+10); z2(WACC+12)
    a(f"    v_permlane16_swap_b32 v{M_}, v{T_}")
    a(f"    v_max_f32 v{M_}, v{M_}, v{T_}")
    a(f"    v_mov_b32 v{T_}, v{M_}")
    z2(WACC+14)
    a("    s_nop 0")
    a(f"    v_permlane32_swap_b32 v{M_}, v{T_}")
    a(f"    v_max_f32 v{M_}, v{M_}, v{T_}")
    a(f"    v_mul_f32 v{M_}, s{S_C}, v{M_}")
    E = 64
    srcs = [X, X+1, ST2, ST2+1, X+2, X+3, ST2+2, ST2+3]
    for i, s_ in enumerate(srcs):
        a(f"    v_fma_f32 v{E+i}, v{s_}, s{S_C}, -v{M_}")
    for i in range(8):
        a(f"    v_exp_f32 v{E+i}, v{E+i}")
    P = ST0
    for d in range(4): a(f"    v_cvt_pk_bf16_f32 v{P+d}, v{E+2*d}, v{E+2*d+1}")
    ts('smax')
    ts('prePV')
    L.need('LB')
    nyoung = ((0 if opt.get('nofch') else 1) + (0 if opt.get('nofl') else 1) if flags else 0) + 1 + 2 + 2 + 2
    a(f"    s_waitcnt vmcnt({nyoung})")
    ts('vxok')
    a("    s_nop 0")
    a(f"    v_mfma_f32_16x16x32_bf16 {vr(LL,4)}, {vr(P,4)}, {vr(LBR,4)}, 0")
    a(f"    v_smfmac_f32_16x16x64_bf16 {vr(OX,4)}, {vr(P,4)}, {vr(V_VBX,8)}, v{V_IDX}")
    a(f"    v_smfmac_f32_16x16x64_bf16 {vr(OY,4)}, {vr(P,4)}, {vr(V_VBY,8)}, v{V_IDX}")
    ts('PV')
    a("    s_nop 0")
    a(f"    v_add_f32 v{LL}, v{LL}, v{LL+1}")
    a(f"    v_add_f32 v{LL+2}, v{LL+2}, v{LL+3}")
    a(f"    v_rcp_f32 v{LL}, v{LL}")
    a(f"    v_rcp_f32 v{LL+2}, v{LL+2}")
    a("    s_nop 0")
    a(f"    v_add_f32 v{OX}, v{OX}, v{OX+1}")
    a(f"    v_add_f32 v{OX+2}, v{OX+2}, v{OX+3}")
    a(f"    v_add_f32 v{OY}, v{OY}, v{OY+1}")
    a(f"    v_add_f32 v{OY+2}, v{OY+2}, v{OY+3}")
    a(f"    v_mul_f32 v{OX}, v{OX}, v{LL}")
    a(f"    v_mul_f32 v{OY}, v{OY}, v{LL}")
    a(f"    v_mul_f32 v{OX+2}, v{OX+2}, v{LL+2}")
    a(f"    v_mul_f32 v{OY+2}, v{OY+2}, v{LL+2}")
    a(f"    v_cvt_pk_bf16_f32 v{OX}, v{OX}, v{OY}")
    a(f"    v_cvt_pk_bf16_f32 v{OX+2}, v{OX+2}, v{OY+2}")
    ts('opost')
    a.ds(f"ds_write_b32 v{V_QW}, v{OX} offset:{L_O}")
    a.ds(f"ds_write_b32 v{V_QW}, v{OX+2} offset:{L_O+272}", 'ow')
    L.need('ow')
    a("    s_barrier")
    ts('B3')
    OA = 64
    for kp in range(4):
        a.ds(f"ds_read_b128 {vr(OA+4*kp,4)}, v{V_QR} offset:{L_O + kp*64}", ('O', kp))
    SELR = R_A; RD = R_A + 4; G1 = R_A + 8
    a.ds(f"ds_read_b128 {vr(SELR,4)}, v{V_L16} offset:{L_SEL}", 'SEL')
    def pshot():
        a(f"    buffer_load_dwordx4 {vr(G1,4)}, v{V_P1R}, {ws}, s{S_P1W} offen sc1")
        a(f"    buffer_load_dwordx4 {vr(G1+4,4)}, v{V_P1R}, {ws}, s{S_P1W} offen offset:1024 sc1")
    def cvA(m): x = WACC + 4*m; a(f"    v_cvt_pk_bf16_f32 v{x}, v{x}, v{x+1}")
    def cvB(m): x = WACC + 4*m; a(f"    v_cvt_pk_bf16_f32 v{x+2}, v{x+2}, v{x+3}")
    def stA(m): a(f"    buffer_store_dword v{WACC+4*m}, v{V_P1S}, {ws}, s{S_P1W if m < 2 else S_P1W2} offen offset:{(m & 1)*2048}")
    def stB(m): a(f"    buffer_store_dword v{WACC+4*m+2}, v{V_P1S}, {ws}, s{S_P1W3 if m < 2 else S_P1W4} offen offset:{(m & 1)*2048}")
    for m_ in range(4):
        for kp in range(4):
            L.need(('O', kp))
            a(f"    v_smfmac_f32_16x16x64_bf16 {vr(WACC+4*m_,4)}, {vr(OA+4*kp,4)}, {wo(m_,kp)}, v{V_IDX}")
            if kp == 0: ts(f'w{m_}')
            if m_ == 0 and kp == 1: a(f"    s_mov_b32 m0, s{S_KM0}")
            if m_ >= 1 and kp == 1: cvA(m_ - 1)
            if m_ >= 1 and kp == 2: cvB(m_ - 1)
            if m_ >= 1 and kp == 3: stA(m_ - 1)
            if m_ >= 2 and kp == 0: stB(m_ - 2)
    stB(2)
    a("    s_nop 5")
    cvA(3); cvB(3); stA(3); stB(3)
    ts('Wo')
    if opt.get('ackdiag'):
        a("    s_waitcnt vmcnt(14)")
        ts('km')
        a("    s_waitcnt vmcnt(13)")
        ts('fch')
        a("    s_waitcnt vmcnt(12)")
        ts('pf')
        a("    s_waitcnt vmcnt(11)")
        ts('flag')
        a("    s_waitcnt vmcnt(8)")
        ts('old')
        a("    s_waitcnt vmcnt(0)")
        ts('ack')
    L.need('SEL')
    dw = opt.get('dw', (0, 40, 100, 180))
    a(f"""    s_cmp_eq_u32 s{S_WV}, 3
    s_cbranch_scc1 L_{name}_t3
    s_cmp_eq_u32 s{S_WV}, 2
    s_cbranch_scc1 L_{name}_t2
    s_cmp_eq_u32 s{S_WV}, 1
    s_cbranch_scc1 L_{name}_t1""")
    for w_ in range(4):
        if w_ > 0: a(f"L_{name}_t{w_}:")
        delay(a, dw[w_])
        if w_ < 3: a(f"    s_branch L_{name}_td")
    a(f"L_{name}_td:")
    pshot()
    if opt.get('spec1'):
        delay(a, opt['spec1'])
        pshot()
        a(f"""    s_waitcnt vmcnt(2)
    v_max_u32 v{R_A+24}, v{G1}, v{G1+4}
    v_cmp_eq_u32 vcc, -1, v{R_A+24}
    s_and_b64 vcc, vcc, s[{S_Q0}:{S_Q0+1}]
    s_cbranch_vccz L_{name}_p1_ok
    s_waitcnt vmcnt(0)""")
    else:
        a("    s_waitcnt vmcnt(0)")
    check_loop(name + "_p1", G1, R_A + 24, pshot, cnt1, qmask=True)
    ts('p1ok')
    a(f"    v_mfma_f32_16x16x32_bf16 {vr(RD,4)}, {vr(SELR,4)}, {vr(G1,4)}, 0")
    a(f"    v_mfma_f32_16x16x32_bf16 {vr(RD,4)}, {vr(SELR,4)}, {vr(G1+4,4)}, {vr(RD,4)}")
    a("    s_nop 7")
    a(f"    v_add_f32_dpp v{RD}, v{RD}, v{RD} row_ror:8 row_mask:0xf bank_mask:0xf")
    a(f"    v_add_f32_dpp v{RD+1}, v{RD+1}, v{RD+1} row_ror:8 row_mask:0xf bank_mask:0xf")
    a("    s_nop 0")
    a(f"    v_add_f32_dpp v{RD}, v{RD}, v{RD} row_ror:4 row_mask:0xf bank_mask:0xf")
    a(f"    v_add_f32_dpp v{RD+1}, v{RD+1}, v{RD+1} row_ror:4 row_mask:0xf bank_mask:0xf")
    a(f"    v_cvt_pk_bf16_f32 v{RD}, v{RD}, v{RD+1}")
    a(f"    s_mov_b64 exec, s[{S_MEX}:{S_MEX+1}]")
    a(f"    buffer_store_dword v{RD}, v{V_MS}, {ws}, s{S_MW} offen")
    a(f"    s_mov_b64 exec, -1")
    ts('Mst')
    a(f"    buffer_load_dwordx4 v{V_L16}, {ws}, s{S_KN} offen sc1 lds")
    a(f"    buffer_load_dwordx4 v{V_L16}, {ws}, s{S_KN} offen offset:1024 sc1 lds")
    a(f"    s_add_u32 s{S_KN}, s{S_KN}, {32*8192}")
    if opt.get('ackdiag2'):
        a("    s_waitcnt vmcnt(2)")
        ts('mack')
        a("    s_waitcnt vmcnt(0)")
        ts('dma')
    def fillers():
        L.reset()
        for i in range(NWB):
            wq_read(i, 0); wq_read(i, 1)
        a(f"""    s_mov_b32 s{S_T0}, s{S_P1W}
    s_mov_b32 s{S_P1W}, s{S_P1X}
    s_mov_b32 s{S_P1X}, s{S_T0}
    s_add_u32 s{S_P1W2}, s{S_P1W}, 4096
    s_add_u32 s{S_P1W3}, s{S_P1W}, {P1C}
    s_add_u32 s{S_P1W4}, s{S_P1W}, {P1C + 4096}
    s_add_u32 s{S_MX}, s{S_MX}, 8192
    s_and_b32 s{S_MX}, s{S_MX}, {hex(WS_M | 0x7fff)}
    s_add_u32 s{S_KMP}, s{S_KMP}, 65536
    s_add_u32 s{S_VMP}, s{S_VMP}, 65536
    s_add_u32 s{S_VN}, s{S_VN}, {32*8192}
    s_add_u32 s{S_T0}, s{S_PF}, {32*8192}
    s_cmp_lt_u32 s{S_STEP}, 61
    s_cselect_b32 s{S_PF}, s{S_T0}, s{S_PF}
    s_mov_b32 s{S_FCV}, s{S_STEP}
    s_add_u32 s{S_STEP}, s{S_STEP}, 1
    s_add_u32 s{S_MWN}, s{S_MW}, 8192
    s_and_b32 s{S_MWN}, s{S_MWN}, {hex(WS_M | 0x7fff)}""")
        if flags:
            a(f"""    s_add_u32 s{S_T1}, s{S_STEP}, 3
    s_min_u32 s{S_T1}, s{S_T1}, 63
    s_lshr_b32 s{S_FLTN}, s{S_T1}, 2
    s_add_u32 s{S_FLTN}, s{S_FLTN}, 1
    s_and_b32 s{S_T1}, s{S_T1}, 3
    s_lshl_b32 s{S_T1}, s{S_T1}, 5
    s_add_u32 s{S_T1}, s{S_T1}, s{S_H}
    s_lshl_b32 s{S_T1}, s{S_T1}, 2
    s_add_u32 s{S_FLNN}, s{S_T1}, {F_KV}""")
        for i in range(12): z2(ACC + 2*i)
    d2e, d2l = opt.get('d2', (0, 0))
    if EARLY: a(f"    s_cmp_ge_u32 s{S_WV}, 2\n    s_cbranch_scc1 L_{name}_late")
    delay(a, d2e)
    mshot()
    fillers()
    if opt.get('spec2'):
        mshot()
        a(f"""    s_waitcnt vmcnt(2)
    v_max_u32 v{R_A+24}, v{G2}, v{G2+4}
    v_cmp_eq_u32 vcc, -1, v{R_A+24}
    s_cbranch_vccz L_{name}_m2e_ok
    s_waitcnt vmcnt(0)""")
    else:
        a("    s_waitcnt vmcnt(0)")
    check_loop(name + "_m2e", G2, R_A + 24, mshot, cnt2)
    ts('p2ok')
    a(f"    ds_write_b128 v{V_MP}, {vr(G2,4)} offset:{L_M}")
    a(f"    ds_write_b128 v{V_MP}, {vr(G2+4,4)} offset:{L_M+4096}")
    a(f"    s_branch L_step_{name}")
    if EARLY:
        a(f"L_{name}_late:")
        delay(a, d2l)
        mshot()
        fillers()
        mshot()
        a(f"    s_branch L_step_{name}")
    for t in tails: t()
    a(f"L_abort_{name}:\n    s_mov_b64 exec, -1\n    s_endpgm")
    a(f"L_done_{name}:")
    a(f"""    ds_read_b32 v60, v{V_QW} offset:{L_K}
    ds_read_b32 v61, v{V_QW} offset:{L_K+272}
    v_lshrrev_b32 v62, 2, v{V_L16}
    s_add_u32 s{S_KMP}, s{S_KMP}, 65536
    s_add_u32 s{S_VMP}, s{S_VMP}, 65536
    buffer_store_dword v{V_VBX+2}, v62, {ws}, s{S_VMP} offen sc1
    buffer_store_dword v{V_VBY+2}, v62, {ws}, s{S_VMP} offen offset:256 sc1
    s_waitcnt lgkmcnt(0)
    buffer_store_dword v60, v{V_KM}, {ws}, s{S_KMP} offen sc1
    buffer_store_dword v61, v{V_KM}, {ws}, s{S_KMP} offen offset:64 sc1""")
    if flags:
        a(f"""    s_waitcnt vmcnt(0)
    s_barrier
    s_cmp_lg_u32 s{S_WV}, 0
    s_cbranch_scc1 L_nopub2_{name}
    v_mov_b32 v62, 64
    s_mov_b64 exec, 1
    buffer_store_dword v62, off, {ws}, s{S_FCH} sc1
    s_mov_b64 exec, -1
L_nopub2_{name}:""")
```

```python
import sys
from asmlib import *
import chain as C
import bulk as B
from chain import *
from chain2 import chain_loop2
from bulk import B_WS, B_WV, B_T0, B_T1, B_T2, B_T3, B_SET, B_INST, B_RET, B_FLG, proj_role, scan_role, y_role, attn_role, oproj_role, wait_flag

NAME = "concat_heads__memory_aug_recurrent_mem_tr__ssm_conv_s5__prompt_kernel"
HEADER = open('concat_heads__memory_aug_recurrent_mem_tr__ssm_conv_s5__prompt.s.ref').read().split("; Override launch geometry")[0]

def gen(opt):
    name = NAME
    DIAG = opt.get('diag')
    def stamp(a, idx, treg0, vt):
        if not DIAG: return
        a(f"""    s_memrealtime s[{treg0}:{treg0+1}]
    s_waitcnt lgkmcnt(0)
    v_mov_b32 v{vt or 250}, s{treg0}
    s_mov_b64 exec, 1
    buffer_store_dword v{vt or 250}, off, s[8:11], s99 offset:{idx*4}
    s_mov_b64 exec, -1""")
    n = "m"
    a = Asm()
    ws = f"s[{S_WS}:{S_WS+3}]"
    a(f""".globl {name}
.p2align 8
.type {name},@function
{name}:
    s_cmp_ge_u32 s2, 256
    s_cbranch_scc1 L_exit
    s_load_dwordx2 s[4:5], s[0:1], 136      ; debug
    s_load_dwordx2 s[{S_WS}:{S_WS+1}], s[0:1], 144      ; ws
    s_getreg_b32 s3, hwreg(HW_REG_XCC_ID, 0, 4)
    s_mov_b32 s{S_WS+2}, {WS_SIZE}
    s_mov_b32 s{S_WS+3}, 0x20000
    s_waitcnt lgkmcnt(0)
    s_and_b32 s6, s3, 1
    s_lshl_b32 s6, s6, 6
    s_lshl_b32 s7, s3, 2
    s_add_u32 s6, s6, s7
    s_cmp_eq_u32 s3, 0
    s_cselect_b32 s6, 128, s6
    v_mov_b32 v1, s6
    v_mov_b32 v2, 1
    v_cmp_eq_u32 vcc, 0, v0
    s_and_saveexec_b64 s[6:7], vcc
    global_atomic_add v3, v1, v2, s[4:5] sc0
    s_waitcnt vmcnt(0)
    v_mov_b32 v4, {L_MISC}
    ds_write_b32 v4, v3
    s_waitcnt lgkmcnt(0)
    s_mov_b64 exec, s[6:7]
    s_cmp_lg_u32 s2, 0
    s_cbranch_scc1 L_noz
    v_mov_b32 v8, 0
    v_mov_b32 v9, 0
    v_mov_b32 v10, 0
    v_mov_b32 v11, 0
    v_lshlrev_b32 v5, 4, v0
    s_mov_b32 s6, {WS_FLAG}
    buffer_store_dwordx4 v[8:11], v5, {ws}, s6 offen sc1
    s_add_u32 s6, s6, 4096
    buffer_store_dwordx4 v[8:11], v5, {ws}, s6 offen sc1
    s_add_u32 s6, s6, 4096
    buffer_store_dwordx4 v[8:11], v5, {ws}, s6 offen sc1
    s_add_u32 s6, s6, 4096
    buffer_store_dwordx4 v[8:11], v5, {ws}, s6 offen sc1
    s_waitcnt vmcnt(0)
    s_barrier
    v_mov_b32 v5, 196
    v_mov_b32 v6, 1
    v_cmp_eq_u32 vcc, 0, v0
    s_and_saveexec_b64 s[12:13], vcc
    global_atomic_add v5, v6, s[4:5]
    s_mov_b64 exec, s[12:13]
L_noz:
    s_barrier
    v_mov_b32 v4, {L_MISC}
    ds_read_b32 v3, v4
    s_waitcnt lgkmcnt(0)
    v_readfirstlane_b32 s{S_H}, v3
    v_readfirstlane_b32 s{S_WV}, v0
    s_lshr_b32 s{S_WV}, s{S_WV}, 6
    s_cmp_ge_u32 s{S_H}, 32
    s_cbranch_scc1 L_exit
""")
    if DIAG:
        a(f"""    s_lshl_b32 s99, s3, 5
    s_add_u32 s99, s99, s{S_H}
    s_lshl_b32 s99, s99, 2
    s_add_u32 s99, s99, s{S_WV}
    s_lshl_b32 s99, s99, 5
    s_add_u32 s99, s99, {WS_FLAG + 0x8000}""")
    stamp(a, 0, 96, 0)
    a("""    s_cmp_lg_u32 s3, 0
    s_cbranch_scc1 L_bulk
""")
    if opt.get('nochain'): a("    s_endpgm")
    chain_setup(a, n)
    def after_first():
        chain_init_comm(a, n)
        chain_mem0_issue(a, n)
    def at_iter8():
        chain_mem0_finish(a, n)
        a(f"""    v_mov_b32 v40, 192
    v_mov_b32 v41, 1
    v_cmp_eq_u32 vcc, 0, v0
    s_and_saveexec_b64 s[6:7], vcc
    global_atomic_add v40, v41, s[4:5]
    s_mov_b64 exec, s[6:7]
    v_mov_b32 v52, 196
    global_load_dword v53, v52, s[4:5] sc1""")
    def at_iter27():
        a(f"""    v_readfirstlane_b32 s{S_FLT}, v53
    v_mov_b32 v40, 192
    global_load_dwordx2 v[42:43], v40, s[4:5] sc1
    s_lshl_b32 s{S_FLN}, s{S_H}, 2
    s_add_u32 s{S_T1}, s{S_FLN}, {F_KV}
    buffer_load_dword v44, off, {ws}, s{S_T1} sc1
    s_add_u32 s{S_T1}, s{S_FLN}, {F_KV + 128}
    buffer_load_dword v45, off, {ws}, s{S_T1} sc1
    s_add_u32 s{S_FLN}, s{S_FLN}, {F_KV + 2*128}
    buffer_load_dword v51, off, {ws}, s{S_FLN} sc1""")
    chain_load_weights(a, n, after_first, at_iter8, at_iter27)
    a(f"""    v_mov_b32 v40, 200
    v_mov_b32 v41, 1
    v_cmp_eq_u32 vcc, 0, v0
    s_and_saveexec_b64 s[6:7], vcc
    global_atomic_add v40, v41, s[4:5]
    s_mov_b64 exec, s[6:7]""")
    stamp(a, 1, 96, 40)
    a(f"""    v_readfirstlane_b32 s{S_T0}, v42
    v_readfirstlane_b32 s{S_T1}, v43
    v_readfirstlane_b32 s{S_T2}, v44
    s_cmp_ge_u32 s{S_T0}, 32
    s_cselect_b32 s{S_T0}, s{S_FLT}, 0
    s_min_u32 s{S_T0}, s{S_T0}, s{S_T2}
    v_readfirstlane_b32 s{S_T2}, v45
    s_min_u32 s{S_T0}, s{S_T0}, s{S_T2}
    v_mov_b32 v0, v51
    s_mov_b32 s{S_FLT}, 1
    s_cmp_ge_u32 s{S_T0}, 1
    s_cbranch_scc1 L_fast0
    v_mov_b32 v40, 192
L_initw:
    global_load_dwordx2 v[42:43], v40, s[4:5] sc1
    s_waitcnt vmcnt(0)
    v_readfirstlane_b32 s{S_T0}, v42
    v_readfirstlane_b32 s{S_T1}, v43
    s_cmp_ge_u32 s{S_T0}, 32
    s_cselect_b32 s{S_T0}, 1, 0
    s_and_b32 s{S_T0}, s{S_T0}, s{S_T1}
    s_cmp_lg_u32 s{S_T0}, 0
    s_cbranch_scc1 L_initd
    s_add_u32 s{S_RETRY}, s{S_RETRY}, 1
    s_cmp_lt_u32 s{S_RETRY}, 1000000
    s_cbranch_scc1 L_initw
    s_endpgm
L_initd:
""")
    for sg in range(2):
        a(f"""    s_lshl_b32 s{S_T1}, s{S_H}, 2
    s_add_u32 s{S_T1}, s{S_T1}, {F_KV + sg*128}
L_kv0_{sg}:
    buffer_load_dword v42, off, {ws}, s{S_T1} sc1
    s_waitcnt vmcnt(0)
    v_readfirstlane_b32 s{S_T0}, v42
    s_cmp_ge_u32 s{S_T0}, 1
    s_cbranch_scc1 L_kv0d_{sg}
    s_sleep 2
    s_add_u32 s{S_RETRY}, s{S_RETRY}, 1
    s_cmp_lt_u32 s{S_RETRY}, 1000000
    s_cbranch_scc1 L_kv0_{sg}
    s_endpgm
L_kv0d_{sg}:""")
    a(f"""    buffer_load_dword v0, off, {ws}, s{S_FLN} sc1
L_fast0:
    s_lshl_b32 s{S_T1}, s{S_H}, 13
    s_lshl_b32 s{S_T0}, s{S_WV}, 11
    s_add_u32 s{S_T1}, s{S_T1}, s{S_T0}
    s_add_u32 s{S_T1}, s{S_T1}, {WS_KF}
    s_mov_b32 m0, s{S_KM0}
    s_nop 0
    buffer_load_dwordx4 v{V_L16}, {ws}, s{S_T1} offen sc1 lds
    buffer_load_dwordx4 v{V_L16}, {ws}, s{S_T1} offen offset:1024 sc1 lds
    s_waitcnt vmcnt(0)
""")
    copt = dict(opt.get('chain', {})); copt['flags'] = 0 if opt.get('noflags') else 1
    if DIAG and opt.get('steplog'): copt['steplog'] = 1
    stamp(a, 2, 96, 40)
    if DIAG:
        copt['cnt'] = 1
        if opt.get('winlog'): copt['winlog'] = 1; copt['cnt'] = 0
        a("    s_mov_b32 s91, 0\n    s_mov_b32 s92, 0")
        if opt.get('pts'):
            copt['stamp'] = 1; copt['pts'] = opt['pts']
            for i in range(1, 12): a(f"    s_mov_b32 s{79+i}, 0")
    chain_loop2(a, n, copt)
    stamp(a, 3, 96, 40)
    if DIAG:
        a(f"""    v_mov_b32 v40, s91
    v_mov_b32 v41, s92
    s_mov_b64 exec, 1
    buffer_store_dwordx2 v[40:41], off, s[8:11], s99 offset:16
    s_mov_b64 exec, -1""")
        if opt.get('winlog'):
            a("    s_memtime s[92:93]\n    s_waitcnt lgkmcnt(0)")
            for k in range(8): a(f"    v_mov_b32 v{40+k}, s{76+2*k}")
            a("    v_mov_b32 v48, s92")
            a(f"""    s_lshl_b32 s98, s{S_H}, 2
    s_add_u32 s98, s98, s{S_WV}
    s_lshl_b32 s98, s98, 6
    s_add_u32 s98, s98, {WS_FLAG + 0x30000}
    s_mov_b64 exec, 1
    buffer_store_dwordx4 v[40:43], off, s[8:11], s98
    buffer_store_dwordx4 v[44:47], off, s[8:11], s98 offset:16
    buffer_store_dwordx4 v[48:51], off, s[8:11], s98 offset:32
    s_mov_b64 exec, -1""")
        if opt.get('pts'):
            a(f"""    s_lshl_b32 s98, s{S_H}, 2
    s_add_u32 s98, s98, s{S_WV}
    s_lshl_b32 s98, s98, 6
    s_add_u32 s98, s98, {WS_FLAG + 0x30000}""")
            for i in range(12): a(f"    v_mov_b32 v{40+i}, s{80+i}")
            a(f"""    s_mov_b64 exec, 1
    buffer_store_dwordx4 v[40:43], off, s[8:11], s98
    buffer_store_dwordx4 v[44:47], off, s[8:11], s98 offset:16
    buffer_store_dwordx4 v[48:51], off, s[8:11], s98 offset:32
    s_mov_b64 exec, -1""")
    a("    s_waitcnt vmcnt(0)\n    s_endpgm")
    a("L_bulk:")
    if opt.get('nobulk'): a("    s_endpgm")
    a(f"""    s_sub_u32 s{B_T0}, s3, 1
    s_lshl_b32 s{B_T0}, s{B_T0}, 5
    s_add_u32 s60, s{B_T0}, s{S_H}              ; b
    s_mov_b32 s{B_WV}, s{S_WV}
    s_mov_b32 s{B_RET}, 0
    s_cmp_ge_u32 s60, 224
    s_cbranch_scc1 L_exit
""")
    if not opt.get('nowarm'):
        a(f"""    s_lshl_b32 s64, s60, 2
    s_add_u32 s64, s64, s{B_WV}
    v_and_b32 v44, 63, v0
    v_lshlrev_b32 v44, 6, v44                   ; lane*64""")
        for i, (mi, poff) in enumerate(((0, 24), (1, 32), (2, 40), (3, 16))):
            a(f"""    s_load_dwordx2 s[12:13], s[0:1], {poff}
    s_mov_b32 s14, 0x400000
    s_mov_b32 s15, 0x20000
    s_lshl_b32 s65, s64, 12
    s_waitcnt lgkmcnt(0)
    buffer_load_dword v45, v44, s[12:15], s65 offen
    s_add_u32 s65, s65, {896*4096}
    buffer_load_dword v45, v44, s[12:15], s65 offen""")
    a(f"""    ; wait flag init (debug[9])
    v_mov_b32 v40, 196
L_bfw:
    global_load_dword v42, v40, s[4:5] sc1
    s_waitcnt vmcnt(0)
    v_readfirstlane_b32 s{B_T0}, v42
    s_cmp_ge_u32 s{B_T0}, 1
    s_cbranch_scc1 L_bfd
    s_add_u32 s{B_RET}, s{B_RET}, 1
    s_cmp_lt_u32 s{B_RET}, 1000000
    s_cbranch_scc1 L_bfw
    s_endpgm
""")
    CW = 32 if opt.get('delay') else 0
    DQ = opt.get('dq', 0)
    a(f"""L_bfd:
    s_and_b32 s{B_SET}, s60, 3
    s_cmp_lt_u32 s60, 128
    s_cbranch_scc1 L_p_kv
    v_mov_b32 v40, 200
L_cww:
    global_load_dword v42, v40, s[4:5] sc1
    s_waitcnt vmcnt(0)
    v_readfirstlane_b32 s{B_T0}, v42
    s_cmp_ge_u32 s{B_T0}, {CW}
    s_cbranch_scc1 L_cwd
    s_sleep 8
    s_add_u32 s{B_RET}, s{B_RET}, 1
    s_cmp_lt_u32 s{B_RET}, 1000000
    s_cbranch_scc1 L_cww
    s_endpgm
L_cwd:
    s_cmp_ge_u32 s60, 208
    s_cbranch_scc1 L_spare
    v_mov_b32 v40, 204
L_dqw:
    global_load_dword v42, v40, s[4:5] sc1
    s_waitcnt vmcnt(0)
    v_readfirstlane_b32 s{B_T0}, v42
    s_cmp_ge_u32 s{B_T0}, {DQ}
    s_cbranch_scc1 L_dqd
    s_sleep 16
    s_add_u32 s{B_RET}, s{B_RET}, 1
    s_cmp_lt_u32 s{B_RET}, 1000000
    s_cbranch_scc1 L_dqw
    s_endpgm
L_dqd:
    s_cmp_ge_u32 s60, 208
    s_cbranch_scc1 L_spare
    s_cmp_lt_u32 s60, 192
    s_cbranch_scc1 L_p_q
    s_sub_u32 s{B_INST}, s60, 192
    s_lshr_b32 s{B_INST}, s{B_INST}, 2
""")
    if opt.get('nossm'): a("    s_endpgm")
    proj_role(a, "pu", 'U')
    a(f"    s_branch L_phase2\nL_p_q:\n    s_sub_u32 s{B_INST}, s60, 128\n    s_lshr_b32 s{B_INST}, s{B_INST}, 2")
    if opt.get('noq'): a("    s_endpgm")
    proj_role(a, "pq", 'Q')
    a(f"    s_branch L_phase2\nL_p_kv:\n    s_lshr_b32 s{B_INST}, s60, 2")
    proj_role(a, "pk", 'KV')
    a(f"""    v_mov_b32 v40, 204
    v_mov_b32 v41, 1
    v_cmp_eq_u32 vcc, 0, v0
    s_and_saveexec_b64 s[6:7], vcc
    global_atomic_add v40, v41, s[4:5]
    s_mov_b64 exec, s[6:7]""")
    a("L_phase2:")
    stamp(a, 1, 96, 0)
    if opt.get('nophase2'): a("    s_endpgm")
    a(f"""    s_barrier
    s_cmp_ge_u32 s60, 176
    s_cbranch_scc1 L_scan
    s_cmp_lt_u32 s60, 112
    s_cbranch_scc1 L_t4a
    s_sub_u32 s{B_T0}, s60, 112                 ; 0..63
    s_lshl_b32 s{B_T0}, s{B_T0}, 2
    s_add_u32 s{B_T0}, s{B_T0}, s{B_WV}
    s_and_b32 s{B_INST}, s{B_T0}, 63
    s_lshr_b32 s{B_SET}, s{B_T0}, 6
""")
    if opt.get('not3'): a("    s_endpgm")
    attn_role(a, "t3", 4)
    stamp(a, 3, 96, 0)
    a("    s_waitcnt vmcnt(0)")
    a(f"""    s_endpgm
L_t4a:
    s_lshr_b32 s{B_SET}, s60, 4                 ; 0..6
    s_and_b32 s{B_INST}, s60, 15
    s_branch L_t4
L_spare:""")
    if opt.get('nophase2'): a("    s_endpgm")
    a(f"""    s_mov_b32 s{B_SET}, 7
    s_sub_u32 s{B_INST}, s60, 208
L_t4:
""")
    if opt.get('not3'): a("    s_endpgm")
    oproj_role(a, "t4", 8)
    stamp(a, 3, 96, 0)
    a("    s_waitcnt vmcnt(0)")
    a(f"""    s_endpgm
L_scan:
    s_sub_u32 s63, s60, 176                     ; task 0..31
    s_mov_b32 s{B_INST}, s63
""")
    if opt.get('nossm'): a("    s_endpgm")
    scan_role(a, "sc")
    stamp(a, 2, 96, 0)
    a(f"""    s_barrier
    s_lshr_b32 s{B_SET}, s63, 2
    s_and_b32 s{B_INST}, s63, 3
""")
    y_role(a, "yy")
    stamp(a, 3, 96, 0)
    a("    s_waitcnt vmcnt(0)")
    a("L_exit:\n    s_endpgm")
    text = HEADER + "; @launch grid=(256,1,1) block=(256,1,1) lds=163840\n"
    text += '.amdgcn_target "amdgcn-amd-amdhsa--gfx950"\n.text\n' + a.text()
    text += '.section .rodata,"a"\n.p2align 6\n' + kdesc(name)
    return text

if __name__ == '__main__':
    opt = dict(chain=dict(v2=1, earlyhalf=0, dw=(32,80,128,176), d2=(140,0), spec1=100, spec2=120, nv0=0))
    for x in sys.argv[2:]:
        if '=' in x:
            k_, v_ = x.split('=', 1)
            if k_ == 'pts': opt['pts'] = v_.split(',')
            elif k_.startswith('c.'): opt['chain'][k_[2:]] = eval(v_)
            else: opt[k_] = eval(v_)
        else: opt[x] = 1
    t = gen(opt)
    out = sys.argv[1] if len(sys.argv) > 1 else 'concat_heads__memory_aug_recurrent_mem_tr__ssm_conv_s5__prompt.s'
    open(out, 'w').write(t)
    print("written", out, len(t), "bytes")
```

```python
from asmlib import *
from chain import WS_KF, WS_VF, WS_QF, WS_OF, WS_KM, WS_VM, WS_FLAG, WS_SIZE

WS_U   = 0x6000000
WS_H   = 0x6800000
F_KV   = WS_FLAG + 0x000
F_Q    = WS_FLAG + 0x200
F_CH   = WS_FLAG + 0x1000
F_O    = WS_FLAG + 0x2000
F_U    = WS_FLAG + 0x500
F_SC   = WS_FLAG + 0x580
FLAG_BYTES = 0x4000

B_WS = 8
B_X  = 12
B_W  = 16
B_O  = 20
B_WV = 24
B_T0, B_T1, B_T2, B_T3 = 25, 26, 27, 28
B_SET, B_INST = 29, 30
B_SEG = 31
B_OUT = 32
B_CNT = 33
B_FLG = 34
B_RET = 35
B_PUB = 36

XROW = 1040
XBUF = 32 * XROW

def srd(a, base, ptr_off, nbytes):
    a(f"""    s_load_dwordx2 s[{base}:{base+1}], s[0:1], {ptr_off}
    s_mov_b32 s{base+2}, {nbytes}
    s_mov_b32 s{base+3}, 0x20000
    s_waitcnt lgkmcnt(0)""")

def proj_role(a, name, kind, nsets=4, flags=True):
    ws = f"s[{B_WS}:{B_WS+3}]"
    L = a.lds
    a(f"""    v_and_b32 v1, 63, v0                ; lane
    v_and_b32 v2, 31, v1                ; c = lane&31
    v_lshrrev_b32 v3, 5, v1             ; hi
    v_lshlrev_b32 v4, 4, v1             ; lane*16""")
    if kind in ('KV', 'Q'):
        if kind == 'KV':
            a(f"""    s_cmp_lt_u32 s{B_WV}, 2
    s_cselect_b32 s{B_T0}, 24, 32
    s_load_dwordx2 s[{B_W}:{B_W+1}], s[0:1], s{B_T0}
    s_mov_b32 s{B_W+2}, 0x400000
    s_mov_b32 s{B_W+3}, 0x20000
    s_lshl_b32 s{B_T1}, s{B_INST}, 8
    s_waitcnt lgkmcnt(0)""")
        else:
            a(f"""    s_load_dwordx2 s[{B_W}:{B_W+1}], s[0:1], 16
    s_mov_b32 s{B_W+2}, 0x400000
    s_mov_b32 s{B_W+3}, 0x20000
    s_lshr_b32 s{B_T0}, s{B_WV}, 1
    s_lshl_b32 s{B_T1}, s{B_INST}, 1
    s_add_u32 s{B_T1}, s{B_T1}, s{B_T0}
    s_lshl_b32 s{B_T1}, s{B_T1}, 8
    s_waitcnt lgkmcnt(0)""")
        a(f"""    s_and_b32 s{B_T0}, s{B_WV}, 1
    s_lshl_b32 s{B_T0}, s{B_T0}, 7
    s_add_u32 s{B_T1}, s{B_T1}, s{B_T0}         ; + (w&1)*128 bytes
    v_lshrrev_b32 v5, 3, v1
    v_lshlrev_b32 v5, 13, v5
    v_and_b32 v6, 7, v1
    v_lshlrev_b32 v6, 4, v6
    v_add3_u32 v5, v5, v6, s{B_T1}              ; voffset
    v_and_b32 v6, 15, v1
    v_lshrrev_b32 v7, 2, v6                     ; r
    v_and_b32 v6, 3, v6                         ; c4
    v_lshrrev_b32 v8, 5, v1                     ; gam>>1
    v_lshlrev_b32 v8, 3, v8
    v_add_u32 v7, v7, v8
    v_lshlrev_b32 v7, 7, v7                     ; *128
    v_bfe_u32 v8, v1, 4, 1
    v_lshlrev_b32 v8, 5, v8                     ; colbase*2
    v_lshlrev_b32 v6, 3, v6
    v_add3_u32 v7, v7, v8, v6
    s_lshl_b32 s{B_T2}, s{B_WV}, 15
    v_add_u32 v7, s{B_T2}, v7""")
        def issue(ch):
            for i in range(16):
                a(f"""    s_add_u32 m0, s{B_T2}, {(ch & 1)*16384 + i*1024}
    s_mov_b32 s{B_T3}, {(ch*128 + i*8)*8192}
    buffer_load_dwordx4 v5, s[{B_W}:{B_W+3}], s{B_T3} offen lds""")
        issue(0); issue(1)
        for ch in range(4):
            a(f"    s_waitcnt vmcnt({16 if ch < 3 else 0})")
            for kq in range(8):
                kk = ch*8 + kq
                for ct in range(2):
                    for hf in range(2):
                        off = (ch & 1)*16384 + (kq*16 + hf*4)*128 + ct*64
                        a(f"    ds_read_b64_tr_b16 {ar((ct*32 + kk)*4 + 2*hf, 2)}, v7 offset:{off}")
                if kq % 2 == 1: a("    s_waitcnt lgkmcnt(4)")
            a("    s_waitcnt lgkmcnt(0)")
            if ch + 2 < 4: issue(ch + 2)
    else:
        a(f"""    s_lshl_b32 s{B_T0}, s{B_INST}, 2
    s_add_u32 s{B_T0}, s{B_T0}, s{B_WV}
    s_lshl_b32 s{B_T0}, s{B_T0}, 15             ; *32 rows*1024B
    v_lshlrev_b32 v5, 10, v2                    ; c*1024
    v_lshlrev_b32 v6, 4, v3                     ; hi*16
    v_add3_u32 v5, v5, v6, s{B_T0}""")
        for ct in range(2):
            srd(a, B_W, 80 + 8*ct, 0x80000)
            for kk in range(32):
                a(f"    buffer_load_dwordx4 {ar((ct*32 + kk)*4, 4)}, v5, s[{B_W}:{B_W+3}], 0 offen offset:{kk*32}")
        a("    s_waitcnt vmcnt(0)")
    a("    s_barrier")
    srd(a, B_X, 0 if kind != 'U' else 56, 2048*1024)
    if kind == 'U':
        a(f"""    v_bfe_u32 v6, v2, 2, 1
    v_lshlrev_b32 v6, 4, v6                     ; 16*((m>>2)&1)
    v_lshrrev_b32 v7, 3, v2
    v_lshlrev_b32 v7, 2, v7                     ; 4*(m>>3)
    v_and_b32 v8, 3, v2
    v_add3_u32 v6, v6, v7, v8""")
    else:
        a("    v_mov_b32 v6, v2")
    a(f"""    v_mul_u32_u24 v6, {XROW}, v6
    v_lshlrev_b32 v7, 4, v3
    v_add_u32 v6, v6, v7""")
    if kind in ('KV', 'Q'):
        a(f"""    v_lshrrev_b32 v8, 4, v2
    v_and_b32 v9, 15, v2
    v_lshlrev_b32 v9, 4, v9
    v_lshlrev_b32 v10, 8, v3
    v_add_u32 v9, v9, v10
    v_lshlrev_b32 v10, 12, v8
    v_add_u32 v10, v10, v9                      ; K-type
    v_lshlrev_b32 v11, 10, v8
    v_add_u32 v11, v11, v9                      ; V-type""")
        if kind == 'KV':
            a(f"""    s_cmp_lt_u32 s{B_WV}, 2
    s_cselect_b64 vcc, -1, 0
    s_nop 1
    v_cndmask_b32 v8, v11, v10, vcc
    s_and_b32 s{B_T0}, s{B_WV}, 1
    s_cmp_lt_u32 s{B_WV}, 2
    s_cselect_b32 s{B_T1}, 11, 12
    s_lshl_b32 s{B_T0}, s{B_T0}, s{B_T1}
    s_cmp_lt_u32 s{B_WV}, 2
    s_cselect_b32 s{B_T1}, 0, {WS_VF - WS_KF}
    s_add_u32 s{B_T1}, s{B_T1}, {WS_KF}
    s_add_u32 s{B_OUT}, s{B_T0}, s{B_T1}
    s_lshl_b32 s{B_T0}, s{B_INST}, 13
    s_add_u32 s{B_OUT}, s{B_OUT}, s{B_T0}""")
        else:
            a(f"""    v_mov_b32 v8, v10
    s_and_b32 s{B_T0}, s{B_WV}, 1
    s_lshl_b32 s{B_T0}, s{B_T0}, 11
    s_lshr_b32 s{B_T1}, s{B_WV}, 1
    s_lshl_b32 s{B_T2}, s{B_INST}, 1
    s_add_u32 s{B_T1}, s{B_T1}, s{B_T2}
    s_lshl_b32 s{B_T1}, s{B_T1}, 13
    s_add_u32 s{B_OUT}, s{B_T0}, s{B_T1}
    s_add_u32 s{B_OUT}, s{B_OUT}, {WS_QF}""")
    else:
        a(f"""    v_lshlrev_b32 v8, 16, v3
    v_lshlrev_b32 v9, 3, v2
    v_add_u32 v8, v8, v9
    s_lshl_b32 s{B_T0}, s{B_INST}, 2
    s_add_u32 s{B_T0}, s{B_T0}, s{B_WV}
    s_lshl_b32 s{B_T0}, s{B_T0}, 8
    s_add_u32 s{B_OUT}, s{B_T0}, {WS_U}""")
    if kind == 'KV':
        a(f"""    s_lshl_b32 s{B_T0}, s{B_SET}, 5
    s_add_u32 s{B_T0}, s{B_T0}, s{B_INST}
    s_lshl_b32 s{B_T0}, s{B_T0}, 2
    s_add_u32 s{B_FLG}, s{B_T0}, {F_KV}""")
    elif kind == 'Q':
        a(f"""    s_lshl_b32 s{B_T0}, s{B_SET}, 4
    s_add_u32 s{B_T0}, s{B_T0}, s{B_INST}
    s_lshl_b32 s{B_T0}, s{B_T0}, 2
    s_add_u32 s{B_FLG}, s{B_T0}, {F_Q}""")
    else:
        a(f"    s_mov_b32 s{B_FLG}, {F_U}")
    lab_end = f"L_{name}_end"
    if kind == 'KV':
        a(f"    s_cmp_lt_u32 s{B_WV}, 2\n    s_cbranch_scc0 L_{name}_V")
        proj_stream(a, name + "_K", 'K', nsets, flags, 'KV')
        a(f"    s_branch {lab_end}")
        a(f"L_{name}_V:")
        proj_stream(a, name + "_Vs", 'V', nsets, flags, 'KV')
    elif kind == 'Q':
        proj_stream(a, name + "_Q", 'K', nsets, flags, 'Q')
    else:
        proj_stream(a, name + "_U", 'U', nsets, flags, 'U')
    a(f"{lab_end}:")

def publish_progress(a, nm, mode, reg=None):
    ws = f"s[{B_WS}:{B_WS+3}]"
    a(f"""    s_cmp_lg_u32 s{B_WV}, 0
    s_cbranch_scc1 L_{nm}_np
    s_mov_b64 exec, 1
    v_mov_b32 v120, 0""")
    if mode == 'store':
        a(f"""    v_mov_b32 v121, s{reg if reg is not None else B_CNT}
    buffer_store_dword v121, v120, {ws}, s{B_FLG} offen sc1""")
    else:
        a(f"""    v_mov_b32 v121, {2 if mode == 'add2' else 1}
    buffer_atomic_add v121, v120, {ws}, s{B_FLG} offen sc1""")
    a(f"""    s_mov_b64 exec, -1
L_{nm}_np:""")

def proj_stream(a, name, epi, nsets, flags, kind):
    ws = f"s[{B_WS}:{B_WS+3}]"
    L = a.lds
    def xissue(buf):
        a(f"""    s_lshl_b32 s{B_T0}, s{B_SEG}, 15
    s_lshl_b32 s{B_T1}, s{B_WV}, 13
    s_add_u32 s{B_T0}, s{B_T0}, s{B_T1}
    s_mul_i32 s{B_T1}, s{B_WV}, {8*XROW}
    s_add_u32 s{B_T1}, s{B_T1}, {buf*XBUF}""")
        for r in range(8):
            a(f"""    s_add_u32 m0, s{B_T1}, {r*XROW}
    s_add_u32 s{B_T2}, s{B_T0}, {r*1024}
    buffer_load_dwordx4 v4, s[{B_X}:{B_X+3}], s{B_T2} offen lds""")
    a(f"""    s_mov_b32 s{B_SEG}, s{B_SET}
    s_mov_b32 s{B_CNT}, 0""")
    xissue(0)
    ACC = 32
    XF = 64
    OUTR = 96
    NST = 16 if epi == 'U' else 4
    a(f"L_{name}_loop:")
    for buf in range(2):
        a(f"    s_cmp_eq_u32 s{B_CNT}, 0\n    s_cbranch_scc1 L_{name}_w0_{buf}")
        a(f"    s_waitcnt vmcnt({NST})\n    s_branch L_{name}_w1_{buf}")
        a(f"L_{name}_w0_{buf}:\n    s_waitcnt vmcnt(0)\nL_{name}_w1_{buf}:")
        a("    s_barrier")
        if flags:
            a(f"    s_cmp_lt_u32 s{B_CNT}, 2\n    s_cbranch_scc1 L_{name}_pp{buf}_np")
            a(f"    s_sub_u32 s{B_PUB}, s{B_CNT}, 1")
            publish_progress(a, f"{name}_pp{buf}", 'add' if kind == 'U' else 'store', B_PUB)
        a(f"    s_lshl_b32 s{B_T3}, s{B_SEG}, {17 if epi == 'U' else 18}")
        a(f"    s_add_u32 s{B_T3}, s{B_T3}, s{B_OUT}")
        a(f"    s_add_u32 s{B_SEG}, s{B_SEG}, {nsets}")
        a(f"    s_cmp_ge_u32 s{B_SEG}, 64\n    s_cbranch_scc1 L_{name}_nx{buf}")
        xissue(1 - buf)
        a(f"L_{name}_nx{buf}:")
        L.reset()
        NX = 8
        for kk in range(NX): a.ds(f"ds_read_b128 {vr(XF + 4*kk, 4)}, v6 offset:{buf*XBUF + kk*32}", ('x', kk))
        for kk in range(32):
            L.need(('x', kk))
            xf = vr(XF + 4*(kk % NX), 4)
            for ct in range(2):
                w_ = ar((ct*32 + kk)*4, 4)
                c_ = "0" if kk == 0 else vr(ACC + 16*ct, 16)
                if epi == 'K': a(f"    v_mfma_f32_32x32x16_bf16 {vr(ACC + 16*ct, 16)}, {w_}, {xf}, {c_}")
                else: a(f"    v_mfma_f32_32x32x16_bf16 {vr(ACC + 16*ct, 16)}, {xf}, {w_}, {c_}")
            if kk + NX < 32: a.ds(f"ds_read_b128 {xf}, v6 offset:{buf*XBUF + (kk+NX)*32}", ('x', kk+NX))
        a("    s_nop 15")
        if epi == 'K':
            for ct in range(2):
                A_ = ACC + 16*ct
                for i in range(2):
                    for r in range(4):
                        a(f"    v_cvt_pk_bf16_f32 v{OUTR + 4*(2*ct+i) + r}, v{A_ + 4*i + r}, v{A_ + 8 + 4*i + r}")
                    a(f"    buffer_store_dwordx4 {vr(OUTR + 4*(2*ct+i), 4)}, v8, {ws}, s{B_T3} offen offset:{ct*1024 + i*512} sc1")
        elif epi == 'V':
            for ct in range(2):
                A_ = ACC + 16*ct
                for ii in range(2):
                    o = OUTR + 4*(2*ct+ii)
                    a(f"    v_cvt_pk_bf16_f32 v{o}, v{A_ + 4*ii}, v{A_ + 4*ii + 1}")
                    a(f"    v_cvt_pk_bf16_f32 v{o+1}, v{A_ + 8 + 4*ii}, v{A_ + 8 + 4*ii + 1}")
                    a(f"    v_cvt_pk_bf16_f32 v{o+2}, v{A_ + 4*ii + 2}, v{A_ + 4*ii + 3}")
                    a(f"    v_cvt_pk_bf16_f32 v{o+3}, v{A_ + 8 + 4*ii + 2}, v{A_ + 8 + 4*ii + 3}")
                    a(f"    buffer_store_dwordx4 {vr(o, 4)}, v8, {ws}, s{B_T3} offen offset:{ct*2048 + ii*512} sc1")
        else:
            for rho in range(16):
                o = OUTR + 2*(rho % 8)
                a(f"    v_mov_b32 v{o}, v{ACC + rho}")
                a(f"    v_mov_b32 v{o+1}, v{ACC + 16 + rho}")
                if rho > 0 and rho % 1 == 0: pass
                a(f"    s_add_u32 s{B_T2}, s{B_T3}, {rho*4096}")
                a(f"    buffer_store_dwordx2 {vr(o, 2)}, v8, {ws}, s{B_T2} offen sc1")
        a(f"    s_add_u32 s{B_CNT}, s{B_CNT}, 1")
        a(f"    s_cmp_ge_u32 s{B_CNT}, {64 // nsets}")
        a(f"    s_cbranch_scc1 L_{name}_fin")
    a(f"    s_branch L_{name}_loop")
    a(f"L_{name}_fin:")
    a("    s_waitcnt vmcnt(0)")
    a("    s_barrier")
    if flags:
        if kind == 'U':
            publish_progress(a, f"{name}_ppf", 'add2')
        else:
            publish_progress(a, f"{name}_ppf", 'store')

def wait_flag(a, nm, soff_reg, target, vtmp=120, sleep=4, ge_reg=None, far=None, farsleep=48):
    ws = f"s[{B_WS}:{B_WS+3}]"
    cmp = f"s{ge_reg}" if ge_reg is not None else str(target)
    a(f"""    v_mov_b32 v{vtmp}, 0
L_{nm}_w:
    buffer_load_dword v{vtmp+1}, v{vtmp}, {ws}, s{soff_reg} offen sc1
    s_waitcnt vmcnt(0)
    v_readfirstlane_b32 s{B_T3}, v{vtmp+1}
    s_cmp_ge_u32 s{B_T3}, {cmp}
    s_cbranch_scc1 L_{nm}_d""")
    if far is not None:
        a(f"""    s_add_u32 s{B_T3}, s{B_T3}, {far}
    s_cmp_ge_u32 s{B_T3}, {cmp}
    s_cbranch_scc1 L_{nm}_n
    s_sleep {farsleep}
L_{nm}_n:""")
    a(f"""    s_sleep {sleep}
    s_add_u32 s{B_RET}, s{B_RET}, 1
    s_cmp_lt_u32 s{B_RET}, 1000000
    s_cbranch_scc1 L_{nm}_w
    s_endpgm
L_{nm}_d:""")

LOG2E = 1.4426950408889634
def ssm_params(a, vp, base):
    LR, LI, CR, CI = base, base+1, base+2, base+3
    T = base + 4
    a(f"    v_lshlrev_b32 v{T}, 1, v{vp}")
    for i, off in enumerate((64, 72, 112)):
        srd(a, B_W, off, 1024)
        a(f"    buffer_load_ushort v{T+1+i}, v{T}, s[{B_W}:{B_W+3}], 0 offen")
    a(f"""    s_waitcnt vmcnt(0)
    v_lshlrev_b32 v{T+1}, 16, v{T+1}          ; lre
    v_lshlrev_b32 v{T+2}, 16, v{T+2}          ; lim
    v_lshlrev_b32 v{T+3}, 16, v{T+3}          ; log_dt
    v_mul_f32 v{T+3}, {hex(f32bits(LOG2E))}, v{T+3}
    v_exp_f32 v{T+3}, v{T+3}
    s_nop 1
    v_cvt_pk_bf16_f32 v{T+3}, v{T+3}, v{T+3}
    v_lshlrev_b32 v{T+3}, 16, v{T+3}
    v_mul_f32 v{T+4}, v{T+3}, v{T+1}
    v_mul_f32 v{T+5}, v{T+3}, v{T+2}
    v_mul_f32 v{T+4}, {hex(f32bits(LOG2E))}, v{T+4}
    v_exp_f32 v{T+4}, v{T+4}                  ; mag
    v_mul_f32 v{T+5}, 0.15915494, v{T+5}      ; revolutions
    v_rndne_f32 v{T+6}, v{T+5}
    v_sub_f32 v{T+5}, v{T+5}, v{T+6}
    v_cos_f32 v{T+6}, v{T+5}
    v_sin_f32 v{T+7}, v{T+5}
    s_nop 1
    v_mul_f32 v{LR}, v{T+4}, v{T+6}
    v_mul_f32 v{LI}, v{T+4}, v{T+7}
    v_add_f32 v{T+4}, -1.0, v{LR}             ; nr
    v_mul_f32 v{T+5}, v{T+1}, v{T+1}
    v_fma_f32 v{T+5}, v{T+2}, v{T+2}, v{T+5}  ; den
    v_rcp_f32 v{T+5}, v{T+5}
    v_mul_f32 v{T+6}, v{T+4}, v{T+1}
    v_fma_f32 v{T+6}, v{LI}, v{T+2}, v{T+6}
    v_mul_f32 v{T+7}, v{LI}, v{T+1}
    v_fma_f32 v{T+7}, -v{T+4}, v{T+2}, v{T+7}
    v_mul_f32 v{CR}, v{T+6}, v{T+5}
    v_mul_f32 v{CI}, v{T+7}, v{T+5}""")

def scan_role(a, name, flags=True):
    ws = f"s[{B_WS}:{B_WS+3}]"
    a(f"""    v_and_b32 v1, 63, v0
    v_and_b32 v2, 15, v1                ; c
    v_lshrrev_b32 v3, 4, v0
    s_lshl_b32 s{B_T0}, s{B_INST}, 4
    v_add_u32 v4, s{B_T0}, v2           ; p""")
    ssm_params(a, 4, 8)
    LR, LI, CR, CI = 8, 9, 10, 11
    a(f"    v_mov_b32 v12, v{LR}\n    v_mov_b32 v13, v{LI}")
    for i in range(7):
        a("""    v_mul_f32 v14, v12, v12
    v_fma_f32 v14, -v13, v13, v14
    v_mul_f32 v15, v12, v13
    v_add_f32 v13, v15, v15
    v_mov_b32 v12, v14""")
    if flags:
        a(f"    s_mov_b32 s{B_T0}, {F_U}")
        wait_flag(a, name + "_wu", B_T0, 256)
    a(f"""    v_lshlrev_b32 v5, 19, v3
    v_lshlrev_b32 v6, 3, v4
    v_add_u32 v5, v5, v6
    v_lshlrev_b32 v6, 18, v3
    v_lshlrev_b32 v7, 2, v4
    v_add_u32 v6, v6, v7""")
    HR, HI = 16, 17
    UB = [32, 64]
    def loads(b, t0reg):
        for i in range(16):
            a(f"    s_add_u32 s{B_T1}, s{t0reg}, {i*4096}")
            a(f"    buffer_load_dwordx2 {vr(UB[b] + 2*i, 2)}, v5, {ws}, s{B_T1} offen sc1")
    def rec(b, out, hreg):
        for i in range(16):
            u = UB[b] + 2*i
            a(f"""    v_fma_f32 v18, v{LR}, v{HR}, v{u}
    v_fma_f32 v19, v{LR}, v{HI}, v{u+1}
    v_fma_f32 v18, -v{LI}, v{HI}, v18
    v_fma_f32 v{HI}, v{LI}, v{HR}, v19
    v_mov_b32 v{HR}, v18""")
            if out:
                a(f"""    v_mul_f32 v20, v{CR}, v{HR}
    v_mul_f32 v21, v{CR}, v{HI}
    v_fma_f32 v20, -v{CI}, v{HI}, v20
    v_fma_f32 v21, v{CI}, v{HR}, v21
    v_cvt_pk_bf16_f32 v{22 + (i & 3)}, v20, v21
    s_add_u32 s{B_T1}, s{hreg}, {i*2048}
    buffer_store_dword v{22 + (i & 3)}, v6, {ws}, s{B_T1} offen sc1""")
    for pas in range(2):
        if pas == 0:
            a(f"    v_mov_b32 v{HR}, 0\n    v_mov_b32 v{HI}, 0")
        SU, SH, SC = 40, 41, 42
        a(f"""    s_mov_b32 s{SU}, {WS_U}
    s_mov_b32 s{SH}, {WS_H}
    s_mov_b32 s{SC}, 0""")
        loads(0, SU)
        a(f"L_{name}_p{pas}:")
        a(f"    s_add_u32 s{SU}, s{SU}, {16*4096}")
        loads(1, SU)
        a(f"    s_waitcnt vmcnt({16})" if pas == 0 else f"    s_waitcnt vmcnt(16)")
        rec(0, pas == 1, SH)
        a(f"    s_add_u32 s{SH}, s{SH}, {16*2048}")
        a(f"    s_add_u32 s{SU}, s{SU}, {16*4096}")
        a(f"    s_add_u32 s{SC}, s{SC}, 1")
        a(f"    s_cmp_ge_u32 s{SC}, 4")
        a(f"    s_cbranch_scc1 L_{name}_p{pas}_last")
        loads(0, SU)
        a(f"    s_waitcnt vmcnt({16})")
        rec(1, pas == 1, SH)
        a(f"    s_add_u32 s{SH}, s{SH}, {16*2048}")
        a(f"    s_branch L_{name}_p{pas}")
        a(f"L_{name}_p{pas}_last:")
        a("    s_waitcnt vmcnt(0)")
        rec(1, pas == 1, SH)
        if pas == 0:
            a(f"""    v_lshlrev_b32 v18, 3, v0
    ds_write_b64 v18, v[{HR}:{HI}]
    s_waitcnt lgkmcnt(0)
    s_barrier
    v_lshlrev_b32 v18, 3, v2            ; c*8
    v_mov_b32 v{HR}, 0
    v_mov_b32 v{HI}, 0""")
            for j in range(15):
                a(f"""    ds_read_b64 v[20:21], v18 offset:{j*128}
    v_cmp_lt_u32 vcc, {j}, v3
    s_waitcnt lgkmcnt(0)
    v_fma_f32 v22, v12, v{HR}, v20
    v_fma_f32 v23, v12, v{HI}, v21
    v_fma_f32 v22, -v13, v{HI}, v22
    v_fma_f32 v23, v13, v{HR}, v23
    v_cndmask_b32 v{HR}, v{HR}, v22, vcc
    v_cndmask_b32 v{HI}, v{HI}, v23, vcc""")
    a("    s_waitcnt vmcnt(0)")
    a("    s_barrier")
    if flags:
        a(f"    s_mov_b32 s{B_FLG}, {F_SC}")
        publish_progress(a, name + "_pp", 'add')

HROW = 2064
HBUF = 32 * HROW
def y_role(a, name, nsets=8, flags=True):
    ws = f"s[{B_WS}:{B_WS+3}]"
    L = a.lds
    a(f"""    v_and_b32 v1, 63, v0
    v_and_b32 v2, 31, v1                ; c
    v_lshrrev_b32 v3, 5, v1             ; hi
    v_lshlrev_b32 v4, 4, v1             ; lane*16
    s_lshl_b32 s{B_T0}, s{B_INST}, 2
    s_add_u32 s{B_T0}, s{B_T0}, s{B_WV}
    s_lshl_b32 s{B_T0}, s{B_T0}, 5              ; d0 = 32*(4 inst + w)
    v_add_u32 v9, s{B_T0}, v2                   ; d
    v_lshlrev_b32 v5, 10, v9                    ; d*1024
    v_lshlrev_b32 v6, 4, v3
    v_add_u32 v5, v5, v6""")
    a(f"""    s_load_dwordx2 s[{B_W}:{B_W+1}], s[0:1], 96
    s_load_dwordx2 s[{B_O}:{B_O+1}], s[0:1], 104
    s_mov_b32 s{B_W+2}, 0x80000
    s_mov_b32 s{B_W+3}, 0x20000
    s_mov_b32 s{B_O+2}, 0x80000
    s_mov_b32 s{B_O+3}, 0x20000
    s_mov_b32 s{B_T1}, 0x05040100
    s_mov_b32 s{B_T2}, 0x07060302
    s_waitcnt lgkmcnt(0)""")
    for mb in range(4):
        for i in range(8):
            m = mb*8 + i
            a(f"    buffer_load_dwordx4 {vr(32 + 8*i, 4)}, v5, s[{B_W}:{B_W+3}], 0 offen offset:{m*32}")
            a(f"    buffer_load_dwordx4 {vr(36 + 8*i, 4)}, v5, s[{B_O}:{B_O+3}], 0 offen offset:{m*32}")
        a("    s_waitcnt vmcnt(0)")
        for i in range(8):
            m = mb*8 + i
            re, im = 32 + 8*i, 36 + 8*i
            for q in range(4):
                dst = (2*m + (q >> 1))*4 + (q & 1)*2
                a(f"""    v_perm_b32 v10, v{im+q}, v{re+q}, s{B_T1}
    v_perm_b32 v11, v{im+q}, v{re+q}, s{B_T2}
    v_xor_b32 v10, 0x80000000, v10
    v_xor_b32 v11, 0x80000000, v11
    v_accvgpr_write_b32 a{dst}, v10
    v_accvgpr_write_b32 a{dst+1}, v11""")
    srd(a, B_W, 120, 1024)
    a(f"""    v_lshlrev_b32 v10, 1, v9
    buffer_load_ushort v12, v10, s[{B_W}:{B_W+3}], 0 offen
    s_waitcnt vmcnt(0)
    v_lshlrev_b32 v12, 16, v12""")
    srd(a, B_X, 56, 2048*1024)
    srd(a, B_O, 128, 2048*4096)
    a(f"""    v_mul_u32_u24 v6, {HROW}, v2
    v_lshlrev_b32 v7, 5, v3
    v_add_u32 v6, v6, v7
    v_lshlrev_b32 v7, 12, v3
    v_lshlrev_b32 v8, 1, v9
    v_add_u32 v7, v7, v8                        ; x voffset
    v_lshlrev_b32 v8, 14, v3
    v_lshlrev_b32 v10, 2, v9
    v_add3_u32 v8, v8, v10, 0
    v_add_u32 v8, 2048, v8""")
    if flags:
        a(f"    s_mov_b32 s{B_T0}, {F_SC}")
        wait_flag(a, name + "_ws", B_T0, 32)
    def hissue(buf):
        a(f"""    s_lshl_b32 s{B_T0}, s{B_SEG}, 16
    s_lshl_b32 s{B_T1}, s{B_WV}, 14
    s_add_u32 s{B_T0}, s{B_T0}, s{B_T1}
    s_add_u32 s{B_T0}, s{B_T0}, {WS_H}
    s_mul_i32 s{B_T1}, s{B_WV}, {8*HROW}
    s_add_u32 s{B_T1}, s{B_T1}, {buf*HBUF}""")
        for r in range(8):
            for hf in range(2):
                a(f"""    s_add_u32 m0, s{B_T1}, {r*HROW + hf*1024}
    s_add_u32 s{B_T2}, s{B_T0}, {r*2048 + hf*1024}
    buffer_load_dwordx4 v4, {ws}, s{B_T2} offen sc1 lds""")
    a(f"""    s_mov_b32 s{B_SEG}, s{B_SET}
    s_mov_b32 s{B_CNT}, 0""")
    hissue(0)
    ACC = 32; XF = 64; XV = 96
    a(f"L_{name}_loop:")
    for buf in range(2):
        a("    s_waitcnt vmcnt(0)")
        a("    s_barrier")
        a(f"    s_mov_b32 s{B_T3}, s{B_SEG}")
        a(f"    s_add_u32 s{B_SEG}, s{B_SEG}, {nsets}")
        a(f"    s_cmp_ge_u32 s{B_SEG}, 64\n    s_cbranch_scc1 L_{name}_nx{buf}")
        hissue(1 - buf)
        a(f"L_{name}_nx{buf}:")
        a(f"    s_lshl_b32 s{B_T0}, s{B_T3}, 15")
        for i in range(4):
            for r in range(4):
                a(f"    s_add_u32 s{B_T1}, s{B_T0}, {(8*i + r)*1024}")
                a(f"    buffer_load_ushort v{XV + 4*i + r}, v7, s[{B_X}:{B_X+3}], s{B_T1} offen")
        L.reset()
        NX = 8
        def xoff(kk): return (kk >> 1)*64 + (kk & 1)*16
        base2 = buf*HBUF
        br = "v6" if buf == 0 else "v13"
        if buf == 0: a(f"    v_add_u32 v13, {HBUF}, v6")
        for kk in range(NX): a.ds(f"ds_read_b128 {vr(XF + 4*kk, 4)}, {br} offset:{xoff(kk)}", ('x', kk))
        for kk in range(64):
            L.need(('x', kk))
            xf = vr(XF + 4*(kk % NX), 4)
            c_ = "0" if kk == 0 else vr(ACC, 16)
            a(f"    v_mfma_f32_32x32x16_bf16 {vr(ACC, 16)}, {xf}, {ar(kk*4, 4)}, {c_}")
            if kk + NX < 64: a.ds(f"ds_read_b128 {xf}, {br} offset:{xoff(kk+NX)}", ('x', kk+NX))
        a("    s_waitcnt vmcnt(0)")
        a("    s_nop 7")
        a(f"    s_lshl_b32 s{B_T0}, s{B_T3}, 17")
        for i in range(4):
            for r in range(4):
                x = XV + 4*i + r
                a(f"""    v_lshlrev_b32 v{x}, 16, v{x}
    v_mul_f32 v{x}, v{x}, v12
    v_cvt_pk_bf16_f32 v{x}, v{x}, v{x}
    v_lshlrev_b32 v{x}, 16, v{x}
    v_fma_f32 v{x}, 2.0, v{ACC + 4*i + r}, v{x}
    s_add_u32 s{B_T1}, s{B_T0}, {(8*i + r)*4096}
    buffer_store_dword v{x}, v8, s[{B_O}:{B_O+3}], s{B_T1} offen sc1""")
        a(f"    s_add_u32 s{B_CNT}, s{B_CNT}, 1")
        a(f"    s_cmp_ge_u32 s{B_CNT}, {64 // nsets}")
        a(f"    s_cbranch_scc1 L_{name}_fin")
    a(f"    s_branch L_{name}_loop")
    a(f"L_{name}_fin:")
    a("    s_waitcnt vmcnt(0)")

SCALE_C = (128 ** -0.5) * LOG2E
def attn_role(a, name, nlanes, flags=True, opt_sleep=2):
    ws = f"s[{B_WS}:{B_WS+3}]"
    S_H_, S_QT, S_SEG, S_B8, S_B2, S_C_, S_FK, S_FQ = 40, 41, 42, 43, 44, 45, 46, 47
    a(f"""    v_and_b32 v1, 63, v0                ; lane
    v_and_b32 v2, 15, v1                ; n
    v_lshrrev_b32 v3, 4, v1             ; g
    v_lshlrev_b32 v4, 4, v1             ; lane*16
    s_lshr_b32 s{S_H_}, s{B_INST}, 1
    s_and_b32 s{S_QT}, s{B_INST}, 1
    s_mov_b32 s{S_C_}, {hex(f32bits(SCALE_C))}
    v_lshlrev_b32 v5, 4, v3
    v_and_b32 v6, 7, v2
    v_lshlrev_b32 v6, 6, v6
    v_add_u32 v5, v5, v6
    v_and_b32 v6, 1, v3
    v_lshlrev_b32 v6, 7, v6
    v_lshlrev_b32 v7, 2, v2
    v_add_u32 v6, v6, v7
    ; o store voffset: (g>>1)*512 + (16qt+n)*16 + (g&1)*8
    v_lshrrev_b32 v7, 1, v3
    v_lshlrev_b32 v7, 9, v7
    v_lshlrev_b32 v8, 4, v2
    v_and_b32 v9, 1, v3
    v_lshlrev_b32 v9, 3, v9
    v_add3_u32 v7, v7, v8, v9
    s_lshl_b32 s{B_T0}, s{S_QT}, 8
    v_add_u32 v7, s{B_T0}, v7
    s_lshl_b32 s{B_T0}, s{S_QT}, 4
    v_lshlrev_b32 v8, 2, v3
    v_sub_u32 v8, v2, v8
    v_add_u32 v8, s{B_T0}, v8           ; signed
    v_mov_b32 v9, 0xff800000            ; -inf
    s_mov_b32 s{S_SEG}, s{B_SET}""")
    QF, KF, VF, VM = 16, 32, 80, 112
    ST = 128
    a(f"L_{name}_loop:")
    if flags:
        a(f"""    s_and_b32 s{B_T0}, s{S_SEG}, 3
    s_lshl_b32 s{B_T1}, s{B_T0}, 5
    s_add_u32 s{B_T1}, s{B_T1}, s{S_H_}
    s_lshl_b32 s{B_T1}, s{B_T1}, 2
    s_add_u32 s{S_FK}, s{B_T1}, {F_KV}
    s_lshl_b32 s{B_T1}, s{B_T0}, 4
    s_lshr_b32 s{B_T2}, s{S_H_}, 1
    s_add_u32 s{B_T1}, s{B_T1}, s{B_T2}
    s_lshl_b32 s{B_T1}, s{B_T1}, 2
    s_add_u32 s{S_FQ}, s{B_T1}, {F_Q}
    s_lshr_b32 s{B_T2}, s{S_SEG}, 2
    s_add_u32 s{B_T2}, s{B_T2}, 1""")
        wait_flag(a, name + "_wk", S_FK, None, ge_reg=B_T2)
        wait_flag(a, name + "_wq", S_FQ, None, ge_reg=B_T2)
    a(f"""    s_lshl_b32 s{B_T0}, s{S_SEG}, 5
    s_add_u32 s{B_T0}, s{B_T0}, s{S_H_}
    s_lshl_b32 s{S_B8}, s{B_T0}, 13
    s_add_u32 s{S_B2}, s{B_T0}, 32
    s_lshl_b32 s{S_B2}, s{S_B2}, 11""")
    a(f"""    s_lshl_b32 s{B_T1}, s{S_QT}, 12
    s_add_u32 s{B_T1}, s{B_T1}, s{S_B8}
    s_add_u32 s{B_T1}, s{B_T1}, {WS_QF}""")
    for ks in range(4):
        a(f"    buffer_load_dwordx4 {vr(QF + 4*ks, 4)}, v4, {ws}, s{B_T1} offen offset:{ks*1024} sc1")
    a(f"    s_add_u32 s{B_T1}, s{S_B8}, {WS_KF}\n    s_add_u32 s{B_T2}, s{B_T1}, 4096")
    for T in range(2):
        for ks in range(4):
            a(f"    buffer_load_dwordx4 {vr(KF + 16*T + 4*ks, 4)}, v4, {ws}, s{B_T1 if T == 0 else B_T2} offen offset:{ks*1024} sc1")
    a(f"    s_add_u32 s{B_T1}, s{S_B8}, {WS_VF}\n    s_add_u32 s{B_T2}, s{B_T1}, 4096")
    for t in range(8):
        a(f"    buffer_load_dwordx4 {vr(VF + 4*t, 4)}, v4, {ws}, s{B_T1 if t < 4 else B_T2} offen offset:{(t & 3)*1024} sc1")
    if flags:
        a(f"""    s_lshl_b32 s{B_T1}, s{S_H_}, 7
    s_add_u32 s{S_FK}, s{B_T1}, {F_CH}
    s_add_u32 s{B_T2}, s{S_SEG}, 1""")
        wait_flag(a, name + "_wc", S_FK, None, vtmp=190, ge_reg=B_T2, sleep=opt_sleep, far=2, farsleep=40)
    a(f"    s_add_u32 s{B_T1}, s{S_B2}, {WS_KM}")
    for ks in range(4):
        a(f"    buffer_load_dwordx4 {vr(KF + 32 + 4*ks, 4)}, v5, {ws}, s{B_T1} offen offset:{ks*512} sc1")
    a(f"    s_add_u32 s{B_T1}, s{S_B2}, {WS_VM}")
    for t in range(8):
        a(f"    buffer_load_dword v{VM + 2*t}, v6, {ws}, s{B_T1} offen offset:{t*256} sc1")
        a(f"    buffer_load_dword v{VM + 2*t + 1}, v6, {ws}, s{B_T1} offen offset:{t*256 + 64} sc1")
    a("    s_waitcnt vmcnt(16)")
    for T in range(3):
        for ks in range(4):
            c = "0" if ks == 0 else vr(ST + 4*T, 4)
            a(f"    v_mfma_f32_16x16x32_bf16 {vr(ST + 4*T, 4)}, {vr(KF + 16*T + 4*ks, 4)}, {vr(QF + 4*ks, 4)}, {c}")
    a("    s_nop 7")
    for T in range(2):
        for r in range(4):
            a(f"    v_cmp_le_i32 vcc, {16*T + r}, v8")
            a(f"    s_nop 1")
            a(f"    v_cndmask_b32 v{ST + 4*T + r}, v9, v{ST + 4*T + r}, vcc")
    a("    v_cmp_gt_u32 vcc, 2, v3\n    s_nop 1")
    for r in range(4):
        a(f"    v_cndmask_b32 v{ST + 8 + r}, v9, v{ST + 8 + r}, vcc")
    M_, T_ = 140, 141
    a(f"    v_max3_f32 v{M_}, v{ST}, v{ST+1}, v{ST+2}")
    a(f"    v_max3_f32 v{T_}, v{ST+3}, v{ST+4}, v{ST+5}")
    a(f"    v_max3_f32 v{M_}, v{M_}, v{ST+6}, v{ST+7}")
    a(f"    v_max3_f32 v{T_}, v{T_}, v{ST+8}, v{ST+9}")
    a(f"    v_max3_f32 v{M_}, v{M_}, v{ST+10}, v{ST+11}")
    a(f"    v_max_f32 v{M_}, v{M_}, v{T_}")
    def xred(op):
        a(f"    v_mov_b32 v{T_}, v{M_}\n    s_nop 1\n    v_permlane16_swap_b32 v{M_}, v{T_}\n    {op} v{M_}, v{M_}, v{T_}")
        a(f"    v_mov_b32 v{T_}, v{M_}\n    s_nop 1\n    v_permlane32_swap_b32 v{M_}, v{T_}\n    {op} v{M_}, v{M_}, v{T_}")
    xred("v_max_f32")
    a(f"    v_mul_f32 v{M_}, s{S_C_}, v{M_}")
    for i in range(12):
        a(f"    v_fma_f32 v{ST+i}, v{ST+i}, s{S_C_}, -v{M_}")
    for i in range(12):
        a(f"    v_exp_f32 v{ST+i}, v{ST+i}")
    a("    s_nop 0")
    PX, PM = 144, 148
    a(f"    v_cvt_pk_bf16_f32 v{PX}, v{ST}, v{ST+1}")
    a(f"    v_cvt_pk_bf16_f32 v{PX+1}, v{ST+4}, v{ST+5}")
    a(f"    v_cvt_pk_bf16_f32 v{PX+2}, v{ST+2}, v{ST+3}")
    a(f"    v_cvt_pk_bf16_f32 v{PX+3}, v{ST+6}, v{ST+7}")
    a(f"    v_cvt_pk_bf16_f32 v{PM}, v{ST+8}, v{ST+9}")
    a(f"    v_cvt_pk_bf16_f32 v{PM+1}, v{ST+10}, v{ST+11}")
    a(f"    v_mov_b32 v{M_}, 0")
    for rg in (PX, PX+1, PX+2, PX+3, PM, PM+1):
        a(f"    v_lshlrev_b32 v{T_}, 16, v{rg}\n    v_add_f32 v{M_}, v{M_}, v{T_}")
        a(f"    v_and_b32 v{T_}, 0xffff0000, v{rg}\n    v_add_f32 v{M_}, v{M_}, v{T_}")
    xred("v_add_f32")
    a(f"    v_rcp_f32 v{M_}, v{M_}")
    a("    s_waitcnt vmcnt(0)")
    O = 152
    for t in range(8):
        a(f"    v_mfma_f32_16x16x32_bf16 {vr(O + 4*t, 4)}, {vr(VF + 4*t, 4)}, {vr(PX, 4)}, 0")
    for t in range(8):
        a(f"    v_mfma_f32_16x16x16_bf16 {vr(O + 4*t, 4)}, {vr(VM + 2*t, 2)}, {vr(PM, 2)}, {vr(O + 4*t, 4)}")
    a("    s_nop 7")
    a(f"""    s_lshl_b32 s{B_T1}, s{S_QT}, 12
    s_add_u32 s{B_T1}, s{B_T1}, s{S_B8}
    s_add_u32 s{B_T1}, s{B_T1}, {WS_OF}""")
    for kp in range(4):
        o0, o1 = O + 8*kp, O + 8*kp + 4
        for r in range(4): a(f"    v_mul_f32 v{o0+r}, v{o0+r}, v{M_}\n    v_mul_f32 v{o1+r}, v{o1+r}, v{M_}")
        a(f"    v_cvt_pk_bf16_f32 v{o0}, v{o0}, v{o0+1}\n    v_cvt_pk_bf16_f32 v{o0+1}, v{o0+2}, v{o0+3}")
        a(f"    v_cvt_pk_bf16_f32 v{o0+2}, v{o1}, v{o1+1}\n    v_cvt_pk_bf16_f32 v{o0+3}, v{o1+2}, v{o1+3}")
        a(f"    buffer_store_dwordx4 {vr(o0, 4)}, v4, {ws}, s{B_T1} offen offset:{kp*1024} sc1")
    if flags:
        a(f"""    s_waitcnt vmcnt(0)
    s_lshl_b32 s{B_T1}, s{S_SEG}, 7
    s_add_u32 s{B_T1}, s{B_T1}, {F_O}
    s_mov_b64 exec, 1
    v_mov_b32 v120, 0
    v_mov_b32 v121, 1
    buffer_atomic_add v121, v120, {ws}, s{B_T1} offen sc1
    s_mov_b64 exec, -1""")
    a(f"""    s_add_u32 s{S_SEG}, s{S_SEG}, {nlanes}
    s_cmp_lt_u32 s{S_SEG}, 64
    s_cbranch_scc1 L_{name}_loop
    s_waitcnt vmcnt(0)""")

def oproj_role(a, name, nsets=4, flags=True):
    ws = f"s[{B_WS}:{B_WS+3}]"
    S_QT_, S_JC = 40, 41
    a(f"""    v_and_b32 v1, 63, v0
    v_and_b32 v2, 15, v1                ; col / n
    v_lshrrev_b32 v3, 4, v1             ; g
    v_lshlrev_b32 v4, 4, v1             ; lane*16
    s_lshr_b32 s{S_QT_}, s{B_INST}, 4
    s_and_b32 s{S_JC}, s{B_INST}, 15""")
    srd(a, B_W, 40, 0x400000)
    a(f"""    v_lshrrev_b32 v5, 2, v1
    v_lshlrev_b32 v5, 10, v5
    v_and_b32 v6, 3, v1
    v_lshlrev_b32 v6, 4, v6
    s_lshl_b32 s{B_T0}, s{S_JC}, 6
    s_lshl_b32 s{B_T1}, s{B_WV}, 20             ; w*1024 rows*1024B
    s_add_u32 s{B_T0}, s{B_T0}, s{B_T1}
    v_add3_u32 v5, v5, v6, s{B_T0}
    v_lshrrev_b32 v7, 2, v2
    v_lshlrev_b32 v8, 2, v3
    v_add_u32 v7, v7, v8
    v_lshlrev_b32 v7, 6, v7
    v_and_b32 v6, 3, v2
    v_lshlrev_b32 v6, 3, v6
    s_lshl_b32 s{B_T2}, s{B_WV}, 15
    v_add3_u32 v7, v7, v6, s{B_T2}""")
    def issue(ch):
        for i in range(16):
            a(f"""    s_add_u32 m0, s{B_T2}, {(ch & 1)*16384 + i*1024}
    s_mov_b32 s{B_T3}, {(ch*256 + i*16)*1024}
    buffer_load_dwordx4 v5, s[{B_W}:{B_W+3}], s{B_T3} offen lds""")
    issue(0); issue(1)
    for ch in range(4):
        a(f"    s_waitcnt vmcnt({16 if ch < 3 else 0})")
        for kq in range(8):
            kk = ch*8 + kq
            for ct in range(2):
                for hf in range(2):
                    a(f"    ds_read_b64_tr_b16 {ar((kk*2 + ct)*4 + 2*hf, 2)}, v7 offset:{(ch & 1)*16384 + (kq*32 + 16*hf)*64 + ct*32}")
            if kq % 2 == 1: a("    s_waitcnt lgkmcnt(4)")
        a("    s_waitcnt lgkmcnt(0)")
        if ch + 2 < 4: issue(ch + 2)
    a("    s_barrier")
    srd(a, B_O, 128, 2048*4096)
    a(f"""    v_lshlrev_b32 v8, 14, v3                    ; 4g*4096
    v_lshlrev_b32 v9, 2, v2
    s_lshl_b32 s{B_T0}, s{S_JC}, 7
    s_and_b32 s{B_T1}, s{B_WV}, 1
    s_lshl_b32 s{B_T1}, s{B_T1}, 6
    s_add_u32 s{B_T0}, s{B_T0}, s{B_T1}
    s_lshl_b32 s{B_T1}, s{S_QT_}, 16            ; 16 rows*4096
    s_add_u32 s{B_T0}, s{B_T0}, s{B_T1}
    v_add3_u32 v8, v8, v9, s{B_T0}
    s_lshl_b32 s{B_T0}, s{B_WV}, 11
    v_add_u32 v9, s{B_T0}, v4
    s_and_b32 s{B_T0}, s{B_WV}, 1
    s_lshl_b32 s{B_T0}, s{B_T0}, 10
    v_add_u32 v10, s{B_T0}, v4
    s_mov_b32 s{B_SEG}, s{B_SET}""")
    ACC = 16; AF = 32
    a(f"L_{name}_loop:")
    if flags:
        a(f"""    s_lshl_b32 s{B_T1}, s{B_SEG}, 7
    s_add_u32 s{B_T1}, s{B_T1}, {F_O}""")
        wait_flag(a, name + "_wo", B_T1, 64, sleep=1, far=63, farsleep=24)
    a(f"""    s_lshl_b32 s{B_T0}, s{B_SEG}, 18
    s_lshl_b32 s{B_T1}, s{B_WV}, 16             ; 8 heads * 8192
    s_add_u32 s{B_T0}, s{B_T0}, s{B_T1}
    s_lshl_b32 s{B_T1}, s{S_QT_}, 12
    s_add_u32 s{B_T0}, s{B_T0}, s{B_T1}
    s_add_u32 s{B_T0}, s{B_T0}, {WS_OF}""")
    for kk in range(32):
        if kk % 4 == 0: a(f"    s_add_u32 s{B_T1}, s{B_T0}, {(kk // 4)*8192}")
        a(f"    buffer_load_dwordx4 {vr(AF + 4*kk, 4)}, v4, {ws}, s{B_T1} offen offset:{(kk % 4)*1024} sc1")
    for kk in range(32):
        a(f"    s_waitcnt vmcnt({31 - kk})")
        for ct in range(2):
            c = "0" if kk == 0 else vr(ACC + 4*ct, 4)
            a(f"    v_mfma_f32_16x16x32_bf16 {vr(ACC + 4*ct, 4)}, {vr(AF + 4*kk, 4)}, {ar((kk*2 + ct)*4, 4)}, {c}")
    a("    s_nop 7")
    for ct in range(2): a(f"    ds_write_b128 v9, {vr(ACC + 4*ct, 4)} offset:{ct*1024}")
    a("    s_waitcnt lgkmcnt(0)\n    s_barrier")
    a(f"    s_cmp_ge_u32 s{B_WV}, 2\n    s_cbranch_scc1 L_{name}_skip")
    for w2 in range(4): a(f"    ds_read_b128 {vr(ACC + 4*w2, 4)}, v10 offset:{w2*2048}")
    a("    s_waitcnt lgkmcnt(0)")
    a(f"    s_lshl_b32 s{B_T0}, s{B_SEG}, 17")
    for r in range(4):
        a(f"""    v_add_f32 v{ACC+r}, v{ACC+r}, v{ACC+4+r}
    v_add_f32 v{ACC+8+r}, v{ACC+8+r}, v{ACC+12+r}
    v_add_f32 v{ACC+r}, v{ACC+r}, v{ACC+8+r}
    s_add_u32 s{B_T1}, s{B_T0}, {r*4096}
    buffer_store_dword v{ACC+r}, v8, s[{B_O}:{B_O+3}], s{B_T1} offen sc1""")
    a(f"L_{name}_skip:")
    a("    s_barrier")
    a(f"""    s_add_u32 s{B_SEG}, s{B_SEG}, {nsets}
    s_cmp_lt_u32 s{B_SEG}, 64
    s_cbranch_scc1 L_{name}_loop
    s_waitcnt vmcnt(0)""")
```

```python
from asmlib import *

WS_P1   = 0x0100000
P1C = 8320
P1SLOT = 0x42000
WS_M    = 0x0080000
WS_FLAG = 0x0090000
WS_KF   = 0x1000000
WS_VF   = 0x2000000
WS_QF   = 0x3000000
WS_OF   = 0x4000000
WS_KM   = 0x5000000
WS_VM   = 0x5400000
WS_WT   = 0x7000000
WS_SIZE = 0x10000000
F_WT   = WS_FLAG + 0x3000
F_KV   = WS_FLAG + 0x000
F_CH   = WS_FLAG + 0x1000

L_M   = 0
L_KX  = 8192
L_Q   = 16384
L_K   = 18560
L_O   = 20736
L_ZERO= 22912
L_SEL = 23936
L_LB  = 24960
L_MISC= 25984
L_W   = 32768
L_WO = L_W

S_WS = 8
S_W  = 12
S_W2 = 48
S_STEP, S_H, S_WV = 16, 17, 18
S_P1W, S_P1W2, S_P1X = 20, 21, 22
S_P1W3, S_P1W4 = 42, 43
S_MWN = 19
S_MW, S_MW2, S_MX = 23, 24, 25
S_KN, S_VN = 26, 27
S_T0, S_T1, S_T2 = 28, 29, 44
S_HALF = 30
S_MEX = 32
S_C   = 36
S_RETRY = 37
S_KMP, S_VMP = 38, 39
S_KM0 = 45
S_PFW = 35
S_FLN = 40
S_FLT = 41
S_FCH = 7
S_PF = 34
S_TS = 46

V_IDX, V_L16, V_QW, V_QR, V_KR, V_AR, V_WO, V_WO2, V_P1S, V_P1R, V_MS, V_MP, V_VX, V_KM, V_NEG1 = range(1, 16)
V_TR = 0
V_VBX = 16
V_VBY = 24
R_AB  = 32
NAB   = 5
R_ACC = 52
R_QF  = 64
R_KF  = 80
R_KX  = 96
V_WV  = 128

def wk(t, ks): return ar(t*64 + 8*ks, 8)
def wv(t, ks): return ar(128 + t*64 + 8*ks, 8)
def wo(m, kp): return vr(128 + (m*4 + kp)*8, 8)

def chain_setup(a, name):
    a(f"""
    v_and_b32 v32, 63, v0               ; lane
    v_and_b32 v33, 15, v32              ; n = lane&15
    v_lshrrev_b32 v40, 4, v32           ; g
    v_lshlrev_b32 v{V_L16}, 4, v32      ; lane*16
    v_and_b32 v41, 1, v32
    v_mul_u32_u24 v41, 0xAAAA, v41
    v_add_u32 v{V_IDX}, 0x4444, v41
    ; QW = 2g*272 + w*64 + n*4
    v_mul_u32_u24 v41, 544, v40
    v_lshlrev_b32 v42, 2, v33
    s_lshl_b32 s{S_T0}, s{S_WV}, 6
    v_add3_u32 v{V_QW}, v41, v42, s{S_T0}
    ; QR = (n>>1)*272 + g*16
    v_lshrrev_b32 v41, 1, v33
    v_mul_u32_u24 v43, 272, v41
    v_lshlrev_b32 v42, 4, v40
    v_add_u32 v{V_QR}, v43, v42
    ; AR = (g>>1)*512 + (n>>1)*64 + (g&1)*32 + (n&1)*16
    v_lshlrev_b32 v43, 6, v41
    v_lshrrev_b32 v44, 1, v40
    v_lshlrev_b32 v44, 9, v44
    v_add_u32 v43, v43, v44
    v_and_b32 v44, 1, v40
    v_lshlrev_b32 v44, 5, v44
    v_add_u32 v43, v43, v44
    v_and_b32 v44, 1, v33
    v_lshlrev_b32 v44, 4, v44
    v_add_u32 v{V_AR}, v43, v44
    ; KR = (n&7)*272 + g*16
    v_and_b32 v41, 7, v33
    v_mul_u32_u24 v41, 272, v41
    v_add_u32 v{V_KR}, v41, v42
    s_lshl_b32 s{S_T0}, s{S_WV}, 12
    s_add_u32 s{S_T0}, s{S_T0}, {L_W}
    v_add_u32 v{V_WO}, s{S_T0}, v{V_L16}
    v_add_u32 v{V_WO2}, 0x10000, v{V_WO}
    v_mul_u32_u24 v41, {2*P1C}, v40
    v_lshlrev_b32 v42, 2, v33
    s_mul_i32 s{S_T0}, s{S_WV}, {8*P1C}
    s_lshl_b32 s{S_T1}, s{S_H}, 6
    s_add_u32 s{S_T0}, s{S_T0}, s{S_T1}
    v_add3_u32 v{V_P1S}, v41, v42, s{S_T0}
    s_mul_i32 s{S_T0}, s{S_H}, {P1C}
    s_lshl_b32 s{S_T1}, s{S_WV}, 11
    s_add_u32 s{S_T0}, s{S_T0}, s{S_T1}
    v_add_u32 v{V_P1R}, s{S_T0}, v{V_L16}
    s_lshr_b32 s{S_T0}, s{S_H}, 3
    s_lshl_b32 s{S_T0}, s{S_T0}, 2
    s_add_u32 s{S_T0}, s{S_T0}, s{S_WV}
    s_lshl_b32 s{S_T0}, s{S_T0}, 9
    s_and_b32 s{S_T1}, s{S_H}, 7
    s_lshl_b32 s{S_T1}, s{S_T1}, 6
    s_add_u32 s{S_T0}, s{S_T0}, s{S_T1}
    v_and_b32 v41, 3, v32
    v_lshlrev_b32 v41, 4, v41
    v_lshlrev_b32 v43, 2, v40
    v_add3_u32 v{V_MS}, v41, v43, s{S_T0}
    v_lshrrev_b32 v41, 5, v32
    v_lshlrev_b32 v41, 11, v41
    v_and_b32 v42, 31, v32
    v_lshlrev_b32 v42, 4, v42
    s_lshl_b32 s{S_T0}, s{S_WV}, 9
    v_add3_u32 v{V_MP}, v41, v42, s{S_T0}
    v_lshrrev_b32 v41, 1, v40
    v_lshlrev_b32 v41, 8, v41
    v_lshlrev_b32 v42, 4, v33
    v_and_b32 v43, 1, v40
    v_lshlrev_b32 v43, 3, v43
    v_add3_u32 v{V_VX}, v41, v42, v43
    v_lshlrev_b32 v41, 7, v40
    v_lshlrev_b32 v42, 2, v33
    v_add_u32 v{V_KM}, v41, v42
    v_mov_b32 v{V_NEG1}, -1
    v_lshrrev_b32 v43, 2, v33           ; delta
    v_and_b32 v42, 3, v33               ; r
    v_mov_b32 v44, 0x3f80
    v_mov_b32 v45, 0x3f800000
    v_cmp_eq_u32 vcc, 1, v42
    s_nop 1
    v_cndmask_b32 v44, v44, v45, vcc
    v_cmp_gt_u32 vcc, 2, v42
    s_nop 1
    v_cndmask_b32 v44, 0, v44, vcc      ; r>=2 -> 0
""")
    for d in range(4):
        a(f"""    v_cmp_eq_u32 vcc, {d}, v43
    s_nop 1
    v_cndmask_b32 v{48+d}, 0, v44, vcc""")
    a(f"""    ds_write_b128 v{V_L16}, v[48:51] offset:{L_SEL}
    v_mov_b32 v52, 0x3f803f80
    v_mov_b32 v54, 0x3f803f80
    v_mov_b32 v41, 0x3f003f00
    v_cmp_gt_u32 vcc, 2, v40
    s_nop 1
    v_cndmask_b32 v53, 0, v41, vcc
    v_cndmask_b32 v55, 0, v41, vcc
    ds_write_b128 v{V_L16}, v[52:55] offset:{L_LB}
""")
    for i in range(16):
        a(f"    v_mov_b32 v{V_VBX+i}, 0")
    a(f"""    ds_write_b128 v{V_L16}, v[{V_VBX}:{V_VBX+3}] offset:{L_ZERO}
    s_mov_b32 s{S_HALF}, 0xaaaaaaaa
    s_mov_b32 s{S_HALF+1}, 0xaaaaaaaa
    s_mov_b32 s{S_MEX}, 0x000f000f
    s_mov_b32 s{S_MEX+1}, 0x000f000f
    s_mov_b32 s{S_C}, {hex(f32bits((128 ** -0.5) * 1.4426950408889634))}
    s_mov_b32 s{S_RETRY}, 0
    s_lshl_b32 s{S_T0}, s{S_WV}, 11
    s_add_u32 s{S_KM0}, s{S_T0}, {L_KX}
    s_and_b32 s{S_T0}, s{S_WV}, 1
    s_lshl_b32 s{S_T0}, s{S_T0}, 12
    s_lshr_b32 s{S_T1}, s{S_WV}, 1
    s_mul_i32 s{S_T1}, s{S_T1}, {WS_VF - WS_KF}
    s_add_u32 s{S_PFW}, s{S_T0}, s{S_T1}
    s_add_u32 s{S_PFW}, s{S_PFW}, {WS_KF}
""")

def chain_init_comm(a, name):
    ws = f"s[{S_WS}:{S_WS+3}]"
    a(f"""    v_mov_b32 v40, -1
    v_mov_b32 v41, -1
    v_mov_b32 v42, -1
    v_mov_b32 v43, -1
    s_mov_b32 s{S_T0}, {WS_P1}
    s_mov_b32 s{S_T1}, {WS_P1 + P1SLOT}
    buffer_store_dwordx4 v[40:43], v{V_P1R}, {ws}, s{S_T0} offen
    buffer_store_dwordx4 v[40:43], v{V_P1R}, {ws}, s{S_T0} offen offset:1024
    buffer_store_dwordx4 v[40:43], v{V_P1R}, {ws}, s{S_T1} offen
    buffer_store_dwordx4 v[40:43], v{V_P1R}, {ws}, s{S_T1} offen offset:1024
    s_mov_b64 exec, s[{S_MEX}:{S_MEX+1}]
""")
    for sl in range(4):
        a(f"""    s_mov_b32 s{S_T0}, {WS_M + sl*8192}
    buffer_store_dword v40, v{V_MS}, {ws}, s{S_T0} offen""")
    a("    s_mov_b64 exec, -1")

PROLOG_STAMPS = False
WNT = ''
def chain_load_weights(a, name, after_first=None, at_iter8=None, at_iter27=None, nextra=24):
    RING = L_W
    WNT = globals()['WNT']
    a(f"""
    v_and_b32 v32, 63, v0
    v_and_b32 v33, 15, v32
    v_lshrrev_b32 v40, 4, v32           ; g
    v_lshlrev_b32 v41, 13, v40          ; (lane>>4)*8192
    v_lshlrev_b32 v42, 4, v33
    s_lshl_b32 s{S_T0}, s{S_H}, 8
    s_lshl_b32 s{S_T1}, s{S_WV}, 17
    s_add_u32 s{S_T0}, s{S_T0}, s{S_T1}
    v_add3_u32 v46, v41, v42, s{S_T0}
    v_lshrrev_b32 v41, 1, v40
    v_lshlrev_b32 v41, 3, v41
    v_and_b32 v42, 1, v40
    v_lshlrev_b32 v42, 1, v42
    v_add_u32 v41, v41, v42
    v_lshrrev_b32 v42, 2, v33           ; r
    v_and_b32 v43, 1, v42
    v_lshlrev_b32 v43, 4, v43
    v_lshrrev_b32 v44, 1, v42
    v_lshlrev_b32 v44, 2, v44
    v_add3_u32 v41, v41, v43, v44       ; row
    v_lshlrev_b32 v41, 8, v41
    v_and_b32 v43, 3, v33
    v_lshlrev_b32 v43, 3, v43           ; c4*8
    s_lshl_b32 s{S_T0}, s{S_WV}, 6
    s_add_u32 s{S_T0}, s{S_T0}, {RING}
    v_add3_u32 v47, v41, v43, s{S_T0}
    v_add_u32 v48, 0x10000, v47
    v_lshrrev_b32 v41, 1, v40
    v_lshlrev_b32 v41, 2, v41
    v_and_b32 v44, 1, v40
    v_lshlrev_b32 v44, 1, v44
    v_add_u32 v41, v41, v44
    v_and_b32 v44, 1, v42
    v_lshlrev_b32 v44, 4, v44
    v_add_u32 v41, v41, v44
    v_lshlrev_b32 v41, 10, v41
    v_lshrrev_b32 v44, 1, v42
    v_lshlrev_b32 v44, 5, v44
    v_add3_u32 v41, v41, v44, v43
    s_lshl_b32 s{S_T0}, s{S_WV}, 8
    s_add_u32 s{S_T0}, s{S_T0}, {RING}
    v_add_u32 v49, s{S_T0}, v41
    v_add_u32 v50, 0x10000, v49
    s_lshl_b32 s{S_T2}, s{S_H}, 17
    s_lshl_b32 s{S_T1}, s{S_WV}, 12      ; w*4 rows*1024
    s_add_u32 s{S_T2}, s{S_T2}, s{S_T1}
""")
    ptr_off = {0: 24, 1: 32, 2: 40, 3: 16}
    chunks = [(m, ks) for m in range(4) for ks in range(8)]
    def issue(ci):
        m, ks = chunks[ci]
        slot = ci % 8
        if ks == 0:
            a(f"""    s_load_dwordx2 s[{S_W}:{S_W+1}], s[0:1], {ptr_off[m]}
    s_mov_b32 s{S_W+2}, 0x400000
    s_mov_b32 s{S_W+3}, 0x20000
    s_waitcnt lgkmcnt(0)""")
        for ii in range(4):
            a(f"""    s_lshl_b32 s{S_T0}, s{S_WV}, 12
    s_add_u32 m0, s{S_T0}, {RING + slot*16384 + ii*1024}""")
            if m == 2:
                a(f"""    s_add_u32 s{S_T1}, s{S_T2}, {ks*16384 + ii*1024}
    buffer_load_dwordx4 v{V_L16}, s[{S_W}:{S_W+3}], s{S_T1} offen {WNT} lds""")
            else:
                a(f"""    s_mov_b32 s{S_T1}, {ks*524288 + ii*32768}
    buffer_load_dwordx4 v46, s[{S_W}:{S_W+3}], s{S_T1} offen {WNT} lds""")
    steps = []
    for ci in range(32):
        m, ks = chunks[ci]
        if m == 2:
            if ks % 2 == 1: steps.append((ci, [ci-1, ci]))
        else: steps.append((ci, [ci]))
    issued = 0
    def issue_upto(limit):
        nonlocal issued
        while issued < min(limit, 32):
            issue(issued); issued += 1
    freed = set()
    issue_upto(8)
    if after_first: after_first()
    for (ci, fr) in steps:
        m, ks = chunks[ci]
        extra = nextra if (after_first and ci <= 7) else 0
        a(f"    s_waitcnt vmcnt({min(63, (issued - (ci+1))*4 + extra)})")
        a("    s_barrier")
        if ci == 9 and at_iter8: at_iter8()
        if ci == 27 and at_iter27: at_iter27()
        if PROLOG_STAMPS and ci in (0, 7, 15, 23, 27, 31):
            a(f"    s_memtime s[{76 + 2*[0,7,15,23,27,31].index(ci)}:{77 + 2*[0,7,15,23,27,31].index(ci)}]")
        while issued < 32 and (issued - 8) in freed: issue(issued); issued += 1
        slot = ci % 8
        if m in (0, 1, 3):
            base = "v47" if slot < 4 else "v48"
            so = (slot % 4) * 16384
            for t in range(2):
                for p in range(4):
                    off = so + (32*(p >> 1) + (p & 1))*256 + 32*t
                    if m == 0: dst = ar(t*64 + 8*ks + 2*p, 2)
                    elif m == 1: dst = ar(128 + t*64 + 8*ks + 2*p, 2)
                    else: dst = vr(56 + 16*(ks & 1) + t*8 + 2*p, 2)
                    a(f"    ds_read_b64_tr_b16 {dst}, {base} offset:{chk(off, 65535)}")
            if m == 3 and ks >= 1:
                pk = ks - 1
                wb = f"v{V_WO}" if pk < 4 else f"v{V_WO2}"
                for t in range(2):
                    for hf in range(2):
                        a(f"    ds_write_b128 {wb}, {vr(56 + 16*(pk & 1) + t*8 + 4*hf, 4)} offset:{(pk%4)*16384 + t*2048 + hf*1024}")
            a("    s_waitcnt lgkmcnt(0)")
            if m == 3 and ks == 7:
                a("    s_barrier")
                for t in range(2):
                    for hf in range(2):
                        a(f"    ds_write_b128 v{V_WO2}, {vr(56 + 16 + t*8 + 4*hf, 4)} offset:{3*16384 + t*2048 + hf*1024}")
                a("    s_waitcnt lgkmcnt(0)")
        else:
            kp = ks // 2
            s0 = slot - 1
            base = "v49" if s0 < 4 else "v50"
            so = (s0 % 4) * 16384
            for m_ in range(4):
                for p in range(4):
                    off = so + (8*(p >> 1) + (p & 1))*1024 + 64*m_
                    a(f"    ds_read_b64_tr_b16 {vr(128 + (m_*4+kp)*8 + 2*p, 2)}, {base} offset:{chk(off, 65535)}")
            a("    s_waitcnt lgkmcnt(0)")
        for c in fr: freed.add(c)
    a("    s_barrier")

def chain_mem0_issue(a, name):
    a(f"""    s_load_dwordx2 s[{S_W2}:{S_W2+1}], s[0:1], 8
    s_mov_b32 s{S_W2+2}, 8192
    s_mov_b32 s{S_W2+3}, 0x20000
    v_lshrrev_b32 v72, 7, v0            ; t>>7
    v_lshlrev_b32 v72, 6, v72           ; *32 cols *2B
    v_bfe_u32 v73, v0, 4, 3
    v_lshlrev_b32 v73, 10, v73          ; token*1024
    v_and_b32 v74, 15, v0
    v_lshlrev_b32 v74, 1, v74
    v_add3_u32 v72, v72, v73, v74
    s_waitcnt lgkmcnt(0)
""")
    for i in range(8):
        a(f"    buffer_load_ushort v{56+2*i}, v72, s[{S_W2}:{S_W2+3}], 0 offen offset:{128*i}")
        a(f"    buffer_load_ushort v{57+2*i}, v72, s[{S_W2}:{S_W2+3}], 0 offen offset:{128*i+32}")
def chain_mem0_finish(a, name):
    a("    v_lshlrev_b32 v73, 2, v0")
    for i in range(8):
        a(f"    v_lshl_or_b32 v{56+2*i}, v{57+2*i}, 16, v{56+2*i}")
        a(f"    ds_write_b32 v73, v{56+2*i} offset:{L_M + 1024*i}")
    a("    s_waitcnt lgkmcnt(0)")
def chain_load_weights2(a, name, after_first=None, at_mid=None, at_late=None, nextra=24):
    RING = L_W
    ws = f"s[{S_WS}:{S_WS+3}]"
    a(f"""
    v_and_b32 v32, 63, v0
    v_and_b32 v33, 15, v32
    v_lshrrev_b32 v40, 4, v32           ; g
    v_lshrrev_b32 v41, 1, v40
    v_lshlrev_b32 v41, 3, v41
    v_and_b32 v42, 1, v40
    v_lshlrev_b32 v42, 1, v42
    v_add_u32 v41, v41, v42
    v_lshrrev_b32 v42, 2, v33           ; r
    v_and_b32 v43, 1, v42
    v_lshlrev_b32 v43, 4, v43
    v_lshrrev_b32 v44, 1, v42
    v_lshlrev_b32 v44, 2, v44
    v_add3_u32 v41, v41, v43, v44       ; row
    v_lshlrev_b32 v41, 8, v41
    v_and_b32 v43, 3, v33
    v_lshlrev_b32 v43, 3, v43           ; c4*8
    s_lshl_b32 s{S_T0}, s{S_WV}, 6
    s_add_u32 s{S_T0}, s{S_T0}, {RING}
    v_add3_u32 v47, v41, v43, s{S_T0}
    v_add_u32 v48, 0x10000, v47
    v_lshrrev_b32 v41, 1, v40
    v_lshlrev_b32 v41, 2, v41
    v_and_b32 v44, 1, v40
    v_lshlrev_b32 v44, 1, v44
    v_add_u32 v41, v41, v44
    v_and_b32 v44, 1, v42
    v_lshlrev_b32 v44, 4, v44
    v_add_u32 v41, v41, v44
    v_lshlrev_b32 v41, 10, v41
    v_lshrrev_b32 v44, 1, v42
    v_lshlrev_b32 v44, 5, v44
    v_add3_u32 v41, v41, v44, v43
    s_lshl_b32 s{S_T0}, s{S_WV}, 8
    s_add_u32 s{S_T0}, s{S_T0}, {RING}
    v_add_u32 v49, s{S_T0}, v41
    v_add_u32 v50, 0x10000, v49
    s_lshl_b32 s{S_T2}, s{S_H}, 17       ; h*131072
    s_lshl_b32 s{S_T1}, s{S_WV}, 12      ; w*4096
    s_add_u32 s{S_T2}, s{S_T2}, s{S_T1}
    s_load_dwordx2 s[{S_W}:{S_W+1}], s[0:1], 40
    s_mov_b32 s{S_W+2}, 0x400000
    s_mov_b32 s{S_W+3}, 0x20000
    s_waitcnt lgkmcnt(0)
""")
    def dma(slot, ii, srd, soff, fl):
        a(f"""    s_lshl_b32 s{S_T0}, s{S_WV}, 12
    s_add_u32 m0, s{S_T0}, {RING + slot*16384 + ii*1024}
    s_add_u32 s{S_T1}, s{S_T2}, {soff}
    buffer_load_dwordx4 v{V_L16}, {srd}, s{S_T1} offen {fl} lds""")
    for ks in range(8):
        for ii in range(4): dma(ks, ii, f"s[{S_W}:{S_W+3}]", ks*16384 + ii*1024, "")
    if after_first: after_first()
    for kp in range(4):
        ci = 2*kp + 1
        a(f"    s_waitcnt vmcnt({min(63, (8 - (ci+1))*4 + nextra)})")
        a("    s_barrier")
        s0 = 2*kp
        base = "v49" if s0 < 4 else "v50"
        so = (s0 % 4) * 16384
        for m_ in range(4):
            for p in range(4):
                off = so + (8*(p >> 1) + (p & 1))*1024 + 64*m_
                a(f"    ds_read_b64_tr_b16 {vr(128 + (m_*4+kp)*8 + 2*p, 2)}, {base} offset:{chk(off, 65535)}")
        a("    s_waitcnt lgkmcnt(0)")
    a("    s_waitcnt vmcnt(0)")
    a("    s_barrier")
    if PROLOG_STAMPS: a("    s_memtime s[76:77]")
    if at_mid: at_mid()
    a(f"""    v_and_b32 v40, 7, v32
    v_lshlrev_b32 v40, 7, v40
    v_min_u32 v40, {6*128}, v40
    s_mov_b32 s{S_T1}, {F_WT}
L_wtw_{name}:
    buffer_load_dword v41, v40, {ws}, s{S_T1} offen sc1
    s_waitcnt vmcnt(0)
    v_cmp_gt_u32 vcc, 32, v41
    s_cbranch_vccz L_wtd_{name}
    s_add_u32 s{S_RETRY}, s{S_RETRY}, 1
    s_cmp_lt_u32 s{S_RETRY}, 1000000
    s_cbranch_scc1 L_wtw_{name}
    s_endpgm
L_wtd_{name}:""")
    chunks = [(m, ks) for m in range(3) for ks in range(8)]
    def issue(ci):
        m, ks = chunks[ci]
        for ii in range(4): dma(ci % 8, ii, ws, WS_WT + m*0x400000 + ks*16384 + ii*1024, "sc1")
    issued = 0
    for ci in range(8): issue(ci)
    issued = 8
    for ci in range(24):
        m, ks = chunks[ci]
        a(f"    s_waitcnt vmcnt({(issued - (ci+1))*4})")
        a("    s_barrier")
        if ci == 19 and at_late: at_late()
        if PROLOG_STAMPS and ci in (0, 7, 15, 19, 23):
            a(f"    s_memtime s[{78 + 2*[0,7,15,19,23].index(ci)}:{79 + 2*[0,7,15,19,23].index(ci)}]")
        if ci >= 1 and issued < 24: issue(issued); issued += 1
        slot = ci % 8
        base = "v47" if slot < 4 else "v48"
        so = (slot % 4) * 16384
        for t in range(2):
            for p in range(4):
                off = so + (32*(p >> 1) + (p & 1))*256 + 32*t
                if m == 0: dst = ar(t*64 + 8*ks + 2*p, 2)
                elif m == 1: dst = ar(128 + t*64 + 8*ks + 2*p, 2)
                else: dst = vr(56 + 16*(ks & 1) + t*8 + 2*p, 2)
                a(f"    ds_read_b64_tr_b16 {dst}, {base} offset:{chk(off, 65535)}")
        if m == 2 and ks >= 1:
            pk = ks - 1
            wb = f"v{V_WO}" if pk < 4 else f"v{V_WO2}"
            for t in range(2):
                for hf in range(2):
                    a(f"    ds_write_b128 {wb}, {vr(56 + 16*(pk & 1) + t*8 + 4*hf, 4)} offset:{(pk%4)*16384 + t*2048 + hf*1024}")
        a("    s_waitcnt lgkmcnt(0)")
        if m == 2 and ks == 7:
            a("    s_barrier")
            for t in range(2):
                for hf in range(2):
                    a(f"    ds_write_b128 v{V_WO2}, {vr(56 + 16 + t*8 + 4*hf, 4)} offset:{3*16384 + t*2048 + hf*1024}")
            a("    s_waitcnt lgkmcnt(0)")
    a("    s_barrier")

def chain_load_mem0(a, name):
    chain_mem0_issue(a, name)
    a("    s_waitcnt vmcnt(0)")
    chain_mem0_finish(a, name)

def delay(a, cyc):
    n = cyc // 4
    while n > 0:
        k = min(n, 16)
        a(f"    s_nop {k-1}")
        n -= k

def init_scalars(a):
    a(f"""    s_mov_b32 s{S_P1W}, {WS_P1}
    s_mov_b32 s{S_P1W2}, {WS_P1 + 4096}
    s_mov_b32 s{S_P1W3}, {WS_P1 + P1C}
    s_mov_b32 s{S_P1W4}, {WS_P1 + P1C + 4096}
    s_mov_b32 s{S_P1X}, {WS_P1 + P1SLOT}
    s_mov_b32 s{S_MW}, {WS_M + 8192}
    s_mov_b32 s{S_MW2}, {WS_M + 8192 + 4096}
    s_mov_b32 s{S_MX}, {WS_M + 3*8192}
    s_lshl_b32 s{S_T1}, s{S_H}, 11
    s_lshl_b32 s{S_T2}, s{S_WV}, 9
    s_add_u32 s{S_T1}, s{S_T1}, s{S_T2}
    s_add_u32 s{S_KMP}, s{S_T1}, {WS_KM}
    s_add_u32 s{S_VMP}, s{S_T1}, {WS_VM}
    s_add_u32 s{S_T0}, s{S_H}, 32
    s_lshl_b32 s{S_T0}, s{S_T0}, 13
    s_lshl_b32 s{S_T2}, s{S_WV}, 11
    s_add_u32 s{S_T0}, s{S_T0}, s{S_T2}
    s_add_u32 s{S_KN}, s{S_T0}, {WS_KF}
    s_add_u32 s{S_VN}, s{S_T0}, {WS_VF}
    s_add_u32 s{S_T0}, s{S_H}, 64
    s_lshl_b32 s{S_T0}, s{S_T0}, 13
    s_add_u32 s{S_PF}, s{S_T0}, s{S_PFW}
    s_lshl_b32 s{S_T0}, s{S_H}, 7
    s_add_u32 s{S_FCH}, s{S_T0}, {F_CH}""")

def chain_loop(a, name, opt):
    ws = f"s[{S_WS}:{S_WS+3}]"
    R_A = 32
    ACC = 64
    QX, QY, KX_, KY, VX, VY = [ACC + 4*i for i in range(6)]
    WB = [88, 96, 104, 112, 120]
    NWB = len(WB)
    A = lambda ks: vr(R_A + 4*ks, 4)
    stamp = opt.get('stamp')
    ntf = 'nt' if opt.get('nt') else ''
    pts = opt.get('pts', [])
    def ts(nm):
        if not stamp: return
        if nm == 0: a(f"    s_memtime s[{S_TS}:{S_TS+1}]")
        elif nm in pts:
            i = pts.index(nm) + 1
            a(f"    s_memtime s[{S_TS+2*i}:{S_TS+2*i+1}]")
    L = a.lds
    def z2(reg): a(f"    v_mov_b64 {vr(reg,2)}, 0")
    def rt(i):
        if opt.get('rt'): a(f"    s_memrealtime s[{S_TS+2*i}:{S_TS+2*i+1}]")
    def wq_read(i, hf):
        ks, t = i // 2, i % 2
        base = f"v{V_WO}" if ks < 4 else f"v{V_WO2}"
        a.ds(f"ds_read_b128 {vr(WB[i % NWB] + 4*hf, 4)}, {base} offset:{(ks%4)*16384 + t*2048 + hf*1024}", ('W', i, hf))
    a(f"    s_mov_b32 s{S_STEP}, 0")
    init_scalars(a)
    for i in range(12): z2(ACC + 2*i)
    L.reset()
    for i in range(NWB):
        wq_read(i, 0); wq_read(i, 1)
    a(f"L_step_{name}:")
    a("    s_waitcnt lgkmcnt(0)")
    a("    s_barrier")
    if opt.get('rawlog'):
        npt = len(pts)
        a(f"""    s_lshl_b32 s98, s{S_H}, 2
    s_add_u32 s98, s98, s{S_WV}
    s_lshl_b32 s98, s98, 12
    s_lshl_b32 s93, s{S_STEP}, 5
    s_add_u32 s98, s98, s93
    s_add_u32 s98, s98, {WS_FLAG + 0x40000}""")
        for i in range(8):
            a(f"    v_mov_b32 v{32+i}, s{S_TS + 2*i}" if i <= npt else f"    v_mov_b32 v{32+i}, 0")
        a(f"""    s_mov_b64 exec, 1
    buffer_store_dwordx4 v[32:35], off, {ws}, s98
    buffer_store_dwordx4 v[36:39], off, {ws}, s98 offset:16
    s_mov_b64 exec, -1""")
    if opt.get('steplog'):
        a(f"""    s_cmp_lg_u32 s{S_WV}, 0
    s_cbranch_scc1 L_nolog_{name}
    s_memrealtime s[94:95]
    s_memtime s[96:97]
    s_waitcnt lgkmcnt(0)
    s_lshl_b32 s98, s{S_H}, 10
    s_lshl_b32 s93, s{S_STEP}, 3
    s_add_u32 s98, s98, s93
    s_add_u32 s98, s98, {WS_FLAG + 0x20000}
    v_mov_b32 v32, s94
    v_mov_b32 v33, s96
    s_mov_b64 exec, 1
    buffer_store_dwordx2 v[32:33], off, {ws}, s98
    s_mov_b64 exec, -1
L_nolog_{name}:""")
    L.reset()
    for i in range(NWB):
        L.tags[('W', i, 0)] = 0; L.tags[('W', i, 1)] = 0
    ts(0)
    if opt.get('rt'):
        a(f"""    s_cmp_eq_u32 s{S_STEP}, {opt['rt']+1}
    s_cbranch_scc0 L_nort_{name}
    v_mov_b32 v32, s{S_TS}
    v_mov_b32 v33, s{S_TS+2}
    v_mov_b32 v34, s{S_TS+4}
    v_mov_b32 v35, s{S_TS+6}
    v_mov_b32 v36, s{S_TS+8}
    v_mov_b32 v37, s{S_TS+10}
    v_mov_b32 v38, 0
    v_mov_b32 v39, 0
    s_lshl_b32 s{S_T0}, s{S_H}, 2
    s_add_u32 s{S_T0}, s{S_T0}, s{S_WV}
    s_lshl_b32 s{S_T0}, s{S_T0}, 5
    s_add_u32 s{S_T0}, s{S_T0}, {WS_FLAG + 0x4000}
    v_mov_b32 v40, 0
    s_mov_b64 exec, 1
    buffer_store_dwordx4 v[32:35], v40, {ws}, s{S_T0} offen
    buffer_store_dwordx4 v[36:39], v40, {ws}, s{S_T0} offen offset:16
    s_mov_b64 exec, -1
    s_waitcnt vmcnt(0)
L_nort_{name}:""")
    rt(0)
    for ks in range(4): a.ds(f"ds_read_b128 {A(ks)}, v{V_AR} offset:{L_M + ks*1024}", ('A', ks))
    flags = opt.get('flags')
    if flags:
        a(f"""    v_readfirstlane_b32 s{S_T0}, v0
    s_cmp_ge_u32 s{S_T0}, s{S_FLT}
    s_cbranch_scc1 L_kvok_{name}
L_kvw_{name}:
    buffer_load_dword v0, off, {ws}, s{S_FLN} sc1
    s_waitcnt vmcnt(0)
    v_readfirstlane_b32 s{S_T0}, v0
    s_cmp_ge_u32 s{S_T0}, s{S_FLT}
    s_cbranch_scc1 L_kvok_{name}
    s_sleep 2
    s_add_u32 s{S_RETRY}, s{S_RETRY}, 1
    s_cmp_lt_u32 s{S_RETRY}, 1000000
    s_cbranch_scc1 L_kvw_{name}
    s_endpgm
L_kvok_{name}:""")
    wqueue = [(i, hf) for i in range(NWB, 16) for hf in range(2)]
    def nextw():
        if wqueue:
            i, hf = wqueue.pop(0); wq_read(i, hf)
    def st_reset1(): a.vmem(f"buffer_store_dword v{V_NEG1}, v{V_P1R}, {ws}, s{S_P1X} offen")
    def st_reset2(): a.vmem(f"buffer_store_dword v{V_NEG1}, v{V_P1R}, {ws}, s{S_P1X} offen offset:1024")
    def st_reset3():
        a(f"    s_mov_b64 exec, s[{S_MEX}:{S_MEX+1}]")
        a.vmem(f"buffer_store_dword v{V_NEG1}, v{V_MS}, {ws}, s{S_MX} offen")
        a(f"    s_mov_b64 exec, -1")
    def pf():
        a(f"    v_lshlrev_b32 v{V_TR}, 2, v{V_L16}")
        a.vmem(f"buffer_load_dword v{V_TR}, v{V_TR}, {ws}, s{S_PF} offen {ntf}")
        a(f"    s_add_u32 s{S_T0}, s{S_PF}, {0 if opt.get('samekv') else 32*8192}")
        a(f"    s_cmp_lt_u32 s{S_STEP}, 61")
        a(f"    s_cselect_b32 s{S_PF}, s{S_T0}, s{S_PF}")
        if flags:
            a(f"""    s_add_u32 s{S_T0}, s{S_STEP}, 3
    s_min_u32 s{S_T0}, s{S_T0}, 63
    s_lshr_b32 s{S_FLT}, s{S_T0}, 2
    s_add_u32 s{S_FLT}, s{S_FLT}, 1
    s_and_b32 s{S_T0}, s{S_T0}, 3
    s_lshl_b32 s{S_T0}, s{S_T0}, 5
    s_add_u32 s{S_T0}, s{S_T0}, s{S_H}
    s_lshl_b32 s{S_T0}, s{S_T0}, 2
    s_add_u32 s{S_FLN}, s{S_T0}, {F_KV}""")
            a.vmem(f"buffer_load_dword v0, off, {ws}, s{S_FLN} sc1")
    def upd_ring():
        pass
    def pubch():
        if not flags: return
        a(f"""    s_cmp_lg_u32 s{S_WV}, 0
    s_cbranch_scc1 L_nopub_{name}
    v_mov_b32 v0, s{S_STEP}
    s_mov_b64 exec, 1
    buffer_store_dword v0, off, {ws}, s{S_FCH} sc1
    s_mov_b64 exec, -1
L_nopub_{name}:""")
    extra = {1: lambda: (pubch(), pf()), 5: st_reset1, 6: st_reset2, 7: st_reset3}
    for ks in range(8):
        L.need(('A', ks), ('W', 2*ks, 1))
        a(f"    v_smfmac_f32_16x16x64_bf16 {vr(QX,4)}, {A(ks)}, {vr(WB[(2*ks) % NWB],8)}, v{V_IDX}")
        nextw()
        L.need(('W', 2*ks+1, 1))
        a(f"    v_smfmac_f32_16x16x64_bf16 {vr(QY,4)}, {A(ks)}, {vr(WB[(2*ks+1) % NWB],8)}, v{V_IDX}")
        nextw()
        a(f"    v_smfmac_f32_16x16x64_bf16 {vr(KX_,4)}, {A(ks)}, {wk(0,ks)}, v{V_IDX}")
        nextw()
        a(f"    v_smfmac_f32_16x16x64_bf16 {vr(KY,4)}, {A(ks)}, {wk(1,ks)}, v{V_IDX}")
        if ks == 0:
            a("    s_waitcnt vmcnt(0)")
            for k2 in range(4, 8): a.ds(f"ds_read_b128 {A(k2)}, v{V_AR} offset:{L_M + k2*1024}", ('A', k2))
        nextw()
        if ks in extra: extra[ks]()
        ts(f'k{ks}')
    ts('QK')
    KXF = 96
    QF = 64
    KF = R_A
    vs = []
    for ks in range(8):
        vs.append(f"    v_smfmac_f32_16x16x64_bf16 {vr(VX,4)}, {A(ks)}, {wv(0,ks)}, v{V_IDX}")
        vs.append(f"    v_smfmac_f32_16x16x64_bf16 {vr(VY,4)}, {A(ks)}, {wv(1,ks)}, v{V_IDX}")
    def kxr(i): a.ds(f"ds_read_b128 {vr(KXF + 4*i, 4)}, v{V_L16} offset:{L_KX + i*1024}", ('KX', i))
    for j in range(4):
        a(vs[j]); kxr(j)
    ts('v4')
    a(f"    v_add_f32 v{QX}, v{QX}, v{QX+1}")
    a(f"    v_add_f32 v{QX+2}, v{QX+2}, v{QX+3}")
    a(f"    v_add_f32 v{QY}, v{QY}, v{QY+1}")
    a(f"    v_add_f32 v{QY+2}, v{QY+2}, v{QY+3}")
    kxr(4)
    a(f"    v_cvt_pk_bf16_f32 v{QX}, v{QX}, v{QY}")
    a(f"    v_cvt_pk_bf16_f32 v{QX+2}, v{QX+2}, v{QY+2}")
    a(f"    v_add_f32 v{KX_}, v{KX_}, v{KX_+1}")
    a(f"    v_add_f32 v{KX_+2}, v{KX_+2}, v{KX_+3}")
    a.ds(f"ds_write_b32 v{V_QW}, v{QX} offset:{L_Q}")
    a.ds(f"ds_write_b32 v{V_QW}, v{QX+2} offset:{L_Q+272}")
    a(f"    v_add_f32 v{KY}, v{KY}, v{KY+1}")
    a(f"    v_add_f32 v{KY+2}, v{KY+2}, v{KY+3}")
    kxr(5)
    a(f"    v_cvt_pk_bf16_f32 v{KX_}, v{KX_}, v{KY}")
    a(f"    v_cvt_pk_bf16_f32 v{KX_+2}, v{KX_+2}, v{KY+2}")
    a.ds(f"ds_write_b32 v{V_QW}, v{KX_} offset:{L_K}")
    a.ds(f"ds_write_b32 v{V_QW}, v{KX_+2} offset:{L_K+272}", 'kw')
    ts('vpost')
    a(vs[4]); kxr(6)
    a(vs[5]); kxr(7)
    pubf = opt.get('pubflag', 'sc1')
    nopub = opt.get('nopub')
    a(vs[6])
    if not nopub: a.vmem(f"buffer_store_dword v{KX_}, v{V_KM}, {ws}, s{S_KMP} offen {pubf}")
    a(vs[7])
    if not nopub: a.vmem(f"buffer_store_dword v{KX_+2}, v{V_KM}, {ws}, s{S_KMP} offen offset:16 {pubf}")
    ts('preB2w')
    L.need('kw', ('KX', 7))
    ts('preB2')
    a("    s_barrier")
    ts('B2')
    a(f"    s_mov_b32 m0, s{S_KM0}")
    for ks in range(4):
        a.ds(f"ds_read_b128 {vr(QF + 4*ks, 4)}, v{V_QR} offset:{L_Q + ks*64}", ('QF', ks))
        a(vs[8 + ks])
        if ks == 0:
            a(f"    s_xor_b32 s{S_P1X}, s{S_P1X}, 0x40000\n    s_add_u32 s{S_MX}, s{S_MX}, 8192\n    s_and_b32 s{S_MX}, s{S_MX}, {hex(WS_M | 0x7fff)}")
        if ks == 2:
            a(f"    s_add_u32 s{S_KMP}, s{S_KMP}, 65536")
        if ks == 1: a.vmem(f"buffer_load_dwordx4 v{V_L16}, {ws}, s{S_KN} offen sc1 {ntf} lds")
    for ks in range(4):
        a.ds(f"ds_read_b128 {vr(KF + 4*ks, 4)}, v{V_KR} offset:{L_K + ks*64}", ('KF', ks))
        a(vs[12 + ks])
        if ks == 1: a.vmem(f"buffer_load_dwordx4 v{V_L16}, {ws}, s{S_KN} offen offset:1024 sc1 {ntf} lds")
        if ks == 2: a(f"    s_add_u32 s{S_KN}, s{S_KN}, {0 if opt.get('samekv') else 32*8192}")
    ts('V')
    ST0, ST1, ST2 = R_A + 16, R_A + 20, R_A + 24
    LBR, OX, OY, LL = 88, 92, 96, 100
    for ks in range(4):
        L.need(('QF', ks), ('KX', 4 + ks))
        c0 = "0" if ks == 0 else vr(ST0,4)
        c1 = "0" if ks == 0 else vr(ST1,4)
        a(f"    v_mfma_f32_16x16x32_bf16 {vr(ST0,4)}, {vr(KXF + 4*ks,4)}, {vr(QF+4*ks,4)}, {c0}")
        if ks == 0: a.ds(f"ds_read_b128 {vr(LBR,4)}, v{V_L16} offset:{L_LB}", 'LB')
        if ks == 1: z2(OX)
        if ks == 2: z2(OX+2)
        if ks == 3: a(f"    v_add_f32 v{VX}, v{VX}, v{VX+1}\n    v_add_f32 v{VX+2}, v{VX+2}, v{VX+3}")
        a(f"    v_mfma_f32_16x16x32_bf16 {vr(ST1,4)}, {vr(KXF + 16 + 4*ks,4)}, {vr(QF+4*ks,4)}, {c1}")
        if ks == 1: z2(OY)
        if ks == 2: z2(OY+2)
        if ks == 3: a(f"    v_add_f32 v{VY}, v{VY}, v{VY+1}\n    v_add_f32 v{VY+2}, v{VY+2}, v{VY+3}")
    ts('Sx')
    for ks in range(4):
        L.need(('KF', ks))
        c2 = "0" if ks == 0 else vr(ST2,4)
        a(f"    v_mfma_f32_16x16x32_bf16 {vr(ST2,4)}, {vr(KF + 4*ks,4)}, {vr(QF+4*ks,4)}, {c2}")
        if ks == 0:
            a(f"    v_cvt_pk_bf16_f32 v{V_VBX+2}, v{VX}, v{VX+2}\n    v_cvt_pk_bf16_f32 v{V_VBY+2}, v{VY}, v{VY+2}")
        if ks == 1:
            a(f"    v_lshrrev_b32 v{VX}, 2, v{V_L16}")
        if ks == 2 and not nopub:
            a.vmem(f"buffer_store_dword v{V_VBX+2}, v{VX}, {ws}, s{S_VMP} offen {pubf}")
        if ks == 3:
            if not nopub: a.vmem(f"buffer_store_dword v{V_VBY+2}, v{VX}, {ws}, s{S_VMP} offen offset:256 {pubf}")
            else: a("    s_nop 0")
    a(f"""    s_cmp_eq_u32 s{S_STEP}, {opt.get('nsteps',64)-1}
    s_cbranch_scc1 L_done_{name}""")
    ts('S')
    X = 64
    WACC = 104
    for r in range(4):
        a(f"    v_cndmask_b32 v{X+r}, v{ST0+r}, v{ST1+r}, s[{S_HALF}:{S_HALF+1}]")
    M_ = X + 4; T_ = X + 5
    a(f"    v_max3_f32 v{M_}, v{X}, v{X+1}, v{X+2}")
    a(f"    v_max3_f32 v{T_}, v{X+3}, v{ST2}, v{ST2+1}")
    a(f"    v_max3_f32 v{M_}, v{M_}, v{ST2+2}, v{ST2+3}")
    a(f"    v_max_f32 v{M_}, v{M_}, v{T_}")
    a("    s_nop 1")
    a(f"    v_max_f32_dpp v{M_}, v{M_}, v{M_} quad_perm:[1,0,3,2] row_mask:0xf bank_mask:0xf")
    a(f"    v_mov_b32 v{T_}, v{M_}")
    a("    s_nop 1")
    a(f"    v_permlane16_swap_b32 v{M_}, v{T_}")
    a(f"    v_max_f32 v{M_}, v{M_}, v{T_}")
    a(f"    v_mov_b32 v{T_}, v{M_}")
    a("    s_nop 1")
    a(f"    v_permlane32_swap_b32 v{M_}, v{T_}")
    a(f"    v_max_f32 v{M_}, v{M_}, v{T_}")
    a(f"    v_mul_f32 v{M_}, s{S_C}, v{M_}")
    ts('max')
    E = X + 6
    srcs = [X, X+1, ST2, ST2+1, X+2, X+3, ST2+2, ST2+3]
    for i, s_ in enumerate(srcs):
        a(f"    v_fma_f32 v{E+i}, v{s_}, s{S_C}, -v{M_}")
    for i in range(8):
        a(f"    v_exp_f32 v{E+i}, v{E+i}")
    P = ST0
    a(f"    v_cvt_pk_bf16_f32 v{P}, v{E}, v{E+1}")
    a(f"    v_cvt_pk_bf16_f32 v{P+1}, v{E+2}, v{E+3}")
    a(f"    v_cvt_pk_bf16_f32 v{P+2}, v{E+4}, v{E+5}")
    a(f"    v_cvt_pk_bf16_f32 v{P+3}, v{E+6}, v{E+7}")
    ts('smax')
    L.need('LB')
    a("    s_nop 1")
    a(f"    v_mfma_f32_16x16x32_bf16 {vr(LL,4)}, {vr(P,4)}, {vr(LBR,4)}, 0")
    a(f"    v_smfmac_f32_16x16x64_bf16 {vr(OX,4)}, {vr(P,4)}, {vr(V_VBX,8)}, v{V_IDX}")
    a(f"    v_smfmac_f32_16x16x64_bf16 {vr(OY,4)}, {vr(P,4)}, {vr(V_VBY,8)}, v{V_IDX}")
    ts('PV')
    a.vmem(f"buffer_load_dwordx2 {vr(V_VBX,2)}, v{V_VX}, {ws}, s{S_VN} offen sc1 {ntf}")
    for i in range(5): z2(WACC + 2*i)
    a(f"    v_add_f32 v{LL}, v{LL}, v{LL+1}")
    a(f"    v_add_f32 v{LL+2}, v{LL+2}, v{LL+3}")
    a(f"    v_rcp_f32 v{LL}, v{LL}")
    a(f"    v_rcp_f32 v{LL+2}, v{LL+2}")
    a(f"    v_add_f32 v{OX}, v{OX}, v{OX+1}")
    a(f"    v_add_f32 v{OX+2}, v{OX+2}, v{OX+3}")
    a(f"    v_add_f32 v{OY}, v{OY}, v{OY+1}")
    a(f"    v_add_f32 v{OY+2}, v{OY+2}, v{OY+3}")
    a.vmem(f"buffer_load_dwordx2 {vr(V_VBX+4,2)}, v{V_VX}, {ws}, s{S_VN} offen offset:512 sc1 {ntf}")
    a(f"    v_mul_f32 v{OX}, v{OX}, v{LL}")
    a(f"    v_mul_f32 v{OY}, v{OY}, v{LL}")
    a(f"    v_mul_f32 v{OX+2}, v{OX+2}, v{LL+2}")
    a(f"    v_mul_f32 v{OY+2}, v{OY+2}, v{LL+2}")
    a(f"    v_cvt_pk_bf16_f32 v{OX}, v{OX}, v{OY}")
    a(f"    v_cvt_pk_bf16_f32 v{OX+2}, v{OX+2}, v{OY+2}")
    ts('opost')
    a.ds(f"ds_write_b32 v{V_QW}, v{OX} offset:{L_O}")
    a.ds(f"ds_write_b32 v{V_QW}, v{OX+2} offset:{L_O+272}", 'ow')
    for i in range(5, 8): z2(WACC + 2*i)
    a.vmem(f"buffer_load_dwordx2 {vr(V_VBY,2)}, v{V_VX}, {ws}, s{S_VN} offen offset:1024 sc1 {ntf}")
    ts('preB3w')
    L.need('ow')
    ts('preB3')
    a("    s_barrier")
    ts('B3')
    rt(5)
    OA = 64
    for kp in range(4):
        a.ds(f"ds_read_b128 {vr(OA+4*kp,4)}, v{V_QR} offset:{L_O + kp*64}", ('O', kp))
    a.ds(f"ds_read_b128 {vr(R_A,4)}, v{V_L16} offset:{L_SEL}", 'SEL')
    a.vmem(f"buffer_load_dwordx2 {vr(V_VBY+4,2)}, v{V_VX}, {ws}, s{S_VN} offen offset:1536 sc1 {ntf}")
    ts('B3r')
    SELR = R_A; RD = R_A + 4
    G1A, G1B = R_A + 8, R_A + 16
    def shot(G, va, so, so2, off2):
        a(f"    buffer_load_dwordx4 {vr(G,4)}, v{va}, {ws}, s{so} offen sc1")
        a(f"    buffer_load_dwordx4 {vr(G+4,4)}, v{va}, {ws}, s{so2} offen offset:{off2} sc1")
    early = opt.get('early', {0: 1, 1: 2})
    for m_ in range(4):
        for kp in range(4):
            L.need(('O', kp))
            a(f"    v_smfmac_f32_16x16x64_bf16 {vr(WACC+4*m_,4)}, {vr(OA+4*kp,4)}, {wo(m_,kp)}, v{V_IDX}")
            if m_ == 0 and kp == 1:
                a(f"    s_add_u32 s{S_VMP}, s{S_VMP}, 65536\n    s_add_u32 s{S_VN}, s{S_VN}, {0 if opt.get('samekv') else 32*8192}\n    s_add_u32 s{S_STEP}, s{S_STEP}, 1")
            if kp == 0: ts(f'w{m_}')
            if m_ >= 1 and kp == 1:
                wo_post(a, WACC, m_ - 1, ws)
                for w_, pst in early.items():
                    if pst == m_ - 1:
                        a(f"    s_cmp_eq_u32 s{S_WV}, {w_}\n    s_cbranch_scc0 L_{name}_ns{w_}")
                        shot(G1A, V_P1R, S_P1W, S_P1W, 1024)
                        a(f"L_{name}_ns{w_}:")
    ts('wend')
    a("    s_nop 7")
    wo_post(a, WACC, 3, ws)
    ts('Wo')
    rt(1)
    def cons1(G):
        a(f"    v_mfma_f32_16x16x32_bf16 {vr(RD,4)}, {vr(SELR,4)}, {vr(G,4)}, 0")
        a(f"    v_mfma_f32_16x16x32_bf16 {vr(RD,4)}, {vr(SELR,4)}, {vr(G+4,4)}, {vr(RD,4)}")
    L.need('SEL')
    dw = opt.get('dw', {2: 40, 3: 140})
    gap1 = opt.get('gap1', 100)
    if opt.get('roll'):
        k1 = opt.get('k1', 3)
        a(f"""    s_cmp_eq_u32 s{S_WV}, 3
    s_cbranch_scc1 L_{name}_t3
    s_cmp_eq_u32 s{S_WV}, 2
    s_cbranch_scc1 L_{name}_t2
    s_cmp_eq_u32 s{S_WV}, 1
    s_cbranch_scc1 L_{name}_t1""")
        for w_ in range(4):
            if w_ > 0: a(f"L_{name}_t{w_}:")
            delay(a, dw[w_])
            if w_ < 3: a(f"    s_branch L_{name}_td")
        a(f"L_{name}_td:")
        pollr(a, name + "_p1", G1A, R_A + 24, V_P1R, S_P1W, S_P1W, 1024, ws, k1, gap1, None, (91 if opt.get('cnt') else None))
        cons1(G1A)
    else:
        a(f"""    s_cmp_eq_u32 s{S_WV}, 3
        s_cbranch_scc1 L_{name}_t3
        s_cmp_eq_u32 s{S_WV}, 2
        s_cbranch_scc1 L_{name}_t2
        s_cmp_eq_u32 s{S_WV}, 1
        s_cbranch_scc1 L_{name}_t1""")
        for w_ in range(4):
            if w_ > 0: a(f"L_{name}_t{w_}:")
            nm = f"{name}_p1w{w_}"
            if w_ in early:
                younger = 2 * (3 - early[w_])
                pollx(a, nm, G1A, G1B, R_A + 24, V_P1R, S_P1W, S_P1W, 1024, ws, True, younger, 0, gap1, cons1, f"L_{name}_p1j", (91 if opt.get('cnt') else None))
            else:
                pollx(a, nm, G1A, G1B, R_A + 24, V_P1R, S_P1W, S_P1W, 1024, ws, False, 0, dw[w_], gap1, cons1, f"L_{name}_p1j", (91 if opt.get('cnt') else None))
    a(f"L_{name}_p1j:")
    ts('p1ok')
    rt(2)
    a("    s_nop 7")
    a(f"    v_add_f32_dpp v{RD}, v{RD}, v{RD} row_ror:8 row_mask:0xf bank_mask:0xf")
    a(f"    v_add_f32_dpp v{RD+1}, v{RD+1}, v{RD+1} row_ror:8 row_mask:0xf bank_mask:0xf")
    a("    s_nop 0")
    a(f"    v_add_f32_dpp v{RD}, v{RD}, v{RD} row_ror:4 row_mask:0xf bank_mask:0xf")
    a(f"    v_add_f32_dpp v{RD+1}, v{RD+1}, v{RD+1} row_ror:4 row_mask:0xf bank_mask:0xf")
    a(f"    v_cvt_pk_bf16_f32 v{RD}, v{RD}, v{RD+1}")
    a(f"    s_mov_b64 exec, s[{S_MEX}:{S_MEX+1}]")
    a(f"    buffer_store_dword v{RD}, v{V_MS}, {ws}, s{S_MW} offen")
    a(f"    s_mov_b64 exec, -1")
    ts('Mst')
    rt(3)
    if opt.get('ackdiag2'):
        a("    s_waitcnt vmcnt(0)")
        ts('ack2')
    d2 = opt.get('d2', 160); gap2 = opt.get('gap2', 100)
    for i in range(NWB):
        wq_read(i, 0); wq_read(i, 1)
    a(f"""    s_xor_b32 s{S_P1W}, s{S_P1W}, 0x40000
    s_xor_b32 s{S_P1W2}, s{S_P1W2}, 0x40000
    s_xor_b32 s{S_P1W3}, s{S_P1W3}, 0x40000
    s_xor_b32 s{S_P1W4}, s{S_P1W4}, 0x40000""")
    wave_delay(a, name + "_h2", d2 - 160, opt.get('stag2', 0))
    def fill2a():
        for i in range(12): z2(ACC + 2*i)
        delay(a, gap2 - 48)
    G2A, G2B = R_A + 24, R_A + 16
    def cons2(G):
        ts('p2ok')
        a(f"    ds_write_b128 v{V_MP}, {vr(G,4)} offset:{L_M}")
        a(f"    ds_write_b128 v{V_MP}, {vr(G+4,4)} offset:{L_M+4096}")
    if opt.get('roll'):
        if opt.get('k2', 3) == 1:
            for i in range(12): z2(ACC + 2*i)
        pollr(a, name + "_p2", G2A, RD, V_MP, S_MW, S_MW2, 0, ws, opt.get('k2', 3), gap2, fill2a, (92 if opt.get('cnt') else None))
        cons2(G2A)
    else:
        poll2(a, name + "_p2", G2A, G2B, RD, V_MP, S_MW, S_MW2, 0, ws, fill2a, lambda: None, cons2, (92 if opt.get('cnt') else None), lambda: ts('shot2'))
    rt(4)
    a(f"""    s_add_u32 s{S_MW}, s{S_MW}, 8192
    s_and_b32 s{S_MW}, s{S_MW}, {hex(WS_M | 0x7fff)}
    s_add_u32 s{S_MW2}, s{S_MW}, 4096""")
    ts('Mwr')
    if stamp:
        a("    s_waitcnt lgkmcnt(0)")
        for i in range(1, len(pts)+1):
            a(f"    s_sub_u32 s{S_T0}, s{S_TS+2*i}, s{S_TS}\n    s_add_u32 s{79+i}, s{79+i}, s{S_T0}")
    a(f"""    s_branch L_step_{name}
L_done_{name}:""")
    if flags:
        a(f"""    s_waitcnt vmcnt(0)
    s_barrier
    s_cmp_lg_u32 s{S_WV}, 0
    s_cbranch_scc1 L_nopub2_{name}
    v_mov_b32 v0, 64
    s_mov_b64 exec, 1
    buffer_store_dword v0, off, {ws}, s{S_FCH} sc1
    s_mov_b64 exec, -1
L_nopub2_{name}:""")

def wo_post(a, WACC, m, ws):
    X = WACC + 4*m
    a(f"    v_cvt_pk_bf16_f32 v{X}, v{X}, v{X+1}")
    a(f"    v_cvt_pk_bf16_f32 v{X+2}, v{X+2}, v{X+3}")
    s0, s1 = (S_P1W, S_P1W3) if m < 2 else (S_P1W2, S_P1W4)
    a(f"    buffer_store_dword v{X}, v{V_P1S}, {ws}, s{s0} offen offset:{(m & 1)*2048}")
    a(f"    buffer_store_dword v{X+2}, v{V_P1S}, {ws}, s{s1} offen offset:{(m & 1)*2048}")

def wave_delay(a, nm, d, stag):
    if d <= 0: return
    if stag == 0:
        delay(a, d); return
    for w in range(3):
        dl = max(0, d - stag*(3-w))
        a(f"    s_cmp_eq_u32 s{S_WV}, {w}\n    s_cbranch_scc0 L_{nm}_w{w}")
        delay(a, dl)
        a(f"    s_branch L_{nm}_e\nL_{nm}_w{w}:")
    delay(a, d)
    a(f"L_{nm}_e:")

def poll(a, nm, G, vaddr, soff, soff2, off2, ws, T, filler=None, cnt=None):
    s2 = soff2 if soff2 is not None else soff
    def lds():
        a(f"    buffer_load_dwordx4 {vr(G,4)}, v{vaddr}, {ws}, s{soff} offen sc1")
        a(f"    buffer_load_dwordx4 {vr(G+4,4)}, v{vaddr}, {ws}, s{s2} offen offset:{off2} sc1")
    lds()
    if filler: filler()
    a(f"""    s_waitcnt vmcnt(0)
    v_max_u32 v{T}, v{G}, v{G+4}
    v_cmp_eq_u32 vcc, -1, v{T}
    s_cbranch_vccz L_{nm}_ok
    s_mov_b64 exec, vcc""")
    if cnt: a(f"    s_add_u32 s{cnt}, s{cnt}, 1")
    lds()
    a(f"L_{nm}_loop:")
    a("    s_nop 15")
    lds()
    a(f"""    s_waitcnt vmcnt(2)
    s_mov_b64 exec, -1
    v_max_u32 v{T}, v{G}, v{G+4}
    v_cmp_eq_u32 vcc, -1, v{T}
    s_cbranch_vccz L_{nm}_ok2
    s_mov_b64 exec, vcc
    s_add_u32 s{S_RETRY}, s{S_RETRY}, 1
    s_cmp_lt_u32 s{S_RETRY}, 1000000
    s_cbranch_scc1 L_{nm}_loop
    s_mov_b64 exec, -1
    s_endpgm
L_{nm}_ok2:
    s_waitcnt vmcnt(0)
L_{nm}_ok:""")


def poll2(a, nm, GA, GB, T, vaddr, soff, soff2, off2, ws, fillA, fillB, consume, cnt=None, tsA=None):
    s2 = soff2 if soff2 is not None else soff
    def lds(G):
        a(f"    buffer_load_dwordx4 {vr(G,4)}, v{vaddr}, {ws}, s{soff} offen sc1")
        a(f"    buffer_load_dwordx4 {vr(G+4,4)}, v{vaddr}, {ws}, s{s2} offen offset:{off2} sc1")
    lds(GA)
    fillA()
    lds(GB)
    fillB()
    a("    s_waitcnt vmcnt(2)")
    if tsA: tsA()
    a(f"""    v_max_u32 v{T}, v{GA}, v{GA+4}
    v_cmp_eq_u32 vcc, -1, v{T}
    s_cbranch_vccz L_{nm}_okA""")
    if cnt: a(f"    s_add_u32 s{cnt}, s{cnt}, 1")
    a(f"""    s_waitcnt vmcnt(0)
    v_max_u32 v{T}, v{GB}, v{GB+4}
    v_cmp_eq_u32 vcc, -1, v{T}
    s_cbranch_vccz L_{nm}_okB""")
    if cnt: a(f"    s_add_u32 s{cnt}, s{cnt}, 0x100")
    a("    s_mov_b64 exec, vcc")
    lds(GB)
    a(f"L_{nm}_loop:")
    a("    s_nop 15")
    lds(GB)
    a(f"""    s_waitcnt vmcnt(2)
    s_mov_b64 exec, -1
    v_max_u32 v{T}, v{GB}, v{GB+4}
    v_cmp_eq_u32 vcc, -1, v{T}
    s_cbranch_vccz L_{nm}_okB
    s_mov_b64 exec, vcc
    s_add_u32 s{S_RETRY}, s{S_RETRY}, 1
    s_cmp_lt_u32 s{S_RETRY}, 1000000
    s_cbranch_scc1 L_{nm}_loop
    s_mov_b64 exec, -1
    s_endpgm
L_{nm}_okB:""")
    consume(GB)
    a(f"    s_branch L_{nm}_join")
    a(f"L_{nm}_okA:")
    consume(GA)
    a(f"L_{nm}_join:")


def pollx(a, nm, GA, GB, T, vaddr, soff, soff2, off2, ws, issued, younger, d, gap, consume, join, cnt=None):
    def lds(G):
        a(f"    buffer_load_dwordx4 {vr(G,4)}, v{vaddr}, {ws}, s{soff} offen sc1")
        a(f"    buffer_load_dwordx4 {vr(G+4,4)}, v{vaddr}, {ws}, s{soff2} offen offset:{off2} sc1")
    if issued:
        a(f"    s_waitcnt vmcnt({younger})")
        a(f"""    v_max_u32 v{T}, v{GA}, v{GA+4}
    v_cmp_eq_u32 vcc, -1, v{T}
    s_cbranch_vccz L_{nm}_okA""")
        lds(GB)
    else:
        delay(a, d)
        lds(GA)
        delay(a, gap)
        lds(GB)
        a(f"""    s_waitcnt vmcnt(2)
    v_max_u32 v{T}, v{GA}, v{GA+4}
    v_cmp_eq_u32 vcc, -1, v{T}
    s_cbranch_vccz L_{nm}_okA""")
    if cnt: a(f"    s_add_u32 s{cnt}, s{cnt}, 1")
    a(f"""    s_waitcnt vmcnt(0)
    v_max_u32 v{T}, v{GB}, v{GB+4}
    v_cmp_eq_u32 vcc, -1, v{T}
    s_cbranch_vccz L_{nm}_okB""")
    if cnt: a(f"    s_add_u32 s{cnt}, s{cnt}, 0x100")
    a("    s_mov_b64 exec, vcc")
    lds(GB)
    a(f"L_{nm}_loop:")
    a("    s_nop 7")
    lds(GB)
    a(f"""    s_waitcnt vmcnt(2)
    s_mov_b64 exec, -1
    v_max_u32 v{T}, v{GB}, v{GB+4}
    v_cmp_eq_u32 vcc, -1, v{T}
    s_cbranch_vccz L_{nm}_okB
    s_mov_b64 exec, vcc
    s_add_u32 s{S_RETRY}, s{S_RETRY}, 1
    s_cmp_lt_u32 s{S_RETRY}, 1000000
    s_cbranch_scc1 L_{nm}_loop
    s_mov_b64 exec, -1
    s_endpgm
L_{nm}_okB:""")
    consume(GB)
    a(f"    s_branch {join}")
    a(f"L_{nm}_okA:")
    consume(GA)
    a(f"    s_branch {join}")


def pollr(a, nm, G, T, vaddr, soff, soff2, off2, ws, k, gap, fill=None, cnt=None):
    def lds():
        a(f"    buffer_load_dwordx4 {vr(G,4)}, v{vaddr}, {ws}, s{soff} offen sc1")
        a(f"    buffer_load_dwordx4 {vr(G+4,4)}, v{vaddr}, {ws}, s{soff2} offen offset:{off2} sc1")
    for i in range(k):
        lds()
        if i < k - 1:
            if i == 0 and fill: fill()
            else: delay(a, gap)
    a(f"L_{nm}_loop:")
    a(f"""    s_waitcnt vmcnt({2*(k-1)})
    s_mov_b64 exec, -1
    v_max_u32 v{T}, v{G}, v{G+4}
    v_cmp_eq_u32 vcc, -1, v{T}
    s_cbranch_vccz L_{nm}_ok
    s_mov_b64 exec, vcc""")
    lds()
    if cnt: a(f"    s_add_u32 s{cnt}, s{cnt}, 1")
    a(f"""    s_add_u32 s{S_RETRY}, s{S_RETRY}, 1
    s_cmp_lt_u32 s{S_RETRY}, 1000000
    s_cbranch_scc1 L_{nm}_loop
    s_mov_b64 exec, -1
    s_endpgm
L_{nm}_ok:""")
```

```python
import sys
from asmlib import *
import chain as C
import bulk as B
from chain import *
from chain2 import chain_loop2
from bulk import B_WS, B_WV, B_T0, B_T1, B_T2, B_T3, B_SET, B_INST, B_RET, B_FLG, proj_role, scan_role, y_role, attn_role, oproj_role, wait_flag

NAME = "concat_heads__memory_aug_recurrent_mem_tr__ssm_conv_s5__prompt_kernel"
HEADER = open('concat_heads__memory_aug_recurrent_mem_tr__ssm_conv_s5__prompt.s.ref').read().split("; Override launch geometry")[0]

def gen(opt):
    name = NAME
    DIAG = opt.get('diag')
    def stamp(a, idx, treg0, vt):
        if not DIAG: return
        a(f"""    s_memrealtime s[{treg0}:{treg0+1}]
    s_waitcnt lgkmcnt(0)
    v_mov_b32 v{vt or 250}, s{treg0}
    s_mov_b64 exec, 1
    buffer_store_dword v{vt or 250}, off, s[8:11], s99 offset:{idx*4}
    s_mov_b64 exec, -1""")
    n = "m"
    a = Asm()
    ws = f"s[{S_WS}:{S_WS+3}]"
    a(f""".globl {name}
.p2align 8
.type {name},@function
{name}:
    s_cmp_ge_u32 s2, 256
    s_cbranch_scc1 L_exit
    s_load_dwordx2 s[4:5], s[0:1], 136      ; debug
    s_load_dwordx2 s[{S_WS}:{S_WS+1}], s[0:1], 144      ; ws
    s_getreg_b32 s3, hwreg(HW_REG_XCC_ID, 0, 4)
    s_mov_b32 s{S_WS+2}, {WS_SIZE}
    s_mov_b32 s{S_WS+3}, 0x20000
    s_waitcnt lgkmcnt(0)
    s_and_b32 s6, s3, 1
    s_lshl_b32 s6, s6, 6
    s_lshl_b32 s7, s3, 2
    s_add_u32 s6, s6, s7
    s_cmp_eq_u32 s3, 0
    s_cselect_b32 s6, 128, s6
    v_mov_b32 v1, s6
    v_mov_b32 v2, 1
    v_cmp_eq_u32 vcc, 0, v0
    s_and_saveexec_b64 s[6:7], vcc
    global_atomic_add v3, v1, v2, s[4:5] sc0
    s_waitcnt vmcnt(0)
    v_mov_b32 v4, {L_MISC}
    ds_write_b32 v4, v3
    s_waitcnt lgkmcnt(0)
    s_mov_b64 exec, s[6:7]
    s_cmp_lg_u32 s2, 0
    s_cbranch_scc1 L_noz
    v_mov_b32 v8, 0
    v_mov_b32 v9, 0
    v_mov_b32 v10, 0
    v_mov_b32 v11, 0
    v_lshlrev_b32 v5, 4, v0
    s_mov_b32 s6, {WS_FLAG}
    buffer_store_dwordx4 v[8:11], v5, {ws}, s6 offen sc1
    s_add_u32 s6, s6, 4096
    buffer_store_dwordx4 v[8:11], v5, {ws}, s6 offen sc1
    s_add_u32 s6, s6, 4096
    buffer_store_dwordx4 v[8:11], v5, {ws}, s6 offen sc1
    s_add_u32 s6, s6, 4096
    buffer_store_dwordx4 v[8:11], v5, {ws}, s6 offen sc1
    s_waitcnt vmcnt(0)
    s_barrier
    v_mov_b32 v5, 196
    v_mov_b32 v6, 1
    v_cmp_eq_u32 vcc, 0, v0
    s_and_saveexec_b64 s[12:13], vcc
    global_atomic_add v5, v6, s[4:5]
    s_mov_b64 exec, s[12:13]
L_noz:
    s_barrier
    v_mov_b32 v4, {L_MISC}
    ds_read_b32 v3, v4
    s_waitcnt lgkmcnt(0)
    v_readfirstlane_b32 s{S_H}, v3
    v_readfirstlane_b32 s{S_WV}, v0
    s_lshr_b32 s{S_WV}, s{S_WV}, 6
    s_cmp_ge_u32 s{S_H}, 32
    s_cbranch_scc1 L_exit
""")
    if DIAG:
        a(f"""    s_lshl_b32 s99, s3, 5
    s_add_u32 s99, s99, s{S_H}
    s_lshl_b32 s99, s99, 2
    s_add_u32 s99, s99, s{S_WV}
    s_lshl_b32 s99, s99, 5
    s_add_u32 s99, s99, {WS_FLAG + 0x8000}""")
    stamp(a, 0, 96, 0)
    a("""    s_cmp_lg_u32 s3, 0
    s_cbranch_scc1 L_bulk
""")
    if opt.get('nochain'): a("    s_endpgm")
    chain_setup(a, n)
    def after_first():
        chain_init_comm(a, n)
        chain_mem0_issue(a, n)
    def at_mid():
        chain_mem0_finish(a, n)
        a(f"""    v_mov_b32 v40, 192
    v_mov_b32 v41, 1
    v_cmp_eq_u32 vcc, 0, v0
    s_and_saveexec_b64 s[6:7], vcc
    global_atomic_add v40, v41, s[4:5]
    s_mov_b64 exec, s[6:7]
    v_mov_b32 v52, 196
L_fzw:
    global_load_dword v53, v52, s[4:5] sc1
    s_waitcnt vmcnt(0)
    v_readfirstlane_b32 s{S_T0}, v53
    s_cmp_ge_u32 s{S_T0}, 1
    s_cbranch_scc1 L_fzd
    s_add_u32 s{S_RETRY}, s{S_RETRY}, 1
    s_cmp_lt_u32 s{S_RETRY}, 1000000
    s_cbranch_scc1 L_fzw
    s_endpgm
L_fzd:""")
    def at_late():
        a(f"""    v_mov_b32 v40, 192
    global_load_dwordx2 v[42:43], v40, s[4:5] sc1
    s_lshl_b32 s{S_FLN}, s{S_H}, 2
    s_add_u32 s{S_T1}, s{S_FLN}, {F_KV}
    buffer_load_dword v44, off, {ws}, s{S_T1} sc1
    s_add_u32 s{S_T1}, s{S_FLN}, {F_KV + 128}
    buffer_load_dword v45, off, {ws}, s{S_T1} sc1
    s_add_u32 s{S_FLN}, s{S_FLN}, {F_KV + 2*128}
    buffer_load_dword v51, off, {ws}, s{S_FLN} sc1
    s_mov_b32 s{S_FLT}, 1""")
    C.PROLOG_STAMPS = bool(opt.get('pst'))
    if opt.get('pst'): a("    s_memtime s[90:91]")
    chain_load_weights2(a, n, after_first, at_mid, at_late)
    if opt.get('pst'):
        a("    s_memtime s[88:89]\n    s_waitcnt lgkmcnt(0)")
        for i in range(7): a(f"    s_sub_u32 s{76+2*i}, s{76+2*i}, s90\n    v_mov_b32 v{56+i}, s{76+2*i}")
        a(f"""    s_lshl_b32 s98, s{S_H}, 2
    s_add_u32 s98, s98, s{S_WV}
    s_lshl_b32 s98, s98, 6
    s_add_u32 s98, s98, {WS_FLAG + 0x38000}
    s_mov_b64 exec, 1
    buffer_store_dwordx4 v[56:59], off, s[8:11], s98
    buffer_store_dwordx4 v[60:63], off, s[8:11], s98 offset:16
    s_mov_b64 exec, -1""")
    a(f"""    v_mov_b32 v40, 200
    v_mov_b32 v41, 1
    v_cmp_eq_u32 vcc, 0, v0
    s_and_saveexec_b64 s[6:7], vcc
    global_atomic_add v40, v41, s[4:5]
    s_mov_b64 exec, s[6:7]""")
    stamp(a, 1, 96, 40)
    a(f"""    v_readfirstlane_b32 s{S_T0}, v42
    v_readfirstlane_b32 s{S_T1}, v43
    v_readfirstlane_b32 s{S_T2}, v44
    s_cmp_ge_u32 s{S_T0}, 32
    s_cselect_b32 s{S_T0}, s{S_FLT}, 0
    s_min_u32 s{S_T0}, s{S_T0}, s{S_T2}
    v_readfirstlane_b32 s{S_T2}, v45
    s_min_u32 s{S_T0}, s{S_T0}, s{S_T2}
    v_mov_b32 v0, v51
    s_mov_b32 s{S_FLT}, 1
    s_cmp_ge_u32 s{S_T0}, 1
    s_cbranch_scc1 L_fast0
    v_mov_b32 v40, 192
L_initw:
    global_load_dwordx2 v[42:43], v40, s[4:5] sc1
    s_waitcnt vmcnt(0)
    v_readfirstlane_b32 s{S_T0}, v42
    v_readfirstlane_b32 s{S_T1}, v43
    s_cmp_ge_u32 s{S_T0}, 32
    s_cselect_b32 s{S_T0}, 1, 0
    s_and_b32 s{S_T0}, s{S_T0}, s{S_T1}
    s_cmp_lg_u32 s{S_T0}, 0
    s_cbranch_scc1 L_initd
    s_add_u32 s{S_RETRY}, s{S_RETRY}, 1
    s_cmp_lt_u32 s{S_RETRY}, 1000000
    s_cbranch_scc1 L_initw
    s_endpgm
L_initd:
""")
    for sg in range(2):
        a(f"""    s_lshl_b32 s{S_T1}, s{S_H}, 2
    s_add_u32 s{S_T1}, s{S_T1}, {F_KV + sg*128}
L_kv0_{sg}:
    buffer_load_dword v42, off, {ws}, s{S_T1} sc1
    s_waitcnt vmcnt(0)
    v_readfirstlane_b32 s{S_T0}, v42
    s_cmp_ge_u32 s{S_T0}, 1
    s_cbranch_scc1 L_kv0d_{sg}
    s_sleep 2
    s_add_u32 s{S_RETRY}, s{S_RETRY}, 1
    s_cmp_lt_u32 s{S_RETRY}, 1000000
    s_cbranch_scc1 L_kv0_{sg}
    s_endpgm
L_kv0d_{sg}:""")
    a(f"""    buffer_load_dword v0, off, {ws}, s{S_FLN} sc1
L_fast0:
    s_lshl_b32 s{S_T1}, s{S_H}, 13
    s_lshl_b32 s{S_T0}, s{S_WV}, 11
    s_add_u32 s{S_T1}, s{S_T1}, s{S_T0}
    s_add_u32 s{S_T1}, s{S_T1}, {WS_KF}
    s_mov_b32 m0, s{S_KM0}
    s_nop 0
    buffer_load_dwordx4 v{V_L16}, {ws}, s{S_T1} offen sc1 lds
    buffer_load_dwordx4 v{V_L16}, {ws}, s{S_T1} offen offset:1024 sc1 lds
    s_waitcnt vmcnt(0)
""")
    copt = dict(opt.get('chain', {})); copt['flags'] = 0 if opt.get('noflags') else 1
    if DIAG and opt.get('steplog'): copt['steplog'] = 1
    stamp(a, 2, 96, 40)
    if DIAG:
        copt['cnt'] = 1
        if opt.get('winlog'): copt['winlog'] = 1; copt['cnt'] = 0
        a("    s_mov_b32 s91, 0\n    s_mov_b32 s92, 0")
        if opt.get('pts'):
            copt['stamp'] = 1; copt['pts'] = opt['pts']
            for i in range(1, 12): a(f"    s_mov_b32 s{79+i}, 0")
    chain_loop2(a, n, copt)
    stamp(a, 3, 96, 40)
    if DIAG:
        a(f"""    v_mov_b32 v40, s91
    v_mov_b32 v41, s92
    s_mov_b64 exec, 1
    buffer_store_dwordx2 v[40:41], off, s[8:11], s99 offset:16
    s_mov_b64 exec, -1""")
        if opt.get('winlog'):
            a("    s_memtime s[92:93]\n    s_waitcnt lgkmcnt(0)")
            for k in range(8): a(f"    v_mov_b32 v{40+k}, s{76+2*k}")
            a("    v_mov_b32 v48, s92")
            a(f"""    s_lshl_b32 s98, s{S_H}, 2
    s_add_u32 s98, s98, s{S_WV}
    s_lshl_b32 s98, s98, 6
    s_add_u32 s98, s98, {WS_FLAG + 0x30000}
    s_mov_b64 exec, 1
    buffer_store_dwordx4 v[40:43], off, s[8:11], s98
    buffer_store_dwordx4 v[44:47], off, s[8:11], s98 offset:16
    buffer_store_dwordx4 v[48:51], off, s[8:11], s98 offset:32
    s_mov_b64 exec, -1""")
        if opt.get('pts'):
            a(f"""    s_lshl_b32 s98, s{S_H}, 2
    s_add_u32 s98, s98, s{S_WV}
    s_lshl_b32 s98, s98, 6
    s_add_u32 s98, s98, {WS_FLAG + 0x30000}""")
            for i in range(12): a(f"    v_mov_b32 v{40+i}, s{80+i}")
            a(f"""    s_mov_b64 exec, 1
    buffer_store_dwordx4 v[40:43], off, s[8:11], s98
    buffer_store_dwordx4 v[44:47], off, s[8:11], s98 offset:16
    buffer_store_dwordx4 v[48:51], off, s[8:11], s98 offset:32
    s_mov_b64 exec, -1""")
    a("    s_waitcnt vmcnt(0)\n    s_endpgm")
    a("L_bulk:")
    if opt.get('nobulk'): a("    s_endpgm")
    a(f"""    s_sub_u32 s{B_T0}, s3, 1
    s_lshl_b32 s{B_T0}, s{B_T0}, 5
    s_add_u32 s60, s{B_T0}, s{S_H}              ; b
    s_mov_b32 s{B_WV}, s{S_WV}
    s_mov_b32 s{B_RET}, 0
    s_cmp_ge_u32 s60, 224
    s_cbranch_scc1 L_exit
""")
    a(f"""    s_lshl_b32 s64, s60, 2
    s_add_u32 s64, s64, s{B_WV}
    v_and_b32 v44, 63, v0
    v_lshlrev_b32 v45, 4, v44
    v_lshrrev_b32 v46, 4, v44
    v_lshlrev_b32 v46, 17, v46                  ; (lane>>4)*131072
    v_and_b32 v47, 15, v44
    v_lshlrev_b32 v47, 4, v47
    v_add_u32 v46, v46, v47""")
    for mi, poff in enumerate((24, 32, 16)):
        a(f"""    s_load_dwordx2 s[12:13], s[0:1], {poff}
    s_mov_b32 s14, 0x400000
    s_mov_b32 s15, 0x20000
    s_lshl_b32 s65, s64, 10                     ; r*1024 = d*8192 + p*1024
    s_waitcnt lgkmcnt(0)""")
        for k in range(5):
            a(f"    buffer_load_dwordx4 v[{64 + (mi*5+k)*4}:{67 + (mi*5+k)*4}], v45, s[12:15], s65 offen")
            if k < 4: a(f"    s_add_u32 s65, s65, {896*1024}")
    a(f"""    ; wait flag init (debug[9])
    v_mov_b32 v40, 196
L_bfw:
    global_load_dword v42, v40, s[4:5] sc1
    s_waitcnt vmcnt(0)
    v_readfirstlane_b32 s{B_T0}, v42
    s_cmp_ge_u32 s{B_T0}, 1
    s_cbranch_scc1 L_bfd
    s_add_u32 s{B_RET}, s{B_RET}, 1
    s_cmp_lt_u32 s{B_RET}, 1000000
    s_cbranch_scc1 L_bfw
    s_endpgm
""")
    CW = 32 if opt.get('delay') else 0
    DQ = opt.get('dq', 0)
    a(f"""L_bfd:""")
    for mi in range(3):
        for k in range(5):
            idx = mi*5 + k
            lab = f"L_rl_{idx}"
            a(f"    s_add_u32 s65, s64, {896*k}")
            if k == 4: a(f"    s_cmp_ge_u32 s65, 4096\n    s_cbranch_scc1 {lab}")
            a(f"""    s_and_b32 s66, s65, 7
    s_lshl_b32 s66, s66, 19                     ; 4p*131072
    s_lshr_b32 s65, s65, 3
    s_lshl_b32 s65, s65, 8                      ; d*256
    s_add_u32 s65, s65, s66
    s_add_u32 s65, s65, {WS_WT + mi*0x400000}
    buffer_store_dwordx4 v[{64 + idx*4}:{67 + idx*4}], v46, {ws}, s65 offen sc1""")
            if k == 4: a(f"{lab}:")
    a(f"""    s_waitcnt vmcnt(0)
    s_barrier
    s_sub_u32 s65, s3, 1
    s_lshl_b32 s65, s65, 7
    s_add_u32 s65, s65, {F_WT}
    s_cmp_lg_u32 s{B_WV}, 0
    s_cbranch_scc1 L_rl_np
    v_mov_b32 v40, 1
    s_mov_b64 exec, 1
    buffer_atomic_add v40, off, {ws}, s65 sc1
    s_mov_b64 exec, -1
L_rl_np:
    s_and_b32 s{B_SET}, s60, 3
    s_cmp_lt_u32 s60, 128
    s_cbranch_scc1 L_p_kv
    v_mov_b32 v40, 200
L_cww:
    global_load_dword v42, v40, s[4:5] sc1
    s_waitcnt vmcnt(0)
    v_readfirstlane_b32 s{B_T0}, v42
    s_cmp_ge_u32 s{B_T0}, {CW}
    s_cbranch_scc1 L_cwd
    s_sleep 8
    s_add_u32 s{B_RET}, s{B_RET}, 1
    s_cmp_lt_u32 s{B_RET}, 1000000
    s_cbranch_scc1 L_cww
    s_endpgm
L_cwd:
    s_cmp_ge_u32 s60, 208
    s_cbranch_scc1 L_spare
    v_mov_b32 v40, 204
L_dqw:
    global_load_dword v42, v40, s[4:5] sc1
    s_waitcnt vmcnt(0)
    v_readfirstlane_b32 s{B_T0}, v42
    s_cmp_ge_u32 s{B_T0}, {DQ}
    s_cbranch_scc1 L_dqd
    s_sleep 16
    s_add_u32 s{B_RET}, s{B_RET}, 1
    s_cmp_lt_u32 s{B_RET}, 1000000
    s_cbranch_scc1 L_dqw
    s_endpgm
L_dqd:
    s_cmp_ge_u32 s60, 208
    s_cbranch_scc1 L_spare
    s_cmp_lt_u32 s60, 192
    s_cbranch_scc1 L_p_q
    s_sub_u32 s{B_INST}, s60, 192
    s_lshr_b32 s{B_INST}, s{B_INST}, 2
""")
    if opt.get('nossm'): a("    s_endpgm")
    proj_role(a, "pu", 'U')
    a(f"    s_branch L_phase2\nL_p_q:\n    s_sub_u32 s{B_INST}, s60, 128\n    s_lshr_b32 s{B_INST}, s{B_INST}, 2")
    if opt.get('noq'): a("    s_endpgm")
    proj_role(a, "pq", 'Q')
    a(f"    s_branch L_phase2\nL_p_kv:\n    s_lshr_b32 s{B_INST}, s60, 2")
    proj_role(a, "pk", 'KV')
    a(f"""    v_mov_b32 v40, 204
    v_mov_b32 v41, 1
    v_cmp_eq_u32 vcc, 0, v0
    s_and_saveexec_b64 s[6:7], vcc
    global_atomic_add v40, v41, s[4:5]
    s_mov_b64 exec, s[6:7]""")
    a("L_phase2:")
    stamp(a, 1, 96, 0)
    if opt.get('nophase2'): a("    s_endpgm")
    a(f"""    s_barrier
    s_cmp_ge_u32 s60, 176
    s_cbranch_scc1 L_scan
    s_cmp_lt_u32 s60, 112
    s_cbranch_scc1 L_t4a
    s_sub_u32 s{B_T0}, s60, 112                 ; 0..63
    s_lshl_b32 s{B_T0}, s{B_T0}, 2
    s_add_u32 s{B_T0}, s{B_T0}, s{B_WV}
    s_and_b32 s{B_INST}, s{B_T0}, 63
    s_lshr_b32 s{B_SET}, s{B_T0}, 6
""")
    if opt.get('not3'): a("    s_endpgm")
    attn_role(a, "t3", 4)
    stamp(a, 3, 96, 0)
    a("    s_waitcnt vmcnt(0)")
    a(f"""    s_endpgm
L_t4a:
    s_lshr_b32 s{B_SET}, s60, 5
    s_and_b32 s{B_INST}, s60, 31
    s_branch L_t4
L_spare:""")
    if opt.get('nophase2'): a("    s_endpgm")
    a(f"""    s_mov_b32 s{B_SET}, 3
    s_sub_u32 s{B_INST}, s60, 192               ; t = 112 + (b-208) -> inst = 16..31
L_t4:
""")
    if opt.get('not3'): a("    s_endpgm")
    oproj_role(a, "t4", 4)
    stamp(a, 3, 96, 0)
    a("    s_waitcnt vmcnt(0)")
    a(f"""    s_endpgm
L_scan:
    s_sub_u32 s63, s60, 176                     ; task 0..31
    s_mov_b32 s{B_INST}, s63
""")
    if opt.get('nossm'): a("    s_endpgm")
    scan_role(a, "sc")
    stamp(a, 2, 96, 0)
    a(f"""    s_barrier
    s_lshr_b32 s{B_SET}, s63, 2
    s_and_b32 s{B_INST}, s63, 3
""")
    y_role(a, "yy")
    stamp(a, 3, 96, 0)
    a("    s_waitcnt vmcnt(0)")
    a("L_exit:\n    s_endpgm")
    text = HEADER + "; @launch grid=(256,1,1) block=(256,1,1) lds=163840\n"
    text += '.amdgcn_target "amdgcn-amd-amdhsa--gfx950"\n.text\n' + a.text()
    text += '.section .rodata,"a"\n.p2align 6\n' + kdesc(name)
    return text

if __name__ == '__main__':
    opt = dict(chain=dict(v2=1, earlyhalf=0, dw=(32,80,128,176), d2=(140,0), spec1=100, spec2=120, nv0=0))
    for x in sys.argv[2:]:
        if '=' in x:
            k_, v_ = x.split('=', 1)
            if k_ == 'pts': opt['pts'] = v_.split(',')
            elif k_.startswith('c.'): opt['chain'][k_[2:]] = eval(v_)
            else: opt[k_] = eval(v_)
        else: opt[x] = 1
    t = gen(opt)
    out = sys.argv[1] if len(sys.argv) > 1 else 'concat_heads__memory_aug_recurrent_mem_tr__ssm_conv_s5__prompt.s'
    open(out, 'w').write(t)
    print("written", out, len(t), "bytes")
```
